```python
import torch

def _softmax(x, axis=-1):
    return torch.softmax(x, dim=axis)
def _gelu(x):
    return torch.nn.functional.gelu(x, approximate="tanh")
def _silu(x):
    return torch.nn.functional.silu(x)
def _sigmoid(x):
    return torch.sigmoid(x)
def _layernorm(x, axis=-1, eps=1e-5):
    m = x.mean(dim=axis, keepdim=True)
    v = x.var(dim=axis, keepdim=True, unbiased=False)
    return (x - m) / torch.sqrt(v + eps)
def _scatter_add(tgt, idx, src, axis=0):
    return tgt.clone().index_add_(axis, idx, src)
def _segment_sum(src, seg, n):
    out = torch.zeros((n,) + src.shape[1:], dtype=src.dtype)
    return out.index_add_(0, seg, src)
def _pad(x, pw):
    flat = tuple(v for pair in reversed(pw) for v in pair)
    return torch.nn.functional.pad(x, flat)

kernel_name = 'parallel_sum__compressed_kv_cla__glu_gated_geglu__prompt'

def setup_inputs():

    _w = (lambda a: (lambda t: t.to(torch.bfloat16) if t.is_floating_point() else t)(torch.as_tensor(a)))
    def _A_setup():
        B, H, Sq, Sk, D, M = 1, 32, 2048, 2048, 128, 512
        Dc = 4 * D
        return {
            "x": _w((lambda *s: torch.randn(*s, dtype=torch.bfloat16) * 0.05)(B, Sq, M)),
            "c_kv": _w((lambda *s: torch.randn(*s, dtype=torch.bfloat16) * 0.4)(B, Sk, Dc)),
            "w_q": _w((lambda *s: torch.randn(*s, dtype=torch.bfloat16) * 3.2)(M, H, D) * (M ** -0.5)),
            "w_uk": _w((lambda *s: torch.randn(*s, dtype=torch.bfloat16) * 3.2)(Dc, H, D) * (Dc ** -0.5)),
            "w_uv": _w((lambda *s: torch.randn(*s, dtype=torch.bfloat16) * 0.4)(Dc, H, D) * (Dc ** -0.5)),
            "w_o": _w((lambda *s: torch.randn(*s, dtype=torch.bfloat16) * 0.4)(H, D, M) * ((H * D) ** -0.5)),
        }
    _A_in = _A_setup()

    def _B_setup():
        B, S, Dm, Df = 1, 2048, 512, 1792
        return {
            "x": _w((lambda *s: torch.randn(*s, dtype=torch.bfloat16) * 0.05)(B, S, Dm)),
            "w_gate": _w((lambda *s: torch.randn(*s, dtype=torch.bfloat16) * 0.4)(Dm, Df) * (Dm ** -0.5)),
            "w_up": _w((lambda *s: torch.randn(*s, dtype=torch.bfloat16) * 0.4)(Dm, Df) * (Dm ** -0.5)),
            "w_down": _w((lambda *s: torch.randn(*s, dtype=torch.bfloat16) * 0.4)(Df, Dm) * (Df ** -0.5)),
        }
    _B_in = _B_setup()

    return {
        "A_x": _A_in["x"],
        "A_c_kv": _A_in["c_kv"],
        "A_w_q": _A_in["w_q"],
        "A_w_uk": _A_in["w_uk"],
        "A_w_uv": _A_in["w_uv"],
        "A_w_o": _A_in["w_o"],
        "B_x": _B_in["x"],
        "B_w_gate": _B_in["w_gate"],
        "B_w_up": _B_in["w_up"],
        "B_w_down": _B_in["w_down"],
    }

def reference(A_x, A_c_kv, A_w_q, A_w_uk, A_w_uv, A_w_o, B_x, B_w_gate, B_w_up, B_w_down):
    def _A_ref(x, c_kv, w_q, w_uk, w_uv, w_o):
        B, Sq, M = x.shape[0], x.shape[1], x.shape[2]
        Sk = c_kv.shape[1]
        H, D = w_q.shape[1], w_q.shape[2]
        q = torch.einsum("bqm,mhd->bhqd", x, w_q)
        k = torch.einsum("bkc,chd->bhkd", c_kv, w_uk)
        v = torch.einsum("bkc,chd->bhkd", c_kv, w_uv)
        scores = torch.einsum("bhqd,bhkd->bhqk", q, k) * (D ** -0.5)
        off = Sk - Sq
        qi = torch.arange(Sq)[:, None]
        kj = torch.arange(Sk)[None, :]
        cmask = kj <= (qi + off)
        scores = torch.where(cmask[None, None], scores, -1e9)
        p = _softmax(scores, axis=-1)
        ctx = torch.einsum("bhqk,bhkd->bhqd", p, v)
        return torch.einsum("bhqd,hdm->bqm", ctx, w_o)

    def _B_ref(x, w_gate, w_up, w_down):
        g = torch.einsum("bsd,df->bsf", x, w_gate)
        u = torch.einsum("bsd,df->bsf", x, w_up)
        h = _gelu(g) * u
        return torch.einsum("bsf,fd->bsd", h, w_down)

    x = A_x
    xn = _layernorm(x, axis=-1)
    return x + _A_ref(xn, A_c_kv, A_w_q, A_w_uk, A_w_uv, A_w_o) + _B_ref(xn, B_w_gate, B_w_up, B_w_down)
```

```python
import re
from emu import Op

def V(b, n=1):
    return f'v{b}' if n == 1 else f'v[{b}:{b+n-1}]'
def A(b, n=1):
    return f'a{b}' if n == 1 else f'a[{b}:{b+n-1}]'
def S(b, n=1):
    return f's{b}' if n == 1 else f's[{b}:{b+n-1}]'

def mfma(d, a, b, c):
    return f'v_mfma_f32_16x16x32_bf16 {d}, {a}, {b}, {c}'

TRANS = ('v_exp_f32', 'v_rcp_f32', 'v_rsq_f32', 'v_log_f32', 'v_sqrt_f32')

def kind_of(t):
    m = t.split()[0]
    if m.startswith('v_mfma'): return 'M'
    if m in TRANS: return 't'
    if m.startswith('v_'): return 'v'
    if m.startswith('ds_') or m.startswith('buffer_'): return 'm'
    return 's'

class Sched:
    def __init__(self, mf):
        self.mf = list(mf)
        n = len(self.mf)
        self.s = [[] for _ in range(n)]; self.m = [[] for _ in range(n)]; self.v = [[] for _ in range(n)]
        self.used = [0] * n
        self.vm = [0] * n
    def put(self, g, t):
        k = kind_of(t)
        if k == 's':
            if self.s[g]: self.used[g] += 1
            self.s[g].append(t)
        elif k == 'm':
            self.m[g].append(t); self.used[g] += 1
            if t.startswith('buffer_'): self.vm[g] += 1
        else:
            self.v[g].append(t); self.used[g] += 2 if k == 't' else 1
        return g
    def fits(self, g, t, vmspace=3):
        k = kind_of(t)
        if k == 's': return not self.s[g]
        if t.startswith('buffer_'):
            if any(self.vm[x] for x in range(max(0, g - vmspace), min(len(self.mf), g + vmspace + 1))): return False
        return self.used[g] + (2 if k == 't' else 1) <= 2
    def place(self, t, lo, hi=None, vmspace=3, force=True):
        n = len(self.mf)
        hi = n - 1 if hi is None else min(hi, n - 1)
        for g in range(lo, hi + 1):
            if self.fits(g, t, vmspace): return self.put(g, t)
        if not force: return None
        raise Exception(f'cannot place {t} in [{lo},{hi}]')
    def emit(self):
        out = []
        for g, m in enumerate(self.mf):
            out.append(m)
            out += self.s[g] + self.m[g] + self.v[g]
        return out
    def overflow(self):
        return sum(max(0, u - 2) for u in self.used)

def split_ins(t):
    t = t.split(';')[0].strip()
    p = t.split(None, 1)
    if len(p) == 1: return p[0], [], {}
    if p[0] in ('s_waitcnt', 'WAITVM', 'buffer_inv', 'buffer_wbl2', 's_getreg_b32'): return p[0], [], {}
    parts = p[1].split(',')
    last = parts[-1].split()
    parts[-1] = last[0]
    return p[0], [Op(x) for x in parts], set(last[1:])

def vregs(t):
    mn, ops, mods = split_ins(t)
    allr = set()
    for o in ops:
        if o.k == 'v': allr.update(o.regs())
    dst = set()
    if mn.startswith('ds_read') or (mn.startswith('buffer_load') and 'lds' not in mods):
        dst = set(ops[0].regs())
    return mn, allr, dst

def autowait(seq):
    out = []
    lg = []; vm = []
    nlg_pos = []
    nvm_pos = []
    def insert_wait(cls, op_pos):
        pos = len(out)
        for k in range(len(out) - 1, op_pos, -1):
            t = out[k]
            if t.startswith('v_mfma'):
                pos = k + 1; break
            if t.endswith(':') or t.startswith('s_barrier') or t.startswith('s_cbranch') or t.startswith('s_branch'):
                break
        lst = nlg_pos if cls == 'lgkmcnt' else nvm_pos
        n = sum(1 for p in lst if op_pos < p < pos)
        n = min(n, 15 if cls == 'lgkmcnt' else 63)
        add_wait(pos, cls, n)
    def add_wait(pos, cls, n):
        nonlocal lg, vm, nlg_pos, nvm_pos
        tgt = None
        if pos < len(out) and out[pos].startswith('s_waitcnt'): tgt = pos
        elif pos > 0 and out[pos - 1].startswith('s_waitcnt'): tgt = pos - 1
        if tgt is not None:
            d = dict((k, int(v)) for k, v in re.findall(r'(\w+)\((\d+)\)', out[tgt]))
            d[cls] = min(d.get(cls, 99), n)
            out[tgt] = 's_waitcnt ' + ' '.join(f'{k}({v})' for k, v in sorted(d.items(), reverse=True))
        else:
            out.insert(pos, f's_waitcnt {cls}({n})')
            for q in (lg, vm):
                for o in q:
                    if o['idx'] >= pos: o['idx'] += 1
            nlg_pos = [p + 1 if p >= pos else p for p in nlg_pos]
            nvm_pos = [p + 1 if p >= pos else p for p in nvm_pos]
        q = lg if cls == 'lgkmcnt' else vm
        before = [o for o in q if o['idx'] < pos]
        keep = before[len(before) - n:] if n else []
        q[:] = keep + [o for o in q if o['idx'] >= pos]
    for t in seq:
        if t.endswith(':') or t.startswith('.') or t.startswith(';'):
            out.append(t); continue
        if t.startswith('WAITVM'):
            tag = t.split()[1]
            c = [o for o in vm if o['tag'] == tag]
            if c:
                n = sum(1 for p in nvm_pos if p > c[-1]['idx'])
                add_wait(len(out), 'vmcnt', min(n, 63))
            continue
        if t.startswith('s_waitcnt'):
            d = dict((k, int(v)) for k, v in re.findall(r'(\w+)\((\d+)\)', t))
            for k, v in d.items(): add_wait(len(out), k, v)
            continue
        mn, allr, dst = vregs(t)
        for cls, q in (('lgkmcnt', lg), ('vmcnt', vm)):
            c = [o for o in q if o['dst'] & allr]
            if c: insert_wait(cls, c[-1]['idx'])
        if mn == 'TOUCH': continue
        if mn.startswith('ds_') and len(lg) >= 15: insert_wait('lgkmcnt', lg[3]['idx'])
        if mn.startswith('buffer_') and len(vm) >= 63: insert_wait('vmcnt', vm[0]['idx'])
        if mn.startswith('ds_'):
            lg.append(dict(idx=len(out), dst=dst, tag=None)); nlg_pos.append(len(out))
            nlg_pos = nlg_pos[-80:]
        elif mn.startswith('buffer_'):
            m = re.search(r'@(\S+)', t)
            vm.append(dict(idx=len(out), dst=dst, tag=m.group(1) if m else None)); nvm_pos.append(len(out))
            nvm_pos = nvm_pos[-200:]
        out.append(t)
    return out

def srd(d, lo, hi, size):
    return [f's_mov_b32 s{d}, s{lo}', f's_mov_b32 s{d+1}, s{hi}', f's_mov_b32 s{d+2}, {size:#x}', f's_mov_b32 s{d+3}, 0x20000']

def srd_off(d, lo, hi, off, size):
    return [f's_add_u32 s{d}, s{lo}, {off:#x}', f's_addc_u32 s{d+1}, s{hi}, 0', f's_mov_b32 s{d+2}, {size:#x}', f's_mov_b32 s{d+3}, 0x20000']

def fmt(lines):
    return '\n'.join(l if (l.endswith(':') or l.startswith('.')) else '    ' + l for l in lines)

def kdesc(name, vgpr=512, accum=256, sgpr=102):
    return f'''.amdhsa_kernel {name}
  .amdhsa_next_free_vgpr {vgpr}
  .amdhsa_next_free_sgpr {sgpr}
  .amdhsa_accum_offset {accum}
  .amdhsa_group_segment_fixed_size 0
  .amdhsa_kernarg_size 104
  .amdhsa_user_sgpr_count 2
  .amdhsa_user_sgpr_kernarg_segment_ptr 1
  .amdhsa_system_sgpr_workgroup_id_x 1
.end_amdhsa_kernel'''
```

```python
import re, math
import numpy as np

U32 = np.uint32
LANES = np.arange(64, dtype=np.int64)

class EmuError(Exception):
    pass

def bf16_round(f):
    u = np.ascontiguousarray(f, dtype=np.float32).view(np.uint32)
    r = ((u.astype(np.uint64) + 0x7fff + ((u >> 16) & 1)) >> 16).astype(np.uint32) & 0xffff
    nan = np.isnan(f)
    if nan.any():
        r = np.where(nan, 0x7fc0, r)
    return r.astype(np.uint32)

def f2u(x):
    return int(np.float32(x).view(np.uint32))

class Mem:
    def __init__(self):
        self.bufs = []
        self.next = 0x100000000
    def add(self, arr, name):
        a = np.ascontiguousarray(arr).view(np.uint8).reshape(-1)
        base = self.next
        self.bufs.append((base, a, name))
        self.next += (len(a) + 0xfffff + 0x200000) & ~0xfffff
        return base
    def find(self, addr):
        for base, a, name in self.bufs:
            if base <= addr < base + len(a):
                return base, a, name
        raise EmuError('bad base address %x' % addr)

OPRE = re.compile(r'^(-?)(abs\()?([sva])(?:(\d+)|\[(\d+):(\d+)\])\)?$')

class Op:
    __slots__ = ('k', 'i', 'n', 'neg', 'abs', 'val')
    def __init__(self, t):
        self.neg = self.abs = False
        self.n = 1
        t = t.strip()
        if t.startswith('|') or t.startswith('-|'):
            raise EmuError('use abs()')
        m = OPRE.match(t)
        if m:
            self.neg = bool(m.group(1)); self.abs = bool(m.group(2))
            self.k = m.group(3)
            if m.group(4) is not None:
                self.i = int(m.group(4))
            else:
                self.i = int(m.group(5)); self.n = int(m.group(6)) - self.i + 1
            if self.k == 'a':
                self.k = 'v'; self.i += 256
        elif t in ('vcc', 'exec'):
            self.k = 's'; self.i = 106 if t == 'vcc' else 126; self.n = 2
        elif t in ('vcc_lo', 'vcc_hi', 'exec_lo', 'exec_hi'):
            self.k = 's'; self.i = (106 if t[0] == 'v' else 126) + (1 if t.endswith('hi') else 0)
        elif t == 'm0':
            self.k = 's'; self.i = 124
        elif t == 'off':
            self.k = 'off'
        else:
            self.k = 'c'
            try:
                self.val = int(t, 0) & 0xffffffffffffffff
            except ValueError:
                try:
                    self.val = f2u(float(t))
                except ValueError:
                    self.k = 'l'; self.val = t
    def regs(self):
        return range(self.i, self.i + self.n)

class Ins:
    __slots__ = ('mn', 'ops', 'mods', 'text', 'line', 'fn', 'cls', 'vr', 'vw', 'sr', 'sw', 'size')

TRANS = ('v_exp_f32', 'v_log_f32', 'v_rcp_f32', 'v_rsq_f32', 'v_sqrt_f32')

def parse(text):
    ins = []; labels = {}
    for ln, raw in enumerate(text.split('\n'), 1):
        s = raw.split(';')[0].strip()
        if not s or s.startswith('.'):
            if s.startswith('.section'):
                break
            continue
        if s.endswith(':'):
            labels[s[:-1]] = len(ins); continue
        p = s.split(None, 1)
        I = Ins(); I.mn = p[0]; I.text = s; I.line = ln
        for suf in ('_e32', '_e64', '_dpp'):
            if I.mn.endswith(suf): I.mn = I.mn[:-len(suf)]
        I.ops = []; I.mods = {}
        if len(p) > 1:
            if I.mn == 's_waitcnt':
                for k, v in re.findall(r'(\w+)\((\d+)\)', p[1]): I.mods[k] = int(v)
            elif I.mn in ('buffer_inv', 'buffer_wbl2', 's_getreg_b32'):
                if I.mn == 's_getreg_b32':
                    I.ops = [Op(p[1].split(',')[0])]
            else:
                parts = p[1].split(',')
                last = parts[-1].split()
                parts[-1] = last[0]
                for m in last[1:]:
                    if ':' in m:
                        k, v = m.split(':', 1); I.mods[k] = int(v, 0)
                    else:
                        I.mods[m] = True
                I.ops = [Op(x) for x in parts]
        ins.append(I)
    return ins, labels

class WG:
    def __init__(self, prog, mem, kernarg, wgid, entry, nwaves=4, lds=163840, check=True):
        self.ins, self.labels = prog
        self.mem = mem; self.lds = np.full(lds, 0xcd, np.uint8); self.ldsz = lds
        ng = lds // 8
        self.w_wave = np.full(ng, -1, np.int32)
        self.w_ep = np.full(ng, -1, np.int64)
        self.r_ep = np.full((nwaves, ng), -1, np.int64)
        self.r_cnt = np.zeros((nwaves, ng), np.int32)
        self.epoch = 0
        self.check = check
        self.waves = [Wave(self, w, kernarg, wgid, self.labels[entry]) for w in range(nwaves)]
        self.poll_hook = None
    def run(self, maxsteps=10**8):
        while True:
            alive = [w for w in self.waves if not w.done]
            if not alive: break
            for w in alive:
                w.run(maxsteps)
            self.epoch += 1
        n = [w.nbar for w in self.waves]
        if len(set(n)) != 1:
            raise EmuError('barrier count mismatch %s' % n)

BIG = 1 << 60

class Wave:
    def __init__(self, wg, wid, kernarg, wgid, pc):
        self.wg = wg; self.wid = wid; self.pc = pc
        self.s = [0xdeadbeef] * 128
        self.s[0] = kernarg & 0xffffffff; self.s[1] = kernarg >> 32; self.s[2] = wgid
        self.s[126] = self.s[127] = 0xffffffff
        self.scc = 0
        self.v = np.full((512, 64), 0x7fc0dead, np.uint32)
        self.v[0] = LANES + 64 * wid
        self.vinit = np.zeros(512, bool); self.vinit[0] = True
        self.done = False; self.nbar = 0
        self.vmq = []; self.lgq = []
        self.vpend = np.zeros(512, np.int32); self.spend = set()
        self.t = 0
        NEG = -1000
        self.t_valu_w = np.full(512, NEG, np.int64); self.t_trans_w = np.full(512, NEG, np.int64)
        self.t_mfma_w = np.full(512, NEG, np.int64); self.mfma_d = np.full(512, -1, np.int64)
        self.t_mfma_c = np.full(512, NEG, np.int64); self.t_store_r = np.full(512, NEG, np.int64)
        self.t_s_valu = [NEG] * 128; self.t_m0 = NEG
        self.count = {}; self.nins = 0
    def err(self, I, msg):
        raise EmuError('wave %d line %d [%s]: %s' % (self.wid, I.line, I.text, msg))
    def exec_mask(self):
        e = self.s[126] | (self.s[127] << 32)
        if e == 0xffffffffffffffff: return None
        return ((e >> LANES.astype(object)) & 1).astype(bool)
    def sget(self, I, o):
        if o.k == 'c': return o.val & 0xffffffff
        if o.i in self.spend: self.err(I, 'pending sgpr s%d' % o.i)
        return self.s[o.i]
    def sget64(self, I, o):
        if o.k == 'c':
            return o.val
        if o.i in self.spend or o.i + 1 in self.spend: self.err(I, 'pending sgpr')
        return self.s[o.i] | (self.s[o.i + 1] << 32)
    def sset(self, I, o, v):
        if o.i in self.spend: self.err(I, 'write pending sgpr')
        self.s[o.i] = v & 0xffffffff
        if o.i == 124: self.t_m0 = self.t
    def sset64(self, I, o, v):
        self.s[o.i] = v & 0xffffffff; self.s[o.i + 1] = (v >> 32) & 0xffffffff
    def chk_vread(self, I, o, kind):
        sl = slice(o.i, o.i + o.n)
        if self.vpend[sl].any(): self.err(I, 'read of pending vgpr %d' % o.i)
        if not self.vinit[sl].all(): self.err(I, 'read of uninitialised vgpr %d' % o.i)
        t = self.t
        d = t - self.t_mfma_w[sl].max() - 1
        if kind == 'mfma_c':
            if d < 6 and not (self.mfma_d[sl] == o.i).all(): self.err(I, 'mfma D->C overlap hazard %d' % d)
        elif d < 8: self.err(I, 'mfma D->read hazard (%d states)' % d)
        d = t - self.t_valu_w[sl].max() - 1
        if kind in ('mfma_ab', 'mfma_c', 'perm') and d < 2: self.err(I, 'valu->%s hazard (%d)' % (kind, d))
        if kind == 'rl' and d < 1: self.err(I, 'valu->readlane hazard')
        if kind in ('valu', 'perm', 'rl', 'mem') and t - self.t_trans_w[sl].max() - 1 < 1: self.err(I, 'trans->use hazard')
    def chk_vwrite(self, I, o, kind):
        sl = slice(o.i, o.i + o.n)
        if self.vpend[sl].any(): self.err(I, 'write of pending vgpr %d' % o.i)
        t = self.t
        if kind != 'mfma':
            d = t - self.t_mfma_w[sl].max() - 1
            if d < 8: self.err(I, 'mfma D->write hazard (%d)' % d)
            if t - self.t_mfma_c[sl].max() - 1 < 3: self.err(I, 'mfma C WAR hazard')
        if t - self.t_store_r[sl].max() - 1 < 2: self.err(I, 'store data WAR hazard')
        self.vinit[sl] = True
        if kind in ('valu', 'trans'): self.t_valu_w[sl] = t
        if kind == 'trans': self.t_trans_w[sl] = t
    def vsrc(self, I, o, kind='valu'):
        if o.k == 'v':
            if o.i >= 256 and kind in ('valu', 'trans') and not I.mn.startswith('v_accvgpr'): self.err(I, 'agpr in valu')
            self.chk_vread(I, o, kind)
            return self.v[o.i]
        if o.k == 's' and self.t - self.t_s_valu[o.i] - 1 < 2: self.err(I, 'valu sgpr write -> valu read hazard')
        return np.full(64, self.sget(I, o), np.uint32)
    def fsrc(self, I, o, kind='valu'):
        x = self.vsrc(I, o, kind).view(np.float32)
        if o.abs: x = np.abs(x)
        if o.neg: x = -x
        return x
    def vdst(self, I, o, val, kind='valu'):
        self.chk_vwrite(I, o, kind)
        val = np.asarray(val)
        if val.dtype == np.float32: val = val.view(np.uint32)
        elif val.dtype != np.uint32: val = (val & 0xffffffff).astype(np.uint32)
        m = self.exec_mask()
        if m is None: self.v[o.i] = val
        else: self.v[o.i] = np.where(m, val, self.v[o.i])
    def set_mask(self, I, o, c):
        m = self.exec_mask()
        if m is not None: c = c & m
        val = 0
        for b in np.nonzero(c)[0]: val |= 1 << int(b)
        self.sset64(I, o, val)
        self.t_s_valu[o.i] = self.t_s_valu[o.i + 1] = self.t
    def get_mask(self, I, o):
        if self.t - max(self.t_s_valu[o.i], self.t_s_valu[o.i + 1]) - 1 < 2: self.err(I, 'valu mask write -> read hazard')
        e = self.sget64(I, o)
        return np.array([(e >> i) & 1 for i in range(64)], bool)
    def lds_gran(self, I, addr, nb, m):
        if m is not None: addr = addr[m]
        if len(addr) and (addr.max() + nb > self.wg.ldsz): self.err(I, 'LDS OOB %d' % addr.max())
        g = addr // 8
        if nb > 8: g = np.concatenate([g + k for k in range(nb // 8)])
        return np.unique(g)
    def lds_read_chk(self, I, g):
        wg = self.wg
        if (wg.w_wave[g] < 0).any(): self.err(I, 'LDS read of never written data at %d' % (g[wg.w_wave[g] < 0][0] * 8))
        bad = (wg.w_ep[g] == BIG) | ((wg.w_wave[g] != self.wid) & (wg.w_ep[g] >= wg.epoch))
        if bad.any(): self.err(I, 'LDS RAW hazard at %d (writer wave %d, ep %d, now %d)' % (g[bad][0] * 8, wg.w_wave[g][bad][0], wg.w_ep[g][bad][0], wg.epoch))
        wg.r_cnt[self.wid, g] += 1
        def done():
            wg.r_cnt[self.wid, g] -= 1; wg.r_ep[self.wid, g] = wg.epoch
        return done
    def lds_write_chk(self, I, g, dma):
        wg = self.wg
        for y in range(len(wg.waves)):
            if y == self.wid and not dma: continue
            if wg.r_cnt[y, g].any(): self.err(I, 'LDS WAR hazard: read in flight by wave %d at %d' % (y, g[wg.r_cnt[y, g] > 0][0] * 8))
            if y != self.wid and (wg.r_ep[y, g] >= wg.epoch).any(): self.err(I, 'LDS WAR hazard vs wave %d at %d' % (y, g[wg.r_ep[y, g] >= wg.epoch][0] * 8))
        bad = (wg.w_ep[g] == BIG) | ((wg.w_wave[g] != self.wid) & (wg.w_wave[g] >= 0) & (wg.w_ep[g] >= wg.epoch))
        if bad.any(): self.err(I, 'LDS WAW hazard at %d' % (g[bad][0] * 8))
        wg.w_wave[g] = self.wid
        if dma:
            wg.w_ep[g] = BIG
        else:
            wg.w_ep[g] = BIG - 1
        def done():
            wg.w_ep[g] = wg.epoch
        return done
    def bank_conf(self, I, addr, kind):
        if kind == 'b128':
            groups = [[0,1,2,3,12,13,14,15,20,21,22,23,24,25,26,27],[4,5,6,7,8,9,10,11,16,17,18,19,28,29,30,31]]
            groups += [[x + 32 for x in g] for g in groups]; nd = 4
        else:
            groups = [list(range(32)), list(range(32, 64))]; nd = 2
        ex = 0
        for g in groups:
            a = np.unique(addr[g] // 4)
            b = np.concatenate([(a + k) % 64 for k in range(nd)])
            ex += np.bincount(b).max() - 1
        if ex:
            k = 'bankconf:' + str(I.line)
            self.count[k] = self.count.get(k, 0) + ex
    def baddr(self, I, vo, srd, so):
        for r in list(srd.regs()) + ([so.i] if so.k == 's' else []):
            if self.t - self.t_s_valu[r] - 1 < 5: self.err(I, 'valu sgpr -> vmem hazard')
            if r in self.spend: self.err(I, 'pending srd')
        base = self.s[srd.i] | ((self.s[srd.i + 1] & 0xffff) << 32)
        if self.s[srd.i + 3] != 0x20000: self.err(I, 'bad srd word3')
        off = np.full(64, I.mods.get('offset', 0) + self.sget(I, so), np.int64)
        if vo.k == 'v':
            self.chk_vread(I, vo, 'mem')
            off = off + self.v[vo.i].astype(np.int64)
        return base, off, self.s[srd.i + 2]
    def gather(self, I, base, off, nrec, nb):
        if base == 0x7777000000: return np.zeros((64, nb // 4), np.uint32)
        b0, a, name = self.wg.mem.find(base)
        if base - b0 + nrec > len(a): self.err(I, 'SRD range exceeds buffer %s' % name)
        ok = off + nb <= nrec
        idx = (base - b0 + np.where(ok, off, 0))[:, None] + np.arange(nb)[None, :]
        d = a[idx]
        if not ok.all():
            d[~ok] = 0
            self.count['oob_load'] = self.count.get('oob_load', 0) + 1
        return np.ascontiguousarray(d).view(np.uint32)
    def retire(self, q, n):
        while len(q) > n:
            for f in q.pop(0): f()
    def pend(self, o):
        sl = slice(o.i, o.i + o.n)
        self.vpend[sl] += 1
        def done(): self.vpend[sl] -= 1
        return done
    def run(self, maxsteps):
        ins = self.wg.ins
        while True:
            I = ins[self.pc]; self.pc += 1
            self.nins += 1
            if self.nins > maxsteps: self.err(I, 'too many steps')
            r = self.step(I)
            self.t += 1
            if r: return
    def step(self, I):
        mn = I.mn; o = I.ops
        c = mn[0]
        if c == 'v':
            if mn == 'v_mfma_f32_16x16x32_bf16':
                self.chk_vread(I, o[1], 'mfma_ab'); self.chk_vread(I, o[2], 'mfma_ab')
                def frag(x):
                    r = self.v[x.i:x.i + 4]
                    lo = (r << 16).view(np.float32); hi = (r & 0xffff0000).view(np.float32)
                    f = np.stack([lo, hi], 1).reshape(8, 4, 16)
                    return f.transpose(2, 1, 0).reshape(16, 32)
                A = frag(o[1]); B = frag(o[2])
                with np.errstate(all='ignore'):
                    D = A @ B.T
                    D = D.reshape(4, 4, 16).transpose(1, 0, 2).reshape(4, 64)
                    if o[3].k == 'v':
                        if (o[3].i >= 256) != (o[0].i >= 256): self.err(I, 'C/D class mismatch')
                        self.chk_vread(I, o[3], 'mfma_c')
                        D = D + self.v[o[3].i:o[3].i + 4].view(np.float32)
                        self.t_mfma_c[o[3].i:o[3].i + 4] = self.t
                    elif o[3].val != 0: self.err(I, 'const C')
                self.chk_vwrite(I, o[0], 'mfma')
                if self.exec_mask() is not None: self.err(I, 'mfma under partial exec')
                self.v[o[0].i:o[0].i + 4] = D.astype(np.float32).view(np.uint32)
                self.t_mfma_w[o[0].i:o[0].i + 4] = self.t; self.mfma_d[o[0].i:o[0].i + 4] = o[0].i
                self.count['mfma'] = self.count.get('mfma', 0) + 1
                return
            return self.valu(I)
        if c == 's': return self.salu(I)
        if c == 'd': return self.ds(I)
        if c == 'b': return self.vmem(I)
        self.err(I, 'unknown')
    def valu(self, I):
        mn = I.mn; o = I.ops
        F = self.fsrc; V = self.vsrc
        with np.errstate(all='ignore'):
            if mn in TRANS:
                x = F(I, o[1], 'trans')
                r = {'v_exp_f32': np.exp2, 'v_log_f32': np.log2, 'v_rcp_f32': lambda x: np.float32(1) / x,
                     'v_rsq_f32': lambda x: np.float32(1) / np.sqrt(x), 'v_sqrt_f32': np.sqrt}[mn](x)
                return self.vdst(I, o[0], r.astype(np.float32), 'trans')
            dpp = [k for k in I.mods if k.startswith(('row_ror', 'row_shr', 'quad_perm', 'row_half_mirror', 'row_mirror'))]
            if dpp:
                self.chk_vread(I, o[1], 'perm')
                src = self.v[o[1].i]
                k = dpp[0]
                if k == 'row_ror':
                    n = I.mods[k]; idx = (LANES & ~15) | ((LANES - n) & 15)
                elif k == 'row_mirror': idx = (LANES & ~15) | (15 - (LANES & 15))
                elif k == 'row_half_mirror': idx = (LANES & ~7) | (7 - (LANES & 7))
                else: self.err(I, 'dpp')
                a = src[idx].view(np.float32)
                if mn == 'v_mov_b32': return self.vdst(I, o[0], a.copy())
                b = F(I, o[2])
                r = {'v_add_f32': np.add, 'v_max_f32': np.fmax}[mn](a, b)
                return self.vdst(I, o[0], r)
            if mn == 'v_cvt_pk_bf16_f32':
                return self.vdst(I, o[0], bf16_round(F(I, o[1])) | (bf16_round(F(I, o[2])) << 16))
            if mn in ('v_mov_b32', 'v_accvgpr_write_b32', 'v_accvgpr_read_b32', 'v_accvgpr_mov_b32'):
                return self.vdst(I, o[0], V(I, o[1]).copy())
            f2 = {'v_add_f32': np.add, 'v_sub_f32': np.subtract, 'v_mul_f32': np.multiply, 'v_max_f32': np.fmax, 'v_min_f32': np.fmin,
                  'v_subrev_f32': lambda a, b: b - a}
            if mn in f2: return self.vdst(I, o[0], f2[mn](F(I, o[1]), F(I, o[2])))
            if mn == 'v_fma_f32':
                return self.vdst(I, o[0], (F(I, o[1]).astype(np.float64) * F(I, o[2]) + F(I, o[3])).astype(np.float32))
            if mn == 'v_fmac_f32':
                return self.vdst(I, o[0], (F(I, o[1]).astype(np.float64) * F(I, o[2]) + F(I, o[0])).astype(np.float32))
            if mn == 'v_fmaak_f32':
                return self.vdst(I, o[0], (F(I, o[1]).astype(np.float64) * F(I, o[2]) + F(I, o[3])).astype(np.float32))
            if mn == 'v_max3_f32': return self.vdst(I, o[0], np.fmax(np.fmax(F(I, o[1]), F(I, o[2])), F(I, o[3])))
            L = lambda x: V(I, x).astype(np.int64)
            i2 = {'v_add_u32': lambda a, b: a + b, 'v_sub_u32': lambda a, b: a - b, 'v_subrev_u32': lambda a, b: b - a,
                  'v_and_b32': lambda a, b: a & b, 'v_or_b32': lambda a, b: a | b, 'v_xor_b32': lambda a, b: a ^ b,
                  'v_lshlrev_b32': lambda a, b: b << (a & 31), 'v_lshrrev_b32': lambda a, b: b >> (a & 31),
                  'v_mul_u32_u24': lambda a, b: (a & 0xffffff) * (b & 0xffffff), 'v_mul_lo_u32': lambda a, b: (a * b),
                  'v_min_u32': np.minimum, 'v_max_u32': np.maximum}
            if mn in i2: return self.vdst(I, o[0], i2[mn](L(o[1]), L(o[2])))
            i3 = {'v_lshl_add_u32': lambda a, b, c: (a << (b & 31)) + c, 'v_lshl_or_b32': lambda a, b, c: (a << (b & 31)) | c,
                  'v_add_lshl_u32': lambda a, b, c: (a + b) << (c & 31), 'v_and_or_b32': lambda a, b, c: (a & b) | c,
                  'v_mad_u32_u24': lambda a, b, c: (a & 0xffffff) * (b & 0xffffff) + c, 'v_add3_u32': lambda a, b, c: a + b + c,
                  'v_bfe_u32': lambda a, b, c: (a >> (b & 31)) & ((1 << (c & 31)) - 1), 'v_or3_b32': lambda a, b, c: a | b | c,
                  'v_xad_u32': lambda a, b, c: (a ^ b) + c}
            if mn in i3: return self.vdst(I, o[0], i3[mn](L(o[1]), L(o[2]), L(o[3])))
            if mn.startswith('v_cmp_'):
                _, _, op, ty = mn.split('_')
                if ty == 'f32': a, b = F(I, o[1]), F(I, o[2])
                elif ty == 'u32': a, b = L(o[1]), L(o[2])
                else: a, b = V(I, o[1]).view(np.int32), V(I, o[2]).view(np.int32)
                neg = False
                if ty == 'f32' and op in ('nlt', 'nle', 'ngt', 'nge', 'neq'): neg = True; op = op[1:]
                r = {'lt': a < b, 'le': a <= b, 'gt': a > b, 'ge': a >= b, 'eq': a == b, 'ne': a != b}[op]
                if neg: r = ~r
                return self.set_mask(I, o[0], r)
            if mn == 'v_cndmask_b32':
                m = self.get_mask(I, o[3])
                return self.vdst(I, o[0], np.where(m, V(I, o[2]), V(I, o[1])))
            if mn == 'v_readfirstlane_b32':
                self.chk_vread(I, o[1], 'rl')
                m = self.exec_mask()
                l = 0 if m is None or not m.any() else int(np.argmax(m))
                self.sset(I, o[0], int(self.v[o[1].i][l])); self.t_s_valu[o[0].i] = self.t
                return
            if mn in ('v_permlane32_swap_b32', 'v_permlane16_swap_b32'):
                self.chk_vread(I, o[0], 'perm'); self.chk_vread(I, o[1], 'perm')
                a = self.v[o[0].i].copy(); b = self.v[o[1].i].copy()
                if mn == 'v_permlane32_swap_b32':
                    t = a[32:].copy(); a[32:] = b[:32]; b[:32] = t
                else:
                    for r in (0, 32):
                        t = a[r + 16:r + 32].copy(); a[r + 16:r + 32] = b[r:r + 16]; b[r:r + 16] = t
                self.vdst(I, o[0], a); self.vdst(I, o[1], b)
                return
            if mn == 'v_nop': return
        self.err(I, 'unknown valu')
    def salu(self, I):
        mn = I.mn; o = I.ops; S = lambda x: self.sget(I, x)
        if mn == 's_waitcnt':
            if 'vmcnt' in I.mods: self.retire(self.vmq, I.mods['vmcnt'])
            if 'lgkmcnt' in I.mods:
                n = I.mods['lgkmcnt']
                if n > 15: self.err(I, 'lgkmcnt range')
                if self.spend and n != 0: self.err(I, 'counted lgkm with smem pending')
                self.retire(self.lgq, n)
                if n == 0: self.spend = set()
            if I.mods.get('vmcnt', 0) > 63: self.err(I, 'vmcnt range')
            return
        if mn == 's_nop': self.t += o[0].val; return
        if mn == 's_barrier': self.nbar += 1; return True
        if mn == 's_endpgm':
            self.retire(self.vmq, 0); self.retire(self.lgq, 0); self.done = True; return True
        if mn in ('s_setprio', 's_sleep'):
            return
        if mn == 's_branch': self.pc = self.wg.labels[o[0].val]; return
        if mn.startswith('s_cbranch_'):
            k = mn[10:]
            vcc = self.s[106] | self.s[107]; ex = self.s[126] | self.s[127]
            t = {'scc0': not self.scc, 'scc1': self.scc, 'vccz': vcc == 0, 'vccnz': vcc != 0, 'execz': ex == 0, 'execnz': ex != 0}[k]
            if t: self.pc = self.wg.labels[o[0].val]
            return
        if mn.startswith('s_load_dword'):
            addr = self.sget64(I, o[1]) + o[2].val
            b0, a, _ = self.wg.mem.find(addr)
            d = a[addr - b0: addr - b0 + 4 * o[0].n].view(np.uint32)
            for k in range(o[0].n):
                self.s[o[0].i + k] = int(d[k]); self.spend.add(o[0].i + k)
            return
        if mn == 's_getpc_b64': return self.sset64(I, o[0], 0x7777000000)
        if mn in ('s_memtime', 's_memrealtime'): return self.sset64(I, o[0], 1)
        if mn == 's_getreg_b32': return self.sset(I, o[0], 0)
        if mn in ('s_mov_b32', 's_movk_i32'): return self.sset(I, o[0], S(o[1]))
        if mn == 's_mov_b64': return self.sset64(I, o[0], self.sget64(I, o[1]))
        if mn.startswith('s_cmp_'):
            _, _, op, ty = mn.split('_')
            if ty == 'u64': a, b = self.sget64(I, o[0]), self.sget64(I, o[1])
            else: a, b = S(o[0]), S(o[1])
            if ty == 'i32':
                a -= (a >> 31) << 32; b -= (b >> 31) << 32
            self.scc = int({'eq': a == b, 'lg': a != b, 'lt': a < b, 'le': a <= b, 'gt': a > b, 'ge': a >= b}[op]); return
        if mn == 's_bitcmp1_b32': self.scc = (S(o[0]) >> (S(o[1]) & 31)) & 1; return
        if mn == 's_cselect_b32': return self.sset(I, o[0], S(o[1]) if self.scc else S(o[2]))
        if mn == 's_and_saveexec_b64':
            e = self.s[126] | (self.s[127] << 32); m = self.sget64(I, o[1])
            self.sset64(I, o[0], e); e &= m
            self.s[126] = e & 0xffffffff; self.s[127] = e >> 32; self.scc = int(e != 0); return
        if mn in ('s_or_b64', 's_and_b64'):
            a, b = self.sget64(I, o[1]), self.sget64(I, o[2])
            r = a | b if mn == 's_or_b64' else a & b
            self.sset64(I, o[0], r); self.scc = int(r != 0); return
        a, b = S(o[1]), S(o[2])
        if mn == 's_add_u32': r = a + b; self.scc = r >> 32
        elif mn == 's_addc_u32': r = a + b + self.scc; self.scc = r >> 32
        elif mn == 's_sub_u32': r = a - b; self.scc = int(r < 0)
        elif mn == 's_mul_i32': r = a * b
        elif mn == 's_mul_hi_u32': r = (a * b) >> 32
        elif mn == 's_min_u32': r = min(a, b); self.scc = int(a < b)
        elif mn == 's_max_u32': r = max(a, b); self.scc = int(a > b)
        else:
            r = {'s_lshl_b32': a << (b & 31), 's_lshr_b32': a >> (b & 31), 's_and_b32': a & b, 's_or_b32': a | b, 's_xor_b32': a ^ b,
                 's_bfe_u32': (a >> (b & 31)) & ((1 << ((b >> 16) & 127)) - 1)}.get(mn)
            if r is None: self.err(I, 'unknown salu')
            self.scc = int((r & 0xffffffff) != 0)
        self.sset(I, o[0], r)
    def ds(self, I):
        mn = I.mn; o = I.ops; lds = self.wg.lds
        m = self.exec_mask()
        if mn.startswith('ds_read'):
            nb = {'ds_read_b128': 16, 'ds_read_b64': 8, 'ds_read_b64_tr_b16': 8, 'ds_read_b32': 4}[mn]
            self.chk_vread(I, o[1], 'mem')
            addr = self.v[o[1].i].astype(np.int64) + I.mods.get('offset', 0)
            if I.mods.get('offset', 0) > 65535: self.err(I, 'ds offset')
            if (addr % nb).any(): self.err(I, 'unaligned ds')
            g = self.lds_gran(I, addr, nb, m)
            d1 = self.lds_read_chk(I, g)
            if m is not None:
                if mn.endswith('tr_b16'): self.err(I, 'tr under mask')
                addr = np.where(m, addr, 0)
            elif nb >= 8: self.bank_conf(I, addr, 'b128' if nb == 16 else 'b64')
            d = np.ascontiguousarray(lds[addr[:, None] + np.arange(nb)[None, :]])
            if mn.endswith('tr_b16'):
                h = d.view(np.uint16).reshape(4, 4, 16)
                d = np.ascontiguousarray(h.transpose(0, 2, 1)).reshape(64, 4)
            d = d.view(np.uint32).reshape(64, nb // 4)
            self.chk_vwrite(I, o[0], 'load')
            for k in range(nb // 4):
                self.v[o[0].i + k] = d[:, k] if m is None else np.where(m, d[:, k], self.v[o[0].i + k])
            self.lgq.append([d1, self.pend(o[0])])
        elif mn.startswith('ds_write'):
            nb = {'ds_write_b128': 16, 'ds_write_b64': 8, 'ds_write_b32': 4}[mn]
            self.chk_vread(I, o[0], 'mem'); self.chk_vread(I, o[1], 'mem')
            addr = self.v[o[0].i].astype(np.int64) + I.mods.get('offset', 0)
            g = self.lds_gran(I, addr, nb, m)
            d1 = self.lds_write_chk(I, g, False)
            d = np.ascontiguousarray(self.v[o[1].i:o[1].i + nb // 4].T).view(np.uint8)
            sel = slice(None) if m is None else m
            lds[addr[sel][:, None] + np.arange(nb)[None, :]] = d[sel]
            self.lgq.append([d1])
        else: self.err(I, 'unknown ds')
        if len(self.lgq) > 15: self.count['lgkm_overflow'] = self.count.get('lgkm_overflow', 0) + 1
    def vmem(self, I):
        mn = I.mn; o = I.ops
        m = self.exec_mask()
        if I.mods.get('offset', 0) > 4095: self.err(I, 'buffer offset')
        if mn in ('buffer_inv', 'buffer_wbl2'):
            self.vmq.append([]); return
        nb = 4 * {'dword': 1, 'dwordx2': 2, 'dwordx4': 4, 'add': 1}[mn.split('_')[-1]]
        if mn.startswith('buffer_load'):
            if 'lds' in I.mods:
                if self.t - self.t_m0 - 1 < 1: self.err(I, 'm0 -> lds dma hazard')
                if m is not None: self.err(I, 'dma under mask')
                base, off, nrec = self.baddr(I, o[0], o[1], o[2])
                d = self.gather(I, base, off, nrec, nb)
                la = (self.s[124] & 0x3fffc) + I.mods.get('offset', 0) + LANES * nb
                g = self.lds_gran(I, la, nb, None)
                d1 = self.lds_write_chk(I, g, True)
                self.wg.lds[la[0]:la[0] + 64 * nb] = d.view(np.uint8).reshape(-1)
                self.vmq.append([d1])
            else:
                base, off, nrec = self.baddr(I, o[1], o[2], o[3])
                if m is not None: off = np.where(m, off, 0)
                d = self.gather(I, base, off, nrec, nb)
                self.chk_vwrite(I, o[0], 'load')
                for k in range(nb // 4):
                    self.v[o[0].i + k] = d[:, k] if m is None else np.where(m, d[:, k], self.v[o[0].i + k])
                self.vmq.append([self.pend(o[0])])
        else:
            base, off, nrec = self.baddr(I, o[1], o[2], o[3])
            self.chk_vread(I, o[0], 'mem')
            b0, a, name = self.wg.mem.find(base)
            if base - b0 + nrec > len(a): self.err(I, 'SRD range exceeds buffer %s' % name)
            ok = off + nb <= nrec
            if m is not None: ok = ok & m
            elif not ok.all() and nrec: self.err(I, 'OOB store')
            if mn.startswith('buffer_store'):
                d = np.ascontiguousarray(self.v[o[0].i:o[0].i + nb // 4].T).view(np.uint8)
                a[(base - b0 + off[ok])[:, None] + np.arange(nb)[None, :]] = d[ok]
                if nb > 8: self.t_store_r[o[0].i:o[0].i + o[0].n] = self.t
            else:
                w = a.view(np.uint32)
                for l in np.nonzero(ok)[0]:
                    w[(base - b0 + off[l]) // 4] += self.v[o[0].i][l]
            self.vmq.append([])
        if len(self.vmq) > 63: self.count['vm_overflow'] = self.count.get('vm_overflow', 0) + 1
```

```python
import sys, math
from asmlib import *

NAME = 'parallel_sum__compressed_kv_cla__glu_gated_geglu__prompt'
MB = 1 << 20
WS_XN, WS_KV, WS_A3 = 0, 2 * MB, 34 * MB
XN_SZ, KV_SZ, A3_SZ = 2 * MB, 32 * MB, 32 * 184 * 4096
LDS_SZ = 163840
ST = ''

P_X, P_CKV, P_WQ, P_WK, P_WV, P_WO, P_WG, P_WU, P_WD, P_OUT, P_DBG, P_WS = 4, 6, 8, 10, 12, 14, 18, 20, 22, 24, 26, 28

def entry(name, end_label, code_bytes):
    L = [f'.globl {name}', '.p2align 8', f'.type {name},@function', f'{name}:']
    L += ['s_cmp_ge_u32 s2, 256', f's_cbranch_scc1 {end_label}',
          's_load_dwordx16 s[4:19], s[0:1], 0', 's_load_dwordx8 s[20:27], s[0:1], 64', 's_load_dwordx2 s[28:29], s[0:1], 96']
    L += ['s_getpc_b64 s[96:97]', f's_mov_b32 s98, {code_bytes}', 's_mov_b32 s99, 0x20000',
          's_lshr_b32 s30, s2, 3', 's_lshl_b32 s30, s30, 12', 'v_lshl_add_u32 v1, v0, 4, s30',
          'buffer_load_dword v2, v1, s[96:99], 0 offen',
          'v_lshrrev_b32 v1, 6, v0', 'v_and_b32 v0, 63, v0', 'v_readfirstlane_b32 s3, v1',
          's_waitcnt lgkmcnt(0)']
    return L

V_L16 = 1
V_TR = 4
V_WD = 8
V_AD = 12
V_AR = 16
V_T = 20
V_WB = 40
V_ACC = 64
V_R = 128
QSCALE = 0x3e0293ee

def w_dma_voff(dst, stride, tmp):
    L = [f'v_lshrrev_b32 v{tmp}, 3, v0',
         f'v_mul_u32_u24 v{tmp}, {stride}, v{tmp}',
         f'v_bfe_u32 v{tmp+1}, v0, 4, 1',
         f'v_lshlrev_b32 v{tmp+1}, 1, v{tmp+1}',
         f'v_and_b32 v{tmp+2}, 7, v0',
         f'v_xor_b32 v{tmp+1}, v{tmp+1}, v{tmp+2}',
         f'v_xor_b32 v{tmp+2}, 4, v{tmp+1}',
         f'v_lshl_add_u32 v{tmp+1}, v{tmp+1}, 4, v{tmp}',
         f'v_lshl_add_u32 v{tmp+2}, v{tmp+2}, 4, v{tmp}']
    for i in range(4):
        L.append(f'v_add_u32 v{dst+i}, {i * 8 * stride - i * 1024}, v{tmp + 1 + (i & 1)}')
    return L

def tr_addrs(dst, tmp):
    L = [f'v_lshrrev_b32 v{tmp}, 4, v0',
         f'v_bfe_u32 v{tmp+1}, v0, 2, 2',
         f'v_lshl_add_u32 v{tmp+2}, v{tmp}, 3, v{tmp+1}',
         f'v_lshlrev_b32 v{tmp+2}, 7, v{tmp+2}',
         f'v_and_b32 v{tmp+3}, 3, v0',
         f'v_lshl_add_u32 v{tmp+2}, v{tmp+3}, 3, v{tmp+2}',
         f'v_and_b32 v{tmp}, 1, v{tmp}',
         f'v_lshrrev_b32 v{tmp+1}, 1, v{tmp+1}',
         f'v_lshl_or_b32 v{tmp}, v{tmp}, 1, v{tmp+1}']
    for ct in range(4):
        L += [f'v_xor_b32 v{tmp+1}, {ct}, v{tmp}', f'v_lshl_add_u32 v{dst+ct}, v{tmp+1}, 5, v{tmp+2}']
    return L

def areg(ks, rt):
    return A((ks * 4 + rt) * 4, 4)

def rtile(typ, ct, rt, base):
    if typ == 'N':
        return base + ((ct * 2 + rt // 2) * 2 + rt % 2) * 4
    return base + ((rt * 2 + ct // 2) * 2 + ct % 2) * 4
def rbase(p):
    return V_R + 64 * (p % 2)

class Passes:
    def __init__(self, types):
        self.types = types
        mf = []
        for p, typ in enumerate(types):
            for ss in range(8):
                for ct in range(4):
                    n = p * 32 + ss * 4 + ct
                    wb = V_WB + 8 * (n % 3)
                    for rt in range(4):
                        acc = V(V_ACC + (ct * 4 + rt) * 4, 4)
                        for k in range(2):
                            w = V(wb + 4 * k, 4); a = areg(2 * ss + k, rt)
                            c = '0' if (ss == 0 and k == 0) else acc
                            d = V(rtile(typ, ct, rt, rbase(p)), 4) if (ss == 7 and k == 1) else acc
                            mf.append(mfma(d, a, w, c) if typ == 'N' else mfma(d, w, a, c))
        self.sc = Sched(mf)
        self.m0_free = 0
        ng = len(types) * 32
        for n in range(2, ng):
            for i, t in enumerate(self.tr_reads(n)):
                self.sc.put(8 * (n - 2) + i, t)
        for st in range(1, len(types) * 4):
            g = 8 * (8 * (st - 1) + 5)
            self.sc.put(g + 6, f'WAITVM W{st}')
            self.sc.s[g + 6].append('s_waitcnt lgkmcnt(0)')
            self.sc.put(g + 7, 's_barrier')
    def tr_reads(self, n):
        p, ss, ct = n // 32, (n % 32) // 4, n % 4
        wb = V_WB + 8 * (n % 3)
        L = []
        for k in range(2):
            for hf in range(2):
                ks = 2 * ss + k
                if self.types[p] == 'G':
                    ad, off = V_AR + (ct & 1), ks * 4096 + (ct // 2) * 2048 + hf * 256
                else:
                    ad, off = V_TR + ct, ks * 4096 + hf * 512
                L.append(f'ds_read_b64_tr_b16 {V(wb + 4 * k + 2 * hf, 2)}, v{ad} offset:{off}')
        return L
    def dma_group(self, items, lo, vmspace=3):
        g = max(lo, self.m0_free)
        for t in items:
            g = self.sc.place(t, g, vmspace=vmspace) + 1
        self.m0_free = g
        return g

def cvt_pairs(base):
    return [f'v_cvt_pk_bf16_f32 v{base + i}, v{base + 2 * i}, v{base + 2 * i + 1}' for i in range(4)]

def gen_k1(code_bytes):
    nm = 'k1_kernel'
    L = entry(nm, 'K1_END', code_bytes)
    R_X, R_CKV, R_WK, R_WV, R_XN, R_KV = 32, 36, 40, 44, 48, 52
    sH, sRB, sW, sA, sT, sM0W, sM0A, sKVO = 60, 61, 62, 63, 64, 65, 66, 68
    sXO, sXN, sQS = 76, 77, 78
    L += srd(R_X, P_X, P_X + 1, 2 * MB) + srd(R_CKV, P_CKV, P_CKV + 1, 2 * MB)
    L += srd(R_WK, P_WK, P_WK + 1, 4 * MB) + srd(R_WV, P_WV, P_WV + 1, 4 * MB)
    L += srd_off(R_XN, P_WS, P_WS + 1, WS_XN, XN_SZ) + srd_off(R_KV, P_WS, P_WS + 1, WS_KV, KV_SZ)
    L += ['s_lshl_b32 s30, s2, 2', 's_add_u32 s30, s30, s3', f's_lshl_b32 s{sXO}, s30, 11',
          f'v_lshrrev_b32 v{V_T}, 5, v0', f'v_and_b32 v{V_T+1}, 31, v0', f'v_lshlrev_b32 v{V_T+1}, 4, v{V_T+1}',
          f'v_lshl_add_u32 v{V_T+2}, v{V_T}, 10, v{V_T+1}',
          f'buffer_load_dwordx4 {V(V_R, 4)}, v{V_T+2}, {S(R_X,4)}, s{sXO} offen',
          f'buffer_load_dwordx4 {V(V_R+4, 4)}, v{V_T+2}, {S(R_X,4)}, s{sXO} offen offset:512']
    L += ['s_and_b32 s30, s2, 1', 's_lshl_b32 s30, s30, 2', 's_bfe_u32 s31, s2, 0x20003', f's_add_u32 s{sRB}, s30, s31',
          's_bfe_u32 s30, s2, 0x20001', 's_lshl_b32 s30, s30, 3', 's_lshr_b32 s31, s2, 5', f's_add_u32 s{sH}, s30, s31']
    L += [f's_lshl_b32 s30, s{sRB}, 2', 's_add_u32 s30, s30, s3', f's_lshl_b32 s{sA}, s30, 16',
          f's_lshl_b32 s31, s{sH}, 20', 's_lshl_b32 s30, s30, 15', f's_add_u32 s{sKVO}, s30, s31',
          f's_lshl_b32 s30, s3, 18', f's_lshl_b32 s31, s{sH}, 8', f's_add_u32 s{sW}, s30, s31',
          f's_lshl_b32 s{sM0W}, s3, 12', f's_mul_i32 s{sM0A}, s3, 24576', f's_add_u32 s{sM0A}, s{sM0A}, 65536']
    t = V_T + 4
    L += [f'v_lshrrev_b32 v{t}, 3, v0', f'v_lshlrev_b32 v{t}, 10, v{t}',
          f'v_lshrrev_b32 v{t+1}, 4, v0', f'v_and_b32 v{t+2}, 7, v0', f'v_xor_b32 v{t+1}, v{t+1}, v{t+2}', f'v_xor_b32 v{t+2}, 4, v{t+1}',
          f'v_lshl_add_u32 v{t+1}, v{t+1}, 4, v{t}', f'v_lshl_add_u32 v{t+2}, v{t+2}, 4, v{t}']
    for i in range(4):
        L.append(f'v_add_u32 v{V_AD+i}, {i * 8192 - i * 1024}, v{t + 1 + (i & 1)}')
    L += w_dma_voff(V_WD, 8192, t)
    def a_items(c):
        it = []
        for hf in range(2):
            it += [f's_add_u32 m0, s{sM0A}, {(c % 3) * 8192 + hf * 4096}', f's_add_u32 s{sT}, s{sA}, {hf * 32768 + c * 128}']
            it += [f'buffer_load_dwordx4 v{V_AD+i}, {S(R_CKV,4)}, s{sT} offen offset:{i*1024} lds ; @A{c}' for i in range(4)]
        return it
    def w_items(st):
        p, s4 = st // 4, st % 4
        r = R_WK if p < 2 else R_WV
        it = [f's_add_u32 m0, s{sM0W}, {s4 * 16384}', f's_add_u32 s{sT}, s{sW}, {s4 * 128 * 8192 + (p % 2) * 128}']
        it += [f'buffer_load_dwordx4 v{V_WD+i}, {S(r,4)}, s{sT} offen offset:{i*1024} lds ; @W{st}' for i in range(4)]
        return it
    L += a_items(0) + w_items(0) + a_items(1) + w_items(1) + a_items(2) + w_items(2)
    L += [f'v_lshlrev_b32 v{V_L16}, 4, v0', f's_mov_b32 s{sQS}, {QSCALE:#x}']
    for m in range(1, 8):
        L.append(f's_add_u32 s{sKVO+m}, s{sKVO}, {4096*m}')
    L += tr_addrs(V_TR, t)
    L += [f'v_and_b32 v{t}, 15, v0', f'v_lshrrev_b32 v{t+1}, 1, v{t}', f'v_lshrrev_b32 v{t+2}, 4, v0', f'v_xor_b32 v{t+1}, v{t+1}, v{t+2}',
          f'v_lshlrev_b32 v{t}, 7, v{t}', f'v_add_u32 v{t}, s{sM0A}, v{t}',
          f'v_lshl_add_u32 v{V_AR}, v{t+1}, 4, v{t}', f'v_xor_b32 v{V_AR+1}, 64, v{V_AR}']
    X = V_ACC
    for i in range(8):
        L += [f'v_lshlrev_b32 v{X+2*i}, 16, v{V_R+i}', f'v_and_b32 v{X+2*i+1}, 0xffff0000, v{V_R+i}']
    def reduce32(r, tmp):
        o = []
        for n in (8, 4, 2, 1):
            o += ['s_nop 1', f'v_add_f32_dpp v{r}, v{r}, v{r} row_ror:{n} row_mask:0xf bank_mask:0xf']
        o += [f'v_mov_b32 v{tmp}, v{r}', 's_nop 1', f'v_permlane16_swap_b32 v{r}, v{tmp}', f'v_add_f32 v{r}, v{r}, v{tmp}']
        return o
    sm, s2_, tm = t, t + 1, t + 2
    L += [f'v_add_f32 v{sm}, v{X}, v{X+1}', f'v_add_f32 v{s2_}, v{X+2}, v{X+3}']
    for i in range(4, 16, 2):
        L += [f'v_add_f32 v{sm}, v{sm}, v{X+i}', f'v_add_f32 v{s2_}, v{s2_}, v{X+i+1}']
    L += [f'v_add_f32 v{sm}, v{sm}, v{s2_}'] + reduce32(sm, tm)
    L += [f'v_mul_f32 v{sm}, 0x3b000000, v{sm}']
    for i in range(16):
        L.append(f'v_sub_f32 v{X+i}, v{X+i}, v{sm}')
    L += [f'v_mul_f32 v{sm}, v{X}, v{X}', f'v_mul_f32 v{s2_}, v{X+1}, v{X+1}']
    for i in range(2, 16, 2):
        L += [f'v_fmac_f32 v{sm}, v{X+i}, v{X+i}', f'v_fmac_f32 v{s2_}, v{X+i+1}, v{X+i+1}']
    L += [f'v_add_f32 v{sm}, v{sm}, v{s2_}'] + reduce32(sm, tm)
    L += [f'v_mov_b32 v{s2_}, 0x3b000000', f'v_fmaak_f32 v{sm}, v{sm}, v{s2_}, 0x3727c5ac', f'v_rsq_f32 v{sm}, v{sm}', 's_nop 0']
    for i in range(16):
        L.append(f'v_mul_f32 v{X+i}, v{X+i}, v{sm}')
    L += [f'v_cvt_pk_bf16_f32 v{V_R+i}, v{X+2*i}, v{X+2*i+1}' for i in range(8)]
    L += [f'v_lshlrev_b32 v{t}, 3, v{V_T+1}',
          f'v_lshl_add_u32 v{t}, v{V_T}, 4, v{t}', 's_lshl_b32 s30, s3, 5', f'v_add_u32 v{t}, s30, v{t}',
          f'ds_write_b128 v{t}, {V(V_R,4)} offset:49152', f'ds_write_b128 v{t}, {V(V_R+4,4)} offset:{49152+4096}']
    L += ['s_lshr_b32 s30, s2, 2', f's_lshl_b32 s{sXN}, s30, 15', 's_bfe_u32 s30, s2, 0x10001', 's_lshl_b32 s30, s30, 10',
          f's_add_u32 s{sXN}, s{sXN}, s30', 's_and_b32 s30, s2, 1', 's_lshl_b32 s30, s30, 7', f's_add_u32 s{sXN}, s{sXN}, s30',
          's_lshl_b32 s30, s3, 13', f's_add_u32 s{sXN}, s{sXN}, s30', f's_add_u32 s{sXO}, s{sXN}, 4096',
          f'v_bfe_u32 v{t+1}, v0, 3, 2', f'v_and_b32 v{t+2}, 7, v0', f'v_lshlrev_b32 v{t+2}, 4, v{t+2}',
          f'v_lshl_add_u32 v{t+2}, v{t+1}, 8, v{t+2}', f'v_lshl_add_u32 v{t+2}, v{V_T}, 11, v{t+2}',
          's_lshl_b32 s30, s3, 11', f'v_add_u32 v{t+1}, s30, v{V_L16}']
    P = Passes(['T', 'T', 'N', 'N'])
    sc = P.sc
    def a_reads(c):
        return [f'ds_read_b128 {areg(2*c + k, rt)}, v{V_AR + k} offset:{(c % 3) * 8192 + rt * 2048}' for k in range(2) for rt in range(4)]
    L += ['WAITVM W0', 's_waitcnt lgkmcnt(0)', 's_barrier']
    L += a_reads(0) + P.tr_reads(0)
    L += [f'ds_read_b128 {V(V_R,4)}, v{t+1} offset:49152', f'ds_read_b128 {V(V_R+4,4)}, v{t+1} offset:{49152+1024}']
    L += [f'TOUCH {areg(1,3)}'] + P.tr_reads(1)
    ev = []
    ev.append((0, a_items(3), None))
    for c in range(1, 8):
        g0 = 32 * (c - 1)
        sc.put(g0 + 11, f'WAITVM A{c}')
        for i, r in enumerate(a_reads(c)):
            sc.put(g0 + 12 + (i % 4) + 8 * (i // 4), r)
        if c + 3 < 8:
            ev.append((g0 + 29, a_items(c + 3), areg(2 * c + 1, 3)))
    ev.append((48, w_items(3), None))
    for st in range(4, 16):
        ev.append((8 * (8 * (st - 4) + 6), w_items(st), None))
    ev.sort(key=lambda e: e[0])
    sc.put(4, f'buffer_store_dwordx4 {V(V_R,4)}, v{t+2}, {S(R_XN,4)}, s{sXN} offen{ST}')
    sc.put(6, f'buffer_store_dwordx4 {V(V_R+4,4)}, v{t+2}, {S(R_XN,4)}, s{sXO} offen{ST}')
    for g, it, touch in ev:
        if touch: it = [f'TOUCH {touch}'] + it
        P.dma_group(it, g, vmspace=(1 if g < 200 else 3))
    def epi(p):
        fr = []
        for f in range(8):
            b = rbase(p) + 8 * f
            pre = []
            if p < 2:
                rt, p2 = f // 2, f % 2
                m, imm = (rt // 2) * 4 + rt % 2, (2 * p + p2) * 1024
                pre = [f'v_mul_f32 v{b+i}, s{sQS}, v{b+i}' for i in range(8)]
            else:
                ct, q = f // 2, f % 2
                m, imm = q * 4 + 2 + (p - 2), ct * 1024
            fr.append((pre + cvt_pairs(b), f'buffer_store_dwordx4 {V(b,4)}, v{V_L16}, {S(R_KV,4)}, s{sKVO+m} offen offset:{imm}{ST}'))
        return fr
    for p in range(3):
        for f, (cv, stt) in enumerate(epi(p)):
            g = (p + 1) * 256 + 6 + f * 24
            for c in cv: g = sc.place(c, g)
            sc.place(stt, g + 1)
    L += sc.emit()
    L += ['s_nop 7']
    for cv, stt in epi(3):
        L += cv + [stt]
    L += ['K1_END:', 's_endpgm']
    return autowait(L), P.sc.overflow()

V_AV, V_AK, V_LB = 2, 3, 8
V_E = 4
V_NB, V_P, V_NA = 16, 32, 48
V_OB, V_OA = 64, 128
A_QL, A_K, A_V, A_ONE, A_L = 0, 32, 64, 96, 100
RING = 32768
NINF = 0xff800000

def qfrag(X, qs, ds):
    f = ((0 if X == 'A' else 2) + qs) * 2 + ds % 2
    return A(A_QL + 4 * f, 4) if ds < 2 else V(192 + 8 * f, 4)
def stile(buf, kvt, qs):
    return 196 + 8 * (buf * 4 + qs * 2 + kvt)
def otile(X, dt, qs):
    return (V_OA if X == 'A' else V_OB) + ((qs * 4 + dt // 2) * 2 + dt % 2) * 4
def ntile(X, kvt, qs):
    return (V_NA if X == 'A' else V_NB) + (kvt * 2 + qs) * 4
def lacc(X, qs):
    return A_L + (0 if X == 'A' else 8) + 4 * qs

def qk_mfmas(X, buf, czero=False):
    mf = []
    for kvt in range(2):
        for qs in range(2):
            d = V(stile(buf, kvt, qs), 4)
            for ds in range(4):
                c = d if ds else ('0' if czero else V(ntile(X, kvt, qs), 4))
                mf.append(mfma(d, A(A_K + 4 * (kvt * 4 + ds), 4), qfrag(X, qs, ds), c))
    return mf
def pv_mfmas(X, buf, vreg=A_V):
    mf = []
    for qs in range(2):
        l = A(lacc(X, qs), 4)
        mf.append(mfma(l, A(A_ONE, 4), V(V_P + 8 * buf + 4 * qs, 4), l))
    for dt in range(8):
        for qs in range(2):
            o = V(otile(X, dt, qs), 4)
            mf.append(mfma(o, A(vreg + 4 * dt, 4), V(V_P + 8 * buf + 4 * qs, 4), o))
    return mf
def sm_ops(buf):
    ex, cv = [], []
    for i in range(16):
        qs, kvt, r = i // 8, (i // 4) % 2, i % 4
        ex.append(f'v_exp_f32 v{V_E + i % 4}, v{stile(buf, kvt, qs) + r}')
    for c in range(8):
        cv.append(f'v_cvt_pk_bf16_f32 v{V_P + 8 * buf + c}, v{V_E + (2 * c) % 4}, v{V_E + (2 * c + 1) % 4}')
    return ex, cv
def k_reads(ad):
    return [f'ds_read_b128 {A(A_K + 4 * i, 4)}, v{ad} offset:{i * 1024}' for i in range(8)]
def v_reads(dst=A_V):
    return [f'ds_read_b128 {A(dst + 4 * i, 4)}, v{V_AV} offset:{8192 + i * 1024}' for i in range(8)]

def gen_k2(code_bytes):
    nm = 'k2_kernel'
    L = entry(nm, 'K2_END', code_bytes)
    R_XN, R_WQ, R_WG, R_WU, R_KV, R_A3, R_H = 32, 36, 40, 44, 48, 52, 56
    sH, sJ, sQA, sQB, sXA, sXB, sT, sT1, sT2, sM0W, sWQ, sWG = 60, 61, 62, 63, 64, 65, 66, 67, 68, 69, 70, 71
    sHA, sHB, sCA, sCB, sSRC, sSLOT, sM0R, sM0B, sCNT, sNINF, sTHR = 72, 73, 74, 75, 76, 77, 78, 79, 80, 81, 82
    sMASK, sFLAG = 84, 92
    L += ['s_and_b32 s30, s2, 7', 's_lshl_b32 s30, s30, 2', 's_bfe_u32 s31, s2, 0x20003', f's_add_u32 s{sH}, s30, s31',
          f's_lshr_b32 s{sJ}, s2, 5', f's_lshl_b32 s30, s{sJ}, 2', f's_add_u32 s{sQB}, s30, s3',
          's_sub_u32 s31, 60, s30', f's_add_u32 s{sQA}, s31, s3',
          f's_lshl_b32 s{sXA}, s{sQA}, 15', f's_lshl_b32 s{sXB}, s{sQB}, 15', f'v_lshlrev_b32 v{V_L16}, 4, v0']
    L += srd_off(R_XN, P_WS, P_WS + 1, WS_XN, XN_SZ)
    def x_items(ss):
        it = [f's_add_u32 s{sT1}, s{sXA}, {ss * 4096}', f's_add_u32 s{sT2}, s{sXB}, {ss * 4096}']
        for k in range(2):
            for rt in range(4):
                it.append(f'buffer_load_dwordx4 {areg(2 * ss + k, rt)}, v{V_L16}, {S(R_XN,4)}, s{sT1 if rt < 2 else sT2} offen offset:{k * 2048 + (rt % 2) * 1024}')
        return it
    L += x_items(0)
    L += srd(R_WQ, P_WQ, P_WQ + 1, 4 * MB) + srd(R_WG, P_WG, P_WG + 1, 512 * 3584) + srd(R_WU, P_WU, P_WU + 1, 512 * 3584)
    t = V_T
    L += [f's_lshl_b32 s30, s3, 18', f's_lshl_b32 s31, s{sH}, 8', f's_add_u32 s{sWQ}, s30, s31',
          f's_min_u32 s31, s{sH}, 27', 's_lshl_b32 s31, s31, 7', f's_mul_i32 s30, s3, {32 * 3584}', f's_add_u32 s{sWG}, s30, s31',
          f's_lshl_b32 s{sM0W}, s3, 12']
    L += [f'v_lshrrev_b32 v{t}, 2, v0', f'v_mul_u32_u24 v{t}, 3584, v{t}', f'v_lshrrev_b32 v{t+1}, 4, v0', f'v_and_b32 v{t+1}, 2, v{t+1}',
          f'v_and_b32 v{t+2}, 3, v0', f'v_xor_b32 v{t+1}, v{t+1}, v{t+2}', f'v_lshl_add_u32 v{V_AD}, v{t+1}, 4, v{t}',
          f'v_add_u32 v{V_AD+1}, {16 * 3584 - 1024}, v{V_AD}']
    def w_items(st):
        p, s4 = st // 4, st % 4
        if p < 2:
            it = [f's_add_u32 m0, s{sM0W}, {s4 * 16384}', f's_add_u32 s{sT}, s{sWG}, {s4 * 128 * 3584 + p * 64}']
            it += [f'buffer_load_dwordx4 v{V_AD+i}, {S(R_WG,4)}, s{sT} offen offset:{i*1024} lds ; @W{st}' for i in range(2)]
            it += [f's_add_u32 m0, s{sM0W}, {s4 * 16384 + 2048}', 's_nop 0']
            it += [f'buffer_load_dwordx4 v{V_AD+i}, {S(R_WU,4)}, s{sT} offen offset:{i*1024} lds ; @W{st}' for i in range(2)]
        else:
            it = [f's_add_u32 m0, s{sM0W}, {s4 * 16384}', f's_add_u32 s{sT}, s{sWQ}, {s4 * 128 * 8192 + (p % 2) * 128}']
            it += [f'buffer_load_dwordx4 v{V_WD+i}, {S(R_WQ,4)}, s{sT} offen offset:{i*1024} lds ; @W{st}' for i in range(4)]
        return it
    L += w_items(0) + x_items(1) + w_items(1) + x_items(2) + x_items(3) + w_items(2) + x_items(4) + w_items(3)
    L += w_dma_voff(V_WD, 8192, t) + tr_addrs(V_TR, t)
    L += [f'v_lshrrev_b32 v{t}, 4, v0', f'v_bfe_u32 v{t+1}, v0, 2, 2', f'v_lshl_add_u32 v{t+1}, v{t}, 3, v{t+1}', f'v_lshlrev_b32 v{t+1}, 6, v{t+1}',
          f'v_and_b32 v{t+2}, 3, v0', f'v_lshl_add_u32 v{t+1}, v{t+2}, 3, v{t+1}', f'v_and_b32 v{t}, 1, v{t}',
          f'v_lshl_add_u32 v{V_AR}, v{t}, 5, v{t+1}', f'v_xor_b32 v{V_AR+1}, 32, v{V_AR}']
    L += [f's_lshl_b32 s30, s{sH}, 20', f's_add_u32 s30, s30, {WS_KV:#x}', f's_add_u32 s{R_KV}, s{P_WS}, s30', f's_addc_u32 s{R_KV+1}, s{P_WS+1}, 0',
          f's_lshl_b32 s30, s{sJ}, 16', f's_sub_u32 s{R_KV+2}, 0x100000, s30', f's_mov_b32 s{R_KV+3}, 0x20000']
    L += srd_off(R_A3, P_WS, P_WS + 1, WS_A3, A3_SZ) + srd_off(R_H, P_WS, P_WS + 1, WS_A3, A3_SZ)
    L += [f's_cmp_lt_u32 s{sH}, 28', f's_cselect_b32 s{R_H+2}, s{R_H+2}, 0']
    for q, hh, cc in ((sQA, sHA, sCA), (sQB, sHB, sCB)):
        L += [f's_lshr_b32 s30, s{q}, 1', f's_mul_i32 s30, s30, {184 * 4096}', f's_and_b32 s31, s{q}, 1', 's_lshl_b32 s31, s31, 11',
              's_add_u32 s30, s30, s31', f's_min_u32 s31, s{sH}, 27', 's_lshl_b32 s31, s31, 13', f's_add_u32 s{hh}, s30, s31',
              f's_lshl_b32 s31, s{sH}, 14', 's_add_u32 s30, s30, s31', f's_add_u32 s{cc}, s30, {56 * 4096}']
    L += ['s_cmp_lt_u32 s3, 2', 's_cselect_b32 s30, 0xc000, 0', f's_add_u32 s{sSRC}, s30, s{sM0W}', f's_add_u32 s{sM0B}, s{sM0W}, {RING}',
          f's_mov_b32 s{sNINF}, {NINF:#x}', f's_mov_b32 s{sTHR}, 0x53800000', f's_mov_b64 s[{sFLAG}:{sFLAG+1}], 0']
    L += [f'v_lshrrev_b32 v{t}, 4, v0', f'v_lshlrev_b32 v{t}, 2, v{t}', f'v_and_b32 v{t+1}, 15, v0']
    for i in range(4):
        L += [f'v_add_u32 v{t+2}, {i}, v{t}', f'v_cmp_gt_u32 s[{sMASK+2*i}:{sMASK+2*i+1}], v{t+2}, v{t+1}']
    V_C2 = 3
    L += [f'v_mov_b32 v{V_C2}, 0xbdd2d3e8']
    P = Passes(['G', 'G', 'T', 'T'])
    sc = P.sc
    L += ['WAITVM W0', 's_barrier'] + P.tr_reads(0) + P.tr_reads(1)
    def kv_items(i):
        so = i * 16384
        it = [f's_add_u32 m0, s{sM0B}, {((i + 5) % 8) * 16384}']
        if i >= 0: it += [f's_add_u32 s{sT}, s{sSRC}, {so}']
        else: it += [f's_add_u32 s{sT}, s{sM0W}, {(i + 3) * 16384}']
        it += [f'buffer_load_dwordx4 v{V_L16}, {S(R_KV,4)}, s{sT} offen offset:{k*1024} lds ; @KV{i}' for k in range(4)]
        return it
    ev = [(8 + 32 * (ss - 5), x_items(ss)) for ss in range(5, 8)]
    for st in range(4, 16):
        ev.append((8 * (8 * (st - 4) + 6), [x for x in w_items(st) if x != 's_nop 0']))
    for i in range(-3, 3):
        ev.append((768 + 8 + 24 * (i + 3), kv_items(i)))
    ev.append((8 * (8 * 14 + 6), kv_items(3)))
    ev.sort(key=lambda e: e[0])
    for g, it in ev:
        P.dma_group(it, g, vmspace=(1 if g < 120 else 3))
    sc.s[8 * (8 * 14 + 5) + 6].insert(0, 'WAITVM KV-2')
    for i, r in enumerate(k_reads(V_AV)):
        sc.put(1024 - 16 + i, r)
    gp = 256 + 6
    ne = 0
    for p in range(2):
        gp = max(gp, (p + 1) * 256 + 6)
        for rt in range(4):
            bg = rbase(p) + (rt * 2) * 8; bu = bg + 8
            last = 0
            for e in range(8):
                tm = V_T + ne % 8; ne += 1
                ops = [f'v_mul_f32 v{tm}, v{bg+e}, v{bg+e}', f'v_fmaak_f32 v{tm}, v{tm}, v{V_C2}, 0xc0135761', f'v_mul_f32 v{tm}, v{tm}, v{bg+e}',
                       f'v_exp_f32 v{tm}, v{tm}', f'v_add_f32 v{tm}, 1.0, v{tm}', f'v_rcp_f32 v{tm}, v{tm}',
                       f'v_mul_f32 v{tm}, v{tm}, v{bg+e}', f'v_mul_f32 v{bu+e}, v{tm}, v{bu+e}']
                g = gp
                for o in ops: g = sc.place(o, g) + 1
                last = max(last, g)
                gp += 9
            g = last
            for c in cvt_pairs(bu): g = sc.place(c, g)
            sreg = sHA if rt < 2 else sHB
            if p == 1 and rt % 2 == 0:
                sc.place(f's_add_u32 s{sreg}, s{sreg}, 4096', g - 8, g)
            g = sc.place(f'buffer_store_dwordx4 {V(bu,4)}, v{V_L16}, {S(R_H,4)}, s{sreg} offen offset:{(rt % 2) * 1024}{ST}', g + 1)
            assert g < (p + 2) * 256 + 220, g
    g = 768 + 34
    for f in range(8):
        b = rbase(2) + 8 * f
        for c in cvt_pairs(b): g = sc.place(c, g)
        g += 1
        for i in range(4): g = sc.place(f'v_accvgpr_write_b32 a{A_QL + 4 * f + i}, v{b + i}', g)
        g += 1
        for i in range(8): sc.place(f'v_mov_b32 v{b + i}, 0', g)
    g = 768 + 130
    g = sc.place(f'v_mov_b32 v{V_T+8}, 0x3f803f80', g) + 1
    for i in range(4): g = sc.place(f'v_accvgpr_write_b32 a{A_ONE + i}, v{V_T+8}', g)
    for i in range(16): g = sc.place(f'v_accvgpr_write_b32 a{A_L + i}, 0', g)
    sc.place(f'v_add_u32 v{V_AV}, {RING + 2 * 16384}, v{V_L16}', 768 + 130, 1000)
    L += sc.emit()
    ov = sc.overflow()
    L += ['s_barrier', f'v_add_u32 v{V_LB}, {RING}, v{V_L16}', f'v_add_u32 v{V_AK}, {RING + 3 * 16384}, v{V_L16}']
    L += [f'v_mov_b32 v{V_NB + i}, 0' for i in range(16)]
    def mask_ops(X):
        o = [f'v_mov_b32 v{ntile(X,1,0) + i}, s{sNINF}' for i in range(4)]
        for kq in range(2):
            o += [f'v_cndmask_b32 v{ntile(X,kq,kq) + i}, v{ntile(X,kq,kq) + i}, v{ntile(X,1,0)}, s[{sMASK+2*i}:{sMASK+2*i+1}]' for i in range(4)]
        return o
    L += [f's_cmp_lg_u32 s{sQB}, 0', 's_cbranch_scc1 K2_NM0'] + mask_ops('B') + ['K2_NM0:']
    for f in range(4): L += cvt_pairs(192 + 8 * f)
    L += ['s_nop 0']
    ps = Sched(qk_mfmas('A', 0, True) + qk_mfmas('B', 1))
    g = 0
    for f in range(4, 8):
        for c in cvt_pairs(192 + 8 * f): g = ps.place(c, g)
    g = 0
    for x in kv_items(4): g = ps.place(x, g) + 1
    for i, r in enumerate(k_reads(V_AK)[:4]): ps.place(r, 24 + i)
    zero = [f'v_mov_b32 v{V_OB + i}, 0' for i in range(64)]
    while zero and ps.place(zero[0], 0, force=False) is not None: zero.pop(0)
    L += ps.emit() + k_reads(V_AK)[4:] + zero
    def rowmax(X, buf):
        o = []
        m = [9, 10]; tm = [11, 12]
        for qs in range(2):
            a, b = stile(buf, 0, qs), stile(buf, 1, qs)
            o += [f'v_max3_f32 v{m[qs]}, v{a}, v{a+1}, v{a+2}', f'v_max3_f32 v{tm[qs]}, v{a+3}, v{b}, v{b+1}',
                  f'v_max3_f32 v{m[qs]}, v{m[qs]}, v{b+2}, v{b+3}', f'v_max_f32 v{m[qs]}, v{m[qs]}, v{tm[qs]}']
        for sw in ('v_permlane16_swap_b32', 'v_permlane32_swap_b32'):
            o += [f'v_mov_b32 v{tm[qs]}, v{m[qs]}' for qs in range(2)] + ['s_nop 0']
            o += [f'{sw} v{m[qs]}, v{tm[qs]}' for qs in range(2)]
            o += [f'v_max_f32 v{m[qs]}, v{m[qs]}, v{tm[qs]}' for qs in range(2)]
        for qs in range(2):
            for kvt in range(2):
                o += [f'v_sub_f32 v{stile(buf,kvt,qs)+i}, v{stile(buf,kvt,qs)+i}, v{m[qs]}' for i in range(4)]
                o += [f'v_sub_f32 v{ntile(X,kvt,qs)+i}, 0, v{m[qs]}' for i in range(4)]
        return o
    L += rowmax('A', 0)
    ex, cv = sm_ops(0)
    for c in range(8):
        L += ex[2 * c:2 * c + 2]
        if c: L.append(cv[c - 1])
    L += rowmax('B', 1) + [cv[7]]
    L += [f's_mov_b32 s{sSLOT}, {5 * 16384}', f's_mov_b32 s{sM0R}, {2 * 16384}', f's_add_u32 s{sSRC}, s{sSRC}, {5 * 16384}',
          f'v_add_u32 v{V_AV}, {5 * 16384}, v{V_LB}', f'v_add_u32 v{V_AK}, {4 * 16384}, v{V_LB}',
          f's_mov_b32 s{sCNT}, s{sQB}', 'WAITVM KV0', 's_waitcnt lgkmcnt(0)']
    L = autowait(L)
    def step(qk, pv, buf, first, last, rdK, mask=None, loop=None, prevK=True):
        s_ = Sched(qk_mfmas(qk, 1 - buf) + pv_mfmas(pv, 1 - buf))
        ex, cv = sm_ops(buf)
        for i, e in enumerate(ex): s_.put(2 * i, e)
        if first:
            s_.put(0, 's_barrier')
            for i, r in enumerate(v_reads()): s_.put(1 + 2 * i, r)
            s_.put(1, f's_add_u32 m0, s{sM0B}, s{sM0R}')
            s_.put(2, f's_add_u32 s{sM0R}, s{sM0R}, 16384'); s_.put(3, f's_and_b32 s{sM0R}, s{sM0R}, 0x1ffff')
            for k in range(4):
                s_.put(5 + 8 * k, f'buffer_load_dwordx4 v{V_L16}, {S(R_KV,4)}, s{sSRC} offen offset:{k*1024} lds')
            s_.put(30, f's_add_u32 s{sSRC}, s{sSRC}, 16384')
            s_.put(17, 's_waitcnt lgkmcnt(4)')
            s_.put(25, f's_waitcnt lgkmcnt({4 if rdK else 0})')
        if prevK: s_.put(7, f's_waitcnt lgkmcnt({3 if first else 0})')
        if rdK:
            for i, r in enumerate(k_reads(rdK)): s_.put(17 + 2 * i, r)
        for c, x in enumerate(cv): s_.put(4 * c + 3, x)
        w = []
        if last:
            s_.put(27, f's_add_u32 s{sSLOT}, s{sSLOT}, 16384'); s_.put(28, f's_and_b32 s{sSLOT}, s{sSLOT}, 0x1ffff')
            s_.put(32, f'v_mov_b32 v{V_AK}, v{V_AV}'); s_.put(32, f'v_add_u32 v{V_AV}, s{sSLOT}, v{V_LB}')
            w.append('vmcnt(16)')
        if rdK: w.append('lgkmcnt(4)')
        if w: s_.put(33, 's_waitcnt ' + ' '.join(w))
        if mask:
            s_.put(19, f's_cmp_eq_u32 s{sCNT}, 1'); s_.put(20, f's_cbranch_scc1 {mask}'); s_.s[20].append(f'{mask}_RET:')
        if loop:
            s_.put(31, f's_sub_u32 s{sCNT}, s{sCNT}, 1'); s_.put(32, f's_cmp_lg_u32 s{sCNT}, 0')
            s_.s[33].append(f's_cbranch_scc1 {loop}')
        return s_.emit()
    def epilogue(X, sC):
        o = []
        r = [9, 10]
        for qs in range(2): o.append(f'v_accvgpr_read_b32 v{r[qs]}, a{lacc(X, qs)}')
        o += [f'v_max_f32 v11, v{r[0]}, v{r[1]}', f'v_add_f32 v11, v{r[0]}, v{r[1]}', f'v_cmp_ngt_f32 vcc, s{sTHR}, v11']
        o += [f'v_rcp_f32 v{r[qs]}, v{r[qs]}' for qs in range(2)]
        o += [f's_or_b64 s[{sFLAG}:{sFLAG+1}], s[{sFLAG}:{sFLAG+1}], vcc']
        for p in range(4):
            o.append(f's_add_u32 s{sT}, s{sC}, {p * 4096}')
            for qs in range(2):
                b = otile(X, 2 * p, qs)
                o += [f'v_mul_f32 v{b+i}, v{b+i}, v{r[qs]}' for i in range(8)] + cvt_pairs(b)
                o.append(f'buffer_store_dwordx4 {V(b,4)}, v{V_L16}, {S(R_A3,4)}, s{sT} offen offset:{qs * 1024}{ST}')
        return o
    L += [f's_cmp_eq_u32 s{sCNT}, 0', 's_cbranch_scc1 K2_TB', '.p2align 3', 'K2_DUAL:']
    L += step('A', 'A', 1, True, False, None, mask='K2_MB')
    L += step('B', 'B', 0, False, True, V_AK, loop='K2_DUAL', prevK=False)
    L += ['K2_TB:']
    L += step('A', 'A', 1, True, False, V_AK)
    L += step('A', 'B', 0, False, True, V_AV)
    L += [f's_lshl_b32 s30, s{sJ}, 2', f's_sub_u32 s{sCNT}, 29, s30']
    L += epilogue('B', sCB)
    L += ['.p2align 3', 'K2_SINGLE:']
    L += step('A', 'A', 1, True, True, V_AV, mask='K2_MA')
    L += step('A', 'A', 0, True, True, V_AV, loop='K2_SINGLE')
    L += ['s_barrier'] + v_reads()
    ex, cv = sm_ops(1)
    L += ex[0:4] + cv[0:2]
    f1 = Sched(pv_mfmas('A', 0))
    f1.put(1, 's_waitcnt lgkmcnt(4)'); f1.put(9, 's_waitcnt lgkmcnt(0)')
    g = 0
    for c in range(2, 8):
        f1.put(g, ex[2 * c]); f1.put(g + 1, ex[2 * c + 1]); f1.put(g + 2, cv[c]); g += 3
    f1.put(12, f's_add_u32 s{sSLOT}, s{sSLOT}, 16384'); f1.put(13, f's_and_b32 s{sSLOT}, s{sSLOT}, 0x1ffff')
    f1.put(14, f'v_add_u32 v{V_AV}, s{sSLOT}, v{V_LB}')
    f1.put(15, 's_waitcnt vmcnt(12)'); f1.put(16, 's_barrier')
    L += f1.emit() + v_reads(A_K)
    f2 = Sched(pv_mfmas('A', 1, A_K))
    for dt in range(8): f2.put(1 + 2 * dt, f's_waitcnt lgkmcnt({7 - dt})')
    L += f2.emit()
    L += ['s_waitcnt vmcnt(0)', f's_sub_u32 s{sCNT}, 3, s3', 'K2_XB:', f's_cmp_eq_u32 s{sCNT}, 0', 's_cbranch_scc1 K2_XBD',
          's_barrier', f's_sub_u32 s{sCNT}, s{sCNT}, 1', 's_branch K2_XB', 'K2_XBD:']
    L += epilogue('A', sCA)
    L += ['K2_END:', 's_endpgm']
    L += ['K2_MB:'] + mask_ops('B') + ['s_branch K2_MB_RET']
    L += ['K2_MA:'] + mask_ops('A') + ['s_branch K2_MA_RET']
    return L, ov

def gen_k3(code_bytes):
    nm = 'k3_kernel'
    L = entry(nm, 'K3_END', code_bytes)
    R_A3, R_WD, R_WO, R_X, R_OUT = 32, 36, 40, 44, 48
    sRB, sCB, sAH, sAC, sWD, sWO, sM0, sT, sT1, sO = 60, 61, 62, 63, 64, 65, 66, 67, 68, 69
    V_XR, V_OA_, V_WB3, V_AC3 = 24, 12, 64, 128
    L += srd_off(R_A3, P_WS, P_WS + 1, WS_A3, A3_SZ) + srd(R_WD, P_WD, P_WD + 1, 1792 * 1024) + srd(R_WO, P_WO, P_WO + 1, 4 * MB)
    L += ['s_and_b32 s30, s2, 7', 's_lshl_b32 s30, s30, 2', 's_bfe_u32 s31, s2, 0x20003', f's_add_u32 s{sRB}, s30, s31', f's_lshr_b32 s{sCB}, s2, 5',
          f's_mul_i32 s30, s{sRB}, {184 * 4096}', f's_mul_i32 s31, s3, {14 * 4096}', f's_add_u32 s{sAH}, s30, s31',
          's_lshl_b32 s31, s3, 17', 's_add_u32 s30, s30, s31', f's_add_u32 s{sAC}, s30, {56 * 4096}',
          f's_lshl_b32 s30, s{sCB}, 7', f's_mul_i32 s31, s3, {14 * 32768}', f's_add_u32 s{sWD}, s30, s31',
          's_lshl_b32 s31, s3, 20', f's_add_u32 s{sWO}, s30, s31', f's_mul_i32 s{sM0}, s3, 40960',
          f'v_lshlrev_b32 v{V_L16}, 4, v0']
    t = 16
    L += [f'v_lshrrev_b32 v{t}, 3, v0', f'v_lshlrev_b32 v{t}, 10, v{t}', f'v_lshrrev_b32 v{t+1}, 4, v0', f'v_lshlrev_b32 v{t+1}, 1, v{t+1}',
          f'v_and_b32 v{t+2}, 7, v0', f'v_xor_b32 v{t+1}, v{t+1}, v{t+2}', f'v_lshl_add_u32 v{V_WD}, v{t+1}, 4, v{t}',
          f'v_lshl_add_u32 v{V_OA_}, v{t+2}, 4, v{t}']
    for i in range(1, 4):
        L.append(f'v_add_u32 v{V_WD+i}, {i * 7168}, v{V_WD}')
    NSS = 23
    def w_items(ss):
        it = []
        for k in range(2):
            r, base, ks = (R_WD, sWD, 2 * ss + k) if ss < 7 else (R_WO, sWO, 2 * (ss - 7) + k)
            it += [f's_add_u32 m0, s{sM0}, {(ss % 5) * 8192 + k * 4096}', f's_add_u32 s{sT}, s{base}, {ks * 32768}']
            it += [f'buffer_load_dwordx4 v{V_WD+i}, {S(r,4)}, s{sT} offen offset:{i*1024} lds ; @W{ss}' for i in range(4)]
        return it
    def af(ss, k, rt):
        return A((ss % 4) * 32 + (k * 4 + rt) * 4, 4)
    def a_items(ss):
        it = []
        for k in range(2):
            base, ks = (sAH, 2 * ss + k) if ss < 7 else (sAC, 2 * (ss - 7) + k)
            it += [f's_add_u32 s{sT1}, s{base}, {ks * 4096}']
            it += [f'buffer_load_dwordx4 {af(ss, k, rt)}, v{V_L16}, {S(R_A3,4)}, s{sT1} offen offset:{rt*1024}' for rt in range(4)]
        return it
    L += w_items(0) + a_items(0) + w_items(1) + a_items(1) + w_items(2) + a_items(2) + w_items(3)
    L += srd(R_X, P_X, P_X + 1, 2 * MB) + srd(R_OUT, P_OUT, P_OUT + 1, 2 * MB)
    L += [f's_lshl_b32 s30, s{sRB}, 2', 's_add_u32 s30, s30, s3', 's_lshl_b32 s30, s30, 14', f's_lshl_b32 s31, s{sCB}, 7', f's_add_u32 s{sO}, s30, s31',
          f's_add_u32 s{sO+1}, s{sO}, 8192']
    L += [f'v_lshrrev_b32 v{t}, 2, v0', f'v_bfe_u32 v{t+1}, v0, 3, 2', f'v_lshlrev_b32 v{t}, 7, v{t}', f'v_and_b32 v{t+2}, 3, v0',
          f'v_lshl_add_u32 v{t}, v{t+2}, 3, v{t}', f'v_add_u32 v{t}, s{sM0}, v{t}']
    for ct in range(4):
        L += [f'v_xor_b32 v{t+2}, {ct}, v{t+1}', f'v_lshl_add_u32 v{V_TR+ct}, v{t+2}, 5, v{t}']
    def wf(ss, ct, k):
        return V_WB3 + (ss % 2) * 32 + (ct * 2 + k) * 4
    def tr_reads(ss):
        return [f'ds_read_b64_tr_b16 {V(wf(ss, ct, k) + 2 * hf, 2)}, v{V_TR+ct} offset:{(ss % 5) * 8192 + k * 4096 + hf * 2048}'
                for ct in range(4) for k in range(2) for hf in range(2)]
    L += ['WAITVM W0'] + tr_reads(0)
    mf = []
    for ss in range(NSS):
        for ct in range(4):
            for rt in range(4):
                acc = V(V_AC3 + (rt * 4 + ct) * 4, 4)
                for k in range(2):
                    mf.append(mfma(acc, V(wf(ss, ct, k), 4), af(ss, k, rt), '0' if (ss == 0 and k == 0) else acc))
    sc = Sched(mf)
    for ss in range(NSS):
        g0 = 32 * ss
        if ss + 1 < NSS:
            sc.put(g0, f'WAITVM W{ss+1}')
            for i, r in enumerate(tr_reads(ss + 1)): sc.put(g0 + 2 * i + 1, r)
        it = (w_items(ss + 4) if ss + 4 < NSS else []) + (a_items(ss + 3) if ss + 3 < NSS else [])
        g = g0 + 1
        for x in it:
            g = sc.place(x, g, vmspace=0) + 1
            if kind_of(x) == 'm' and x.endswith(('1024', '1024 lds ; @W%d' % (ss + 4))): g += 1
        assert g <= g0 + 33, (ss, g)
    g0 = 32 * 20
    sc.put(g0 + 2, f'buffer_load_dwordx4 {V(V_XR,4)}, v{V_OA_}, {S(R_X,4)}, s{sO} offen')
    sc.put(g0 + 6, f'buffer_load_dwordx4 {V(V_XR+4,4)}, v{V_OA_}, {S(R_X,4)}, s{sO+1} offen')
    red = [f'v_lshrrev_b32 v{t}, 4, v0', f'v_mul_u32_u24 v{t}, 288, v{t}', f'v_and_b32 v{t+1}, 15, v0', f'v_lshl_add_u32 v{t}, v{t+1}, 4, v{t}',
           f'v_add_u32 v{t}, s{sM0}, v{t}',
           f'v_and_b32 v{t+1}, 7, v0', f'v_mul_u32_u24 v{t+1}, 576, v{t+1}', f'v_lshrrev_b32 v{t+2}, 3, v0', f'v_lshl_add_u32 v{t+1}, v{t+2}, 4, v{t+1}',
           f's_mul_i32 s30, s3, 4608', f'v_add_u32 v{t+1}, s30, v{t+1}', f'v_add_u32 v{t+2}, 81920, v{t+1}']
    g = 32 * 21
    for x in red: g = sc.place(x, g) + 1
    L += sc.emit()
    L += ['s_nop 4']
    order = [(rt, ct) for ct in range(4) for rt in range(4)]
    L += [f'ds_write_b128 v{t}, {V(V_AC3 + (rt * 4 + ct) * 4, 4)} offset:{(rt * 4 + ct) * 1152}' for rt, ct in order]
    X = 32
    for i in range(8):
        L += [f'v_lshlrev_b32 v{X+2*i}, 16, v{V_XR+i}', f'v_and_b32 v{X+2*i+1}, 0xffff0000, v{V_XR+i}']
    L += ['s_waitcnt lgkmcnt(0)', 's_barrier']
    for s_ in range(2):
        for src in range(4):
            for gg in range(2):
                L.append(f'ds_read_b128 {V(64 + ((s_ * 4 + src) * 2 + gg) * 4, 4)}, v{t + 1 + src // 2} offset:{(src % 2) * 40960 + gg * 288 + s_ * 128}')
    for s_ in range(2):
        b = 64 + s_ * 32
        for i in range(8):
            L += [f'v_add_f32 v{b+i}, v{b+i}, v{b+8+i}']
        for i in range(8):
            L += [f'v_add_f32 v{b+16+i}, v{b+16+i}, v{b+24+i}']
        for i in range(8):
            L += [f'v_add_f32 v{b+i}, v{b+i}, v{b+16+i}']
        for i in range(8):
            L += [f'v_add_f32 v{b+i}, v{b+i}, v{X+8*s_+i}']
        L += cvt_pairs(b)
        L += [f'buffer_store_dwordx4 {V(b,4)}, v{V_OA_}, {S(R_OUT,4)}, s{sO+s_} offen']
    L += ['K3_END:', 's_endpgm']
    return autowait(L), sc.overflow()

def build(kernels):
    hdr = open('cdna_kernels/' + NAME + '.s.ref').read().split('; Override launch')[0]
    out = hdr
    for k, _ in kernels:
        out += f'; @launch kernel={k} grid=(256,1,1) block=(256,1,1) lds={LDS_SZ}\n'
    out += '.amdgcn_target "amdgcn-amd-amdhsa--gfx950"\n.text\n'
    for k, lines in kernels:
        out += fmt(lines) + '\n'
    out += '.section .rodata,"a"\n'
    for k, _ in kernels:
        out += '.p2align 6\n' + kdesc(k) + '\n'
    return out

def sizes(path):
    import subprocess
    subprocess.run(['clang', '-x', 'assembler', '-target', 'amdgcn-amd-amdhsa', '-mcpu=gfx950', '-c', path, '-o', '_gen.o'], check=True)
    o = subprocess.run(['llvm-objdump', '-t', '_gen.o'], capture_output=True, text=True).stdout
    sym = {l.split()[-1]: int(l.split()[0], 16) for l in o.splitlines() if '.text' in l and len(l.split()) >= 5}
    return sym

if __name__ == '__main__':
    path = sys.argv[1] if len(sys.argv) > 1 else 'out.s'
    gens = [('k1_kernel', gen_k1, 'K1_END'), ('k2_kernel', gen_k2, 'K2_END'), ('k3_kernel', gen_k3, 'K3_END')]
    cb = {k: 4096 for k, _, _ in gens}
    for it in range(2):
        ks = []
        for k, f, e in gens:
            lines, ov = f(cb[k])
            ks.append((k, lines))
            if it: print(k, 'overflow', ov, 'lines', len(lines), 'bytes', cb[k], file=sys.stderr)
        open(path, 'w').write(build(ks))
        sym = sizes(path)
        cb = {k: (sym[e] - sym[k] - 64) & ~63 for k, _, e in gens}
```

```python
import re, math
import numpy as np

U32 = np.uint32
LANES = np.arange(64, dtype=np.int64)

class EmuError(Exception):
    pass

def bf16_round(f):
    u = np.ascontiguousarray(f, dtype=np.float32).view(np.uint32)
    r = ((u.astype(np.uint64) + 0x7fff + ((u >> 16) & 1)) >> 16).astype(np.uint32) & 0xffff
    nan = np.isnan(f)
    if nan.any():
        r = np.where(nan, 0x7fc0, r)
    return r.astype(np.uint32)

def f2u(x):
    return int(np.float32(x).view(np.uint32))

class Mem:
    def __init__(self):
        self.bufs = []
        self.next = 0x100000000
        self.frozen = []
        self.log = []
        self.written = {}
    def add(self, arr, name):
        a = np.ascontiguousarray(arr).view(np.uint8).reshape(-1)
        base = self.next
        self.bufs.append((base, a, name))
        self.next += (len(a) + 0xfffff + 0x200000) & ~0xfffff
        return base
    def find(self, addr):
        for base, a, name in self.bufs:
            if base <= addr < base + len(a):
                return base, a, name
        raise EmuError('bad base address %x' % addr)

OPRE = re.compile(r'^(-?)(abs\()?([sva])(?:(\d+)|\[(\d+):(\d+)\])\)?$')

class Op:
    __slots__ = ('k', 'i', 'n', 'neg', 'abs', 'val')
    def __init__(self, t):
        self.neg = self.abs = False
        self.n = 1
        t = t.strip()
        if t.startswith('|') or t.startswith('-|'):
            raise EmuError('use abs()')
        m = OPRE.match(t)
        if m:
            self.neg = bool(m.group(1)); self.abs = bool(m.group(2))
            self.k = m.group(3)
            if m.group(4) is not None:
                self.i = int(m.group(4))
            else:
                self.i = int(m.group(5)); self.n = int(m.group(6)) - self.i + 1
            if self.k == 'a':
                self.k = 'v'; self.i += 256
        elif t in ('vcc', 'exec'):
            self.k = 's'; self.i = 106 if t == 'vcc' else 126; self.n = 2
        elif t in ('vcc_lo', 'vcc_hi', 'exec_lo', 'exec_hi'):
            self.k = 's'; self.i = (106 if t[0] == 'v' else 126) + (1 if t.endswith('hi') else 0)
        elif t == 'm0':
            self.k = 's'; self.i = 124
        elif t == 'off':
            self.k = 'off'
        else:
            self.k = 'c'
            try:
                self.val = int(t, 0) & 0xffffffffffffffff
            except ValueError:
                try:
                    self.val = f2u(float(t))
                except ValueError:
                    self.k = 'l'; self.val = t
    def regs(self):
        return range(self.i, self.i + self.n)

class Ins:
    __slots__ = ('mn', 'ops', 'mods', 'text', 'line', 'fn', 'cls', 'vr', 'vw', 'sr', 'sw', 'size')

TRANS = ('v_exp_f32', 'v_log_f32', 'v_rcp_f32', 'v_rsq_f32', 'v_sqrt_f32')

def parse(text):
    ins = []; labels = {}
    for ln, raw in enumerate(text.split('\n'), 1):
        s = raw.split(';')[0].strip()
        if not s or s.startswith('.'):
            if s.startswith('.section'):
                break
            continue
        if s.endswith(':'):
            labels[s[:-1]] = len(ins); continue
        p = s.split(None, 1)
        I = Ins(); I.mn = p[0]; I.text = s; I.line = ln
        for suf in ('_e32', '_e64', '_dpp'):
            if I.mn.endswith(suf): I.mn = I.mn[:-len(suf)]
        I.ops = []; I.mods = {}
        if len(p) > 1:
            if I.mn == 's_waitcnt':
                for k, v in re.findall(r'(\w+)\((\d+)\)', p[1]): I.mods[k] = int(v)
            elif I.mn in ('buffer_inv', 'buffer_wbl2', 's_getreg_b32'):
                if I.mn == 's_getreg_b32':
                    I.ops = [Op(p[1].split(',')[0])]
            else:
                parts = p[1].split(',')
                last = parts[-1].split()
                parts[-1] = last[0]
                for m in last[1:]:
                    if ':' in m:
                        k, v = m.split(':', 1); I.mods[k] = int(v, 0)
                    else:
                        I.mods[m] = True
                I.ops = [Op(x) for x in parts]
        ins.append(I)
    return ins, labels

class WG:
    def __init__(self, prog, mem, kernarg, wgid, entry, nwaves=4, lds=163840, check=True):
        self.ins, self.labels = prog
        self.mem = mem; self.lds = np.full(lds, 0xcd, np.uint8); self.ldsz = lds
        ng = lds // 8
        self.w_wave = np.full(ng, -1, np.int32)
        self.w_ep = np.full(ng, -1, np.int64)
        self.r_ep = np.full((nwaves, ng), -1, np.int64)
        self.r_cnt = np.zeros((nwaves, ng), np.int32)
        self.epoch = 0
        self.check = check
        self.waves = [Wave(self, w, kernarg, wgid, self.labels[entry]) for w in range(nwaves)]
        self.poll_hook = None
    def run(self, maxsteps=10**8):
        while True:
            alive = [w for w in self.waves if not w.done]
            if not alive: break
            for w in alive:
                w.run(maxsteps)
            self.epoch += 1
        n = [w.nbar for w in self.waves]
        if len(set(n)) != 1:
            raise EmuError('barrier count mismatch %s' % n)

BIG = 1 << 60

class Wave:
    def __init__(self, wg, wid, kernarg, wgid, pc):
        self.wg = wg; self.wid = wid; self.pc = pc
        self.s = [0xdeadbeef] * 128
        self.s[0] = kernarg & 0xffffffff; self.s[1] = kernarg >> 32; self.s[2] = wgid
        self.s[126] = self.s[127] = 0xffffffff
        self.scc = 0
        self.v = np.full((512, 64), 0x7fc0dead, np.uint32)
        self.v[0] = LANES + 64 * wid
        self.vinit = np.zeros(512, bool); self.vinit[0] = True
        self.done = False; self.nbar = 0
        self.vmq = []; self.lgq = []
        self.vpend = np.zeros(512, np.int32); self.spend = set()
        self.t = 0
        NEG = -1000
        self.t_valu_w = np.full(512, NEG, np.int64); self.t_trans_w = np.full(512, NEG, np.int64)
        self.t_mfma_w = np.full(512, NEG, np.int64); self.mfma_d = np.full(512, -1, np.int64)
        self.t_mfma_c = np.full(512, NEG, np.int64); self.t_store_r = np.full(512, NEG, np.int64)
        self.t_s_valu = [NEG] * 128; self.t_m0 = NEG
        self.count = {}; self.nins = 0
    def err(self, I, msg):
        raise EmuError('wave %d line %d [%s]: %s' % (self.wid, I.line, I.text, msg))
    def exec_mask(self):
        e = self.s[126] | (self.s[127] << 32)
        if e == 0xffffffffffffffff: return None
        return ((e >> LANES.astype(object)) & 1).astype(bool)
    def sget(self, I, o):
        if o.k == 'c': return o.val & 0xffffffff
        if o.i in self.spend: self.err(I, 'pending sgpr s%d' % o.i)
        return self.s[o.i]
    def sget64(self, I, o):
        if o.k == 'c':
            return o.val
        if o.i in self.spend or o.i + 1 in self.spend: self.err(I, 'pending sgpr')
        return self.s[o.i] | (self.s[o.i + 1] << 32)
    def sset(self, I, o, v):
        if o.i in self.spend: self.err(I, 'write pending sgpr')
        self.s[o.i] = v & 0xffffffff
        if o.i == 124: self.t_m0 = self.t
    def sset64(self, I, o, v):
        self.s[o.i] = v & 0xffffffff; self.s[o.i + 1] = (v >> 32) & 0xffffffff
    def chk_vread(self, I, o, kind):
        sl = slice(o.i, o.i + o.n)
        if self.vpend[sl].any(): self.err(I, 'read of pending vgpr %d' % o.i)
        if not self.vinit[sl].all(): self.err(I, 'read of uninitialised vgpr %d' % o.i)
        t = self.t
        d = t - self.t_mfma_w[sl].max() - 1
        if kind == 'mfma_c':
            if d < 6 and not (self.mfma_d[sl] == o.i).all(): self.err(I, 'mfma D->C overlap hazard %d' % d)
        elif d < 8: self.err(I, 'mfma D->read hazard (%d states)' % d)
        d = t - self.t_valu_w[sl].max() - 1
        if kind in ('mfma_ab', 'mfma_c', 'perm') and d < 2: self.err(I, 'valu->%s hazard (%d)' % (kind, d))
        if kind == 'rl' and d < 1: self.err(I, 'valu->readlane hazard')
        if kind in ('valu', 'perm', 'rl', 'mem') and t - self.t_trans_w[sl].max() - 1 < 1: self.err(I, 'trans->use hazard')
    def chk_vwrite(self, I, o, kind):
        sl = slice(o.i, o.i + o.n)
        if self.vpend[sl].any(): self.err(I, 'write of pending vgpr %d' % o.i)
        t = self.t
        if kind != 'mfma':
            d = t - self.t_mfma_w[sl].max() - 1
            if d < 8: self.err(I, 'mfma D->write hazard (%d)' % d)
            if t - self.t_mfma_c[sl].max() - 1 < 3: self.err(I, 'mfma C WAR hazard')
        if t - self.t_store_r[sl].max() - 1 < 2: self.err(I, 'store data WAR hazard')
        self.vinit[sl] = True
        if kind in ('valu', 'trans'): self.t_valu_w[sl] = t
        if kind == 'trans': self.t_trans_w[sl] = t
    def vsrc(self, I, o, kind='valu'):
        if o.k == 'v':
            if o.i >= 256 and kind in ('valu', 'trans') and not I.mn.startswith('v_accvgpr'): self.err(I, 'agpr in valu')
            self.chk_vread(I, o, kind)
            return self.v[o.i]
        if o.k == 's' and self.t - self.t_s_valu[o.i] - 1 < 2: self.err(I, 'valu sgpr write -> valu read hazard')
        return np.full(64, self.sget(I, o), np.uint32)
    def fsrc(self, I, o, kind='valu'):
        x = self.vsrc(I, o, kind).view(np.float32)
        if o.abs: x = np.abs(x)
        if o.neg: x = -x
        return x
    def vdst(self, I, o, val, kind='valu'):
        self.chk_vwrite(I, o, kind)
        val = np.asarray(val)
        if val.dtype == np.float32: val = val.view(np.uint32)
        elif val.dtype != np.uint32: val = (val & 0xffffffff).astype(np.uint32)
        m = self.exec_mask()
        if m is None: self.v[o.i] = val
        else: self.v[o.i] = np.where(m, val, self.v[o.i])
    def set_mask(self, I, o, c):
        m = self.exec_mask()
        if m is not None: c = c & m
        val = 0
        for b in np.nonzero(c)[0]: val |= 1 << int(b)
        self.sset64(I, o, val)
        self.t_s_valu[o.i] = self.t_s_valu[o.i + 1] = self.t
    def get_mask(self, I, o):
        if self.t - max(self.t_s_valu[o.i], self.t_s_valu[o.i + 1]) - 1 < 2: self.err(I, 'valu mask write -> read hazard')
        e = self.sget64(I, o)
        return np.array([(e >> i) & 1 for i in range(64)], bool)
    def lds_gran(self, I, addr, nb, m):
        if m is not None: addr = addr[m]
        if len(addr) and (addr.max() + nb > self.wg.ldsz): self.err(I, 'LDS OOB %d' % addr.max())
        g = addr // 8
        if nb > 8: g = np.concatenate([g + k for k in range(nb // 8)])
        return np.unique(g)
    def lds_read_chk(self, I, g):
        wg = self.wg
        if (wg.w_wave[g] < 0).any(): self.err(I, 'LDS read of never written data at %d' % (g[wg.w_wave[g] < 0][0] * 8))
        bad = (wg.w_ep[g] == BIG) | ((wg.w_wave[g] != self.wid) & (wg.w_ep[g] >= wg.epoch))
        if bad.any(): self.err(I, 'LDS RAW hazard at %d (writer wave %d, ep %d, now %d)' % (g[bad][0] * 8, wg.w_wave[g][bad][0], wg.w_ep[g][bad][0], wg.epoch))
        wg.r_cnt[self.wid, g] += 1
        def done():
            wg.r_cnt[self.wid, g] -= 1; wg.r_ep[self.wid, g] = wg.epoch
        return done
    def lds_write_chk(self, I, g, dma):
        wg = self.wg
        for y in range(len(wg.waves)):
            if y == self.wid and not dma: continue
            if wg.r_cnt[y, g].any(): self.err(I, 'LDS WAR hazard: read in flight by wave %d at %d' % (y, g[wg.r_cnt[y, g] > 0][0] * 8))
            if y != self.wid and (wg.r_ep[y, g] >= wg.epoch).any(): self.err(I, 'LDS WAR hazard vs wave %d at %d' % (y, g[wg.r_ep[y, g] >= wg.epoch][0] * 8))
        bad = (wg.w_ep[g] == BIG) | ((wg.w_wave[g] != self.wid) & (wg.w_wave[g] >= 0) & (wg.w_ep[g] >= wg.epoch))
        if bad.any(): self.err(I, 'LDS WAW hazard at %d' % (g[bad][0] * 8))
        wg.w_wave[g] = self.wid
        if dma:
            wg.w_ep[g] = BIG
        else:
            wg.w_ep[g] = BIG - 1
        def done():
            wg.w_ep[g] = wg.epoch
        return done
    def bank_conf(self, I, addr, kind):
        if kind == 'b128':
            groups = [[0,1,2,3,12,13,14,15,20,21,22,23,24,25,26,27],[4,5,6,7,8,9,10,11,16,17,18,19,28,29,30,31]]
            groups += [[x + 32 for x in g] for g in groups]; nd = 4
        else:
            groups = [list(range(32)), list(range(32, 64))]; nd = 2
        ex = 0
        for g in groups:
            a = np.unique(addr[g] // 4)
            b = np.concatenate([(a + k) % 64 for k in range(nd)])
            ex += np.bincount(b).max() - 1
        if ex:
            k = 'bankconf:' + str(I.line)
            self.count[k] = self.count.get(k, 0) + ex
    def baddr(self, I, vo, srd, so):
        for r in list(srd.regs()) + ([so.i] if so.k == 's' else []):
            if self.t - self.t_s_valu[r] - 1 < 5: self.err(I, 'valu sgpr -> vmem hazard')
            if r in self.spend: self.err(I, 'pending srd')
        base = self.s[srd.i] | ((self.s[srd.i + 1] & 0xffff) << 32)
        if self.s[srd.i + 3] != 0x20000: self.err(I, 'bad srd word3')
        off = np.full(64, I.mods.get('offset', 0) + self.sget(I, so), np.int64)
        if vo.k == 'v':
            self.chk_vread(I, vo, 'mem')
            off = off + self.v[vo.i].astype(np.int64)
        return base, off, self.s[srd.i + 2]
    def gather(self, I, base, off, nrec, nb):
        if base == 0x7777000000: return np.zeros((64, nb // 4), np.uint32)
        b0, a, name = self.wg.mem.find(base)
        if base - b0 + nrec > len(a): self.err(I, 'SRD range exceeds buffer %s' % name)
        ok = off + nb <= nrec
        idx = (base - b0 + np.where(ok, off, 0))[:, None] + np.arange(nb)[None, :]
        d = a[idx]
        if not ok.all():
            d[~ok] = 0
            self.count['oob_load'] = self.count.get('oob_load', 0) + 1
        return np.ascontiguousarray(d).view(np.uint32)
    def retire(self, q, n):
        while len(q) > n:
            for f in q.pop(0): f()
    def pend(self, o):
        sl = slice(o.i, o.i + o.n)
        self.vpend[sl] += 1
        def done(): self.vpend[sl] -= 1
        return done
    def run(self, maxsteps):
        ins = self.wg.ins
        while True:
            I = ins[self.pc]; self.pc += 1
            self.nins += 1
            if self.nins > maxsteps: self.err(I, 'too many steps')
            r = self.step(I)
            self.t += 1
            if r: return
    def step(self, I):
        mn = I.mn; o = I.ops
        c = mn[0]
        if c == 'v':
            if mn == 'v_mfma_f32_16x16x32_bf16':
                self.chk_vread(I, o[1], 'mfma_ab'); self.chk_vread(I, o[2], 'mfma_ab')
                def frag(x):
                    r = self.v[x.i:x.i + 4]
                    lo = (r << 16).view(np.float32); hi = (r & 0xffff0000).view(np.float32)
                    f = np.stack([lo, hi], 1).reshape(8, 4, 16)
                    return f.transpose(2, 1, 0).reshape(16, 32)
                A = frag(o[1]); B = frag(o[2])
                with np.errstate(all='ignore'):
                    D = A @ B.T
                    D = D.reshape(4, 4, 16).transpose(1, 0, 2).reshape(4, 64)
                    if o[3].k == 'v':
                        if (o[3].i >= 256) != (o[0].i >= 256): self.err(I, 'C/D class mismatch')
                        self.chk_vread(I, o[3], 'mfma_c')
                        D = D + self.v[o[3].i:o[3].i + 4].view(np.float32)
                        self.t_mfma_c[o[3].i:o[3].i + 4] = self.t
                    elif o[3].val != 0: self.err(I, 'const C')
                self.chk_vwrite(I, o[0], 'mfma')
                if self.exec_mask() is not None: self.err(I, 'mfma under partial exec')
                self.v[o[0].i:o[0].i + 4] = D.astype(np.float32).view(np.uint32)
                self.t_mfma_w[o[0].i:o[0].i + 4] = self.t; self.mfma_d[o[0].i:o[0].i + 4] = o[0].i
                self.count['mfma'] = self.count.get('mfma', 0) + 1
                return
            return self.valu(I)
        if c == 's': return self.salu(I)
        if c == 'd': return self.ds(I)
        if c == 'b': return self.vmem(I)
        self.err(I, 'unknown')
    def valu(self, I):
        mn = I.mn; o = I.ops
        F = self.fsrc; V = self.vsrc
        with np.errstate(all='ignore'):
            if mn in TRANS:
                x = F(I, o[1], 'trans')
                r = {'v_exp_f32': np.exp2, 'v_log_f32': np.log2, 'v_rcp_f32': lambda x: np.float32(1) / x,
                     'v_rsq_f32': lambda x: np.float32(1) / np.sqrt(x), 'v_sqrt_f32': np.sqrt}[mn](x)
                return self.vdst(I, o[0], r.astype(np.float32), 'trans')
            dpp = [k for k in I.mods if k.startswith(('row_ror', 'row_shr', 'quad_perm', 'row_half_mirror', 'row_mirror'))]
            if dpp:
                self.chk_vread(I, o[1], 'perm')
                src = self.v[o[1].i]
                k = dpp[0]
                if k == 'row_ror':
                    n = I.mods[k]; idx = (LANES & ~15) | ((LANES - n) & 15)
                elif k == 'row_mirror': idx = (LANES & ~15) | (15 - (LANES & 15))
                elif k == 'row_half_mirror': idx = (LANES & ~7) | (7 - (LANES & 7))
                else: self.err(I, 'dpp')
                a = src[idx].view(np.float32)
                if mn == 'v_mov_b32': return self.vdst(I, o[0], a.copy())
                b = F(I, o[2])
                r = {'v_add_f32': np.add, 'v_max_f32': np.fmax}[mn](a, b)
                return self.vdst(I, o[0], r)
            if mn == 'v_cvt_pk_bf16_f32':
                return self.vdst(I, o[0], bf16_round(F(I, o[1])) | (bf16_round(F(I, o[2])) << 16))
            if mn in ('v_mov_b32', 'v_accvgpr_write_b32', 'v_accvgpr_read_b32', 'v_accvgpr_mov_b32'):
                return self.vdst(I, o[0], V(I, o[1]).copy())
            f2 = {'v_add_f32': np.add, 'v_sub_f32': np.subtract, 'v_mul_f32': np.multiply, 'v_max_f32': np.fmax, 'v_min_f32': np.fmin,
                  'v_subrev_f32': lambda a, b: b - a}
            if mn in f2: return self.vdst(I, o[0], f2[mn](F(I, o[1]), F(I, o[2])))
            if mn == 'v_fma_f32':
                return self.vdst(I, o[0], (F(I, o[1]).astype(np.float64) * F(I, o[2]) + F(I, o[3])).astype(np.float32))
            if mn == 'v_fmac_f32':
                return self.vdst(I, o[0], (F(I, o[1]).astype(np.float64) * F(I, o[2]) + F(I, o[0])).astype(np.float32))
            if mn == 'v_fmaak_f32':
                return self.vdst(I, o[0], (F(I, o[1]).astype(np.float64) * F(I, o[2]) + F(I, o[3])).astype(np.float32))
            if mn == 'v_max3_f32': return self.vdst(I, o[0], np.fmax(np.fmax(F(I, o[1]), F(I, o[2])), F(I, o[3])))
            L = lambda x: V(I, x).astype(np.int64)
            i2 = {'v_add_u32': lambda a, b: a + b, 'v_sub_u32': lambda a, b: a - b, 'v_subrev_u32': lambda a, b: b - a,
                  'v_and_b32': lambda a, b: a & b, 'v_or_b32': lambda a, b: a | b, 'v_xor_b32': lambda a, b: a ^ b,
                  'v_lshlrev_b32': lambda a, b: b << (a & 31), 'v_lshrrev_b32': lambda a, b: b >> (a & 31),
                  'v_mul_u32_u24': lambda a, b: (a & 0xffffff) * (b & 0xffffff), 'v_mul_lo_u32': lambda a, b: (a * b),
                  'v_min_u32': np.minimum, 'v_max_u32': np.maximum}
            if mn in i2: return self.vdst(I, o[0], i2[mn](L(o[1]), L(o[2])))
            i3 = {'v_lshl_add_u32': lambda a, b, c: (a << (b & 31)) + c, 'v_lshl_or_b32': lambda a, b, c: (a << (b & 31)) | c,
                  'v_add_lshl_u32': lambda a, b, c: (a + b) << (c & 31), 'v_and_or_b32': lambda a, b, c: (a & b) | c,
                  'v_mad_u32_u24': lambda a, b, c: (a & 0xffffff) * (b & 0xffffff) + c, 'v_add3_u32': lambda a, b, c: a + b + c,
                  'v_bfe_u32': lambda a, b, c: (a >> (b & 31)) & ((1 << (c & 31)) - 1), 'v_or3_b32': lambda a, b, c: a | b | c,
                  'v_xad_u32': lambda a, b, c: (a ^ b) + c}
            if mn in i3: return self.vdst(I, o[0], i3[mn](L(o[1]), L(o[2]), L(o[3])))
            if mn.startswith('v_cmp_'):
                _, _, op, ty = mn.split('_')
                if ty == 'f32': a, b = F(I, o[1]), F(I, o[2])
                elif ty == 'u32': a, b = L(o[1]), L(o[2])
                else: a, b = V(I, o[1]).view(np.int32), V(I, o[2]).view(np.int32)
                neg = False
                if ty == 'f32' and op in ('nlt', 'nle', 'ngt', 'nge', 'neq'): neg = True; op = op[1:]
                r = {'lt': a < b, 'le': a <= b, 'gt': a > b, 'ge': a >= b, 'eq': a == b, 'ne': a != b}[op]
                if neg: r = ~r
                return self.set_mask(I, o[0], r)
            if mn == 'v_cndmask_b32':
                m = self.get_mask(I, o[3])
                return self.vdst(I, o[0], np.where(m, V(I, o[2]), V(I, o[1])))
            if mn == 'v_readfirstlane_b32':
                self.chk_vread(I, o[1], 'rl')
                m = self.exec_mask()
                l = 0 if m is None or not m.any() else int(np.argmax(m))
                self.sset(I, o[0], int(self.v[o[1].i][l])); self.t_s_valu[o[0].i] = self.t
                return
            if mn in ('v_permlane32_swap_b32', 'v_permlane16_swap_b32'):
                self.chk_vread(I, o[0], 'perm'); self.chk_vread(I, o[1], 'perm')
                a = self.v[o[0].i].copy(); b = self.v[o[1].i].copy()
                if mn == 'v_permlane32_swap_b32':
                    t = a[32:].copy(); a[32:] = b[:32]; b[:32] = t
                else:
                    for r in (0, 32):
                        t = a[r + 16:r + 32].copy(); a[r + 16:r + 32] = b[r:r + 16]; b[r:r + 16] = t
                self.vdst(I, o[0], a); self.vdst(I, o[1], b)
                return
            if mn == 'v_nop': return
        self.err(I, 'unknown valu')
    def salu(self, I):
        mn = I.mn; o = I.ops; S = lambda x: self.sget(I, x)
        if mn == 's_waitcnt':
            if 'vmcnt' in I.mods: self.retire(self.vmq, I.mods['vmcnt'])
            if 'lgkmcnt' in I.mods:
                n = I.mods['lgkmcnt']
                if n > 15: self.err(I, 'lgkmcnt range')
                if self.spend and n != 0: self.err(I, 'counted lgkm with smem pending')
                self.retire(self.lgq, n)
                if n == 0: self.spend = set()
            if I.mods.get('vmcnt', 0) > 63: self.err(I, 'vmcnt range')
            return
        if mn == 's_nop': self.t += o[0].val; return
        if mn == 's_barrier': self.nbar += 1; return True
        if mn == 's_endpgm':
            self.retire(self.vmq, 0); self.retire(self.lgq, 0); self.done = True; return True
        if mn in ('s_setprio', 's_sleep'):
            return
        if mn == 's_branch': self.pc = self.wg.labels[o[0].val]; return
        if mn.startswith('s_cbranch_'):
            k = mn[10:]
            vcc = self.s[106] | self.s[107]; ex = self.s[126] | self.s[127]
            t = {'scc0': not self.scc, 'scc1': self.scc, 'vccz': vcc == 0, 'vccnz': vcc != 0, 'execz': ex == 0, 'execnz': ex != 0}[k]
            if t: self.pc = self.wg.labels[o[0].val]
            return
        if mn.startswith('s_load_dword'):
            addr = self.sget64(I, o[1]) + o[2].val
            b0, a, _ = self.wg.mem.find(addr)
            d = a[addr - b0: addr - b0 + 4 * o[0].n].view(np.uint32)
            for k in range(o[0].n):
                self.s[o[0].i + k] = int(d[k]); self.spend.add(o[0].i + k)
            return
        if mn == 's_getpc_b64': return self.sset64(I, o[0], 0x7777000000)
        if mn in ('s_memtime', 's_memrealtime'): return self.sset64(I, o[0], 1)
        if mn == 's_getreg_b32': return self.sset(I, o[0], 0)
        if mn in ('s_mov_b32', 's_movk_i32'): return self.sset(I, o[0], S(o[1]))
        if mn == 's_mov_b64': return self.sset64(I, o[0], self.sget64(I, o[1]))
        if mn.startswith('s_cmp_'):
            _, _, op, ty = mn.split('_')
            if ty == 'u64': a, b = self.sget64(I, o[0]), self.sget64(I, o[1])
            else: a, b = S(o[0]), S(o[1])
            if ty == 'i32':
                a -= (a >> 31) << 32; b -= (b >> 31) << 32
            self.scc = int({'eq': a == b, 'lg': a != b, 'lt': a < b, 'le': a <= b, 'gt': a > b, 'ge': a >= b}[op]); return
        if mn == 's_bitcmp1_b32': self.scc = (S(o[0]) >> (S(o[1]) & 31)) & 1; return
        if mn == 's_cselect_b32': return self.sset(I, o[0], S(o[1]) if self.scc else S(o[2]))
        if mn == 's_and_saveexec_b64':
            e = self.s[126] | (self.s[127] << 32); m = self.sget64(I, o[1])
            self.sset64(I, o[0], e); e &= m
            self.s[126] = e & 0xffffffff; self.s[127] = e >> 32; self.scc = int(e != 0); return
        if mn in ('s_or_b64', 's_and_b64'):
            a, b = self.sget64(I, o[1]), self.sget64(I, o[2])
            r = a | b if mn == 's_or_b64' else a & b
            self.sset64(I, o[0], r); self.scc = int(r != 0); return
        a, b = S(o[1]), S(o[2])
        if mn == 's_add_u32': r = a + b; self.scc = r >> 32
        elif mn == 's_addc_u32': r = a + b + self.scc; self.scc = r >> 32
        elif mn == 's_sub_u32': r = a - b; self.scc = int(r < 0)
        elif mn == 's_mul_i32': r = a * b
        elif mn == 's_mul_hi_u32': r = (a * b) >> 32
        elif mn == 's_min_u32': r = min(a, b); self.scc = int(a < b)
        elif mn == 's_max_u32': r = max(a, b); self.scc = int(a > b)
        else:
            r = {'s_lshl_b32': a << (b & 31), 's_lshr_b32': a >> (b & 31), 's_and_b32': a & b, 's_or_b32': a | b, 's_xor_b32': a ^ b,
                 's_bfe_u32': (a >> (b & 31)) & ((1 << ((b >> 16) & 127)) - 1)}.get(mn)
            if r is None: self.err(I, 'unknown salu')
            self.scc = int((r & 0xffffffff) != 0)
        self.sset(I, o[0], r)
    def ds(self, I):
        mn = I.mn; o = I.ops; lds = self.wg.lds
        m = self.exec_mask()
        if mn.startswith('ds_read'):
            nb = {'ds_read_b128': 16, 'ds_read_b64': 8, 'ds_read_b64_tr_b16': 8, 'ds_read_b32': 4}[mn]
            self.chk_vread(I, o[1], 'mem')
            addr = self.v[o[1].i].astype(np.int64) + I.mods.get('offset', 0)
            if I.mods.get('offset', 0) > 65535: self.err(I, 'ds offset')
            if (addr % nb).any(): self.err(I, 'unaligned ds')
            g = self.lds_gran(I, addr, nb, m)
            d1 = self.lds_read_chk(I, g)
            if m is not None:
                if mn.endswith('tr_b16'): self.err(I, 'tr under mask')
                addr = np.where(m, addr, 0)
            elif nb >= 8: self.bank_conf(I, addr, 'b128' if nb == 16 else 'b64')
            d = np.ascontiguousarray(lds[addr[:, None] + np.arange(nb)[None, :]])
            if mn.endswith('tr_b16'):
                h = d.view(np.uint16).reshape(4, 4, 16)
                d = np.ascontiguousarray(h.transpose(0, 2, 1)).reshape(64, 4)
            d = d.view(np.uint32).reshape(64, nb // 4)
            self.chk_vwrite(I, o[0], 'load')
            for k in range(nb // 4):
                self.v[o[0].i + k] = d[:, k] if m is None else np.where(m, d[:, k], self.v[o[0].i + k])
            self.lgq.append([d1, self.pend(o[0])])
        elif mn.startswith('ds_write'):
            nb = {'ds_write_b128': 16, 'ds_write_b64': 8, 'ds_write_b32': 4}[mn]
            self.chk_vread(I, o[0], 'mem'); self.chk_vread(I, o[1], 'mem')
            addr = self.v[o[0].i].astype(np.int64) + I.mods.get('offset', 0)
            g = self.lds_gran(I, addr, nb, m)
            d1 = self.lds_write_chk(I, g, False)
            d = np.ascontiguousarray(self.v[o[1].i:o[1].i + nb // 4].T).view(np.uint8)
            sel = slice(None) if m is None else m
            lds[addr[sel][:, None] + np.arange(nb)[None, :]] = d[sel]
            self.lgq.append([d1])
        else: self.err(I, 'unknown ds')
        if len(self.lgq) > 15: self.count['lgkm_overflow'] = self.count.get('lgkm_overflow', 0) + 1
    def vmem(self, I):
        mn = I.mn; o = I.ops
        m = self.exec_mask()
        if I.mods.get('offset', 0) > 4095: self.err(I, 'buffer offset')
        if mn in ('buffer_inv', 'buffer_wbl2'):
            self.vmq.append([]); return
        nb = 4 * {'dword': 1, 'dwordx2': 2, 'dwordx4': 4, 'add': 1}[mn.split('_')[-1]]
        if mn.startswith('buffer_load'):
            if 'lds' in I.mods:
                if self.t - self.t_m0 - 1 < 1: self.err(I, 'm0 -> lds dma hazard')
                if m is not None: self.err(I, 'dma under mask')
                base, off, nrec = self.baddr(I, o[0], o[1], o[2])
                d = self.gather(I, base, off, nrec, nb)
                la = (self.s[124] & 0x3fffc) + I.mods.get('offset', 0) + LANES * nb
                g = self.lds_gran(I, la, nb, None)
                d1 = self.lds_write_chk(I, g, True)
                self.wg.lds[la[0]:la[0] + 64 * nb] = d.view(np.uint8).reshape(-1)
                self.vmq.append([d1])
            else:
                base, off, nrec = self.baddr(I, o[1], o[2], o[3])
                if m is not None: off = np.where(m, off, 0)
                d = self.gather(I, base, off, nrec, nb)
                self.chk_vwrite(I, o[0], 'load')
                for k in range(nb // 4):
                    self.v[o[0].i + k] = d[:, k] if m is None else np.where(m, d[:, k], self.v[o[0].i + k])
                self.vmq.append([self.pend(o[0])])
        else:
            base, off, nrec = self.baddr(I, o[1], o[2], o[3])
            self.chk_vread(I, o[0], 'mem')
            b0, a, name = self.wg.mem.find(base)
            if base - b0 + nrec > len(a): self.err(I, 'SRD range exceeds buffer %s' % name)
            ok = off + nb <= nrec
            if m is not None: ok = ok & m
            elif not ok.all() and nrec and (off[~ok] < 0x40000000).any(): self.err(I, 'OOB store')
            mem = self.wg.mem
            if ok.any():
                lo_ = base - b0 + off[ok].min()
                if any(n == name and l <= lo_ < h for n, l, h in mem.frozen):
                    mem.log.append((mn, name, int(lo_), int(ok.sum()), int(self.v[o[0].i][np.argmax(ok)]), self.wid, I.line))
                    self.vmq.append([]); return
                if name in mem.written:
                    mem.written[name][((base - b0 + off[ok]) // 2)[:, None] + np.arange(nb // 2)[None, :]] = True
            if mn.startswith('buffer_store'):
                d = np.ascontiguousarray(self.v[o[0].i:o[0].i + nb // 4].T).view(np.uint8)
                a[(base - b0 + off[ok])[:, None] + np.arange(nb)[None, :]] = d[ok]
                if nb > 8: self.t_store_r[o[0].i:o[0].i + o[0].n] = self.t
            else:
                w = a.view(np.uint32)
                for l in np.nonzero(ok)[0]:
                    w[(base - b0 + off[l]) // 4] += self.v[o[0].i][l]
            self.vmq.append([])
        if len(self.vmq) > 63: self.count['vm_overflow'] = self.count.get('vm_overflow', 0) + 1
```

```python
import sys, math
from asmlib import *

NAME = 'parallel_sum__compressed_kv_cla__glu_gated_geglu__prompt'
MB = 1 << 20
WS_XN, WS_KV, WS_A3 = 0, 2 * MB, 34 * MB
XN_SZ, KV_SZ, A3_SZ = 2 * MB, 32 * MB, 32 * 184 * 4096
LDS_SZ = 163840
ST = ''

P_X, P_CKV, P_WQ, P_WK, P_WV, P_WO, P_WG, P_WU, P_WD, P_OUT, P_DBG, P_WS = 4, 6, 8, 10, 12, 14, 18, 20, 22, 24, 26, 28

def entry(name, end_label, code_bytes):
    L = [f'.globl {name}', '.p2align 8', f'.type {name},@function', f'{name}:']
    L += ['s_cmp_ge_u32 s2, 256', f's_cbranch_scc1 {end_label}',
          's_load_dwordx16 s[4:19], s[0:1], 0', 's_load_dwordx8 s[20:27], s[0:1], 64', 's_load_dwordx2 s[28:29], s[0:1], 96']
    L += ['s_getpc_b64 s[96:97]', f's_mov_b32 s98, {code_bytes}', 's_mov_b32 s99, 0x20000',
          's_lshr_b32 s30, s2, 3', 's_lshl_b32 s30, s30, 12', 'v_lshl_add_u32 v1, v0, 4, s30',
          'buffer_load_dword v2, v1, s[96:99], 0 offen',
          'v_lshrrev_b32 v1, 6, v0', 'v_and_b32 v0, 63, v0', 'v_readfirstlane_b32 s3, v1',
          's_waitcnt lgkmcnt(0)']
    return L

PROF = False
PF = 0
LD = ''
def stamp(k, vp):
    if not PROF: return []
    o = [f'v_mov_b32 v{vp}, 0'] if k == 0 else []
    return o + ['s_memrealtime s[94:95]', 's_memtime s[100:101]', 's_waitcnt lgkmcnt(0)', f'v_writelane_b32 v{vp}, s94, {2*k}', f'v_writelane_b32 v{vp}, s100, {2*k+1}']
def stamp_out(kid, vp, k):
    if not PROF: return []
    return ['s_waitcnt vmcnt(0)'] + stamp(k, vp) + srd_off(96, P_WS, P_WS + 1, 60 * MB + kid * 256 * 1024, 256 * 1024) + [
        's_lshl_b32 s30, s2, 2', 's_add_u32 s30, s30, s3', 's_lshl_b32 s30, s30, 8', 'v_lshlrev_b32 v0, 2, v0',
        f'buffer_store_dword v{vp}, v0, s[96:99], s30 offen']

V_L16 = 1
V_TR = 4
V_WD = 8
V_AD = 12
V_AR = 16
V_T = 20
V_WB = 40
V_ACC = 64
V_R = 128
QSCALE = 0x3e0293ee

def w_dma_voff(dst, stride, tmp):
    L = [f'v_lshrrev_b32 v{tmp}, 3, v0',
         f'v_mul_u32_u24 v{tmp}, {stride}, v{tmp}',
         f'v_bfe_u32 v{tmp+1}, v0, 4, 1',
         f'v_lshlrev_b32 v{tmp+1}, 1, v{tmp+1}',
         f'v_and_b32 v{tmp+2}, 7, v0',
         f'v_xor_b32 v{tmp+1}, v{tmp+1}, v{tmp+2}',
         f'v_xor_b32 v{tmp+2}, 4, v{tmp+1}',
         f'v_lshl_add_u32 v{tmp+1}, v{tmp+1}, 4, v{tmp}',
         f'v_lshl_add_u32 v{tmp+2}, v{tmp+2}, 4, v{tmp}']
    for i in range(4):
        L.append(f'v_add_u32 v{dst+i}, {i * 8 * stride - i * 1024}, v{tmp + 1 + (i & 1)}')
    return L

def tr_addrs(dst, tmp):
    L = [f'v_lshrrev_b32 v{tmp}, 4, v0',
         f'v_bfe_u32 v{tmp+1}, v0, 2, 2',
         f'v_lshl_add_u32 v{tmp+2}, v{tmp}, 3, v{tmp+1}',
         f'v_lshlrev_b32 v{tmp+2}, 7, v{tmp+2}',
         f'v_and_b32 v{tmp+3}, 3, v0',
         f'v_lshl_add_u32 v{tmp+2}, v{tmp+3}, 3, v{tmp+2}',
         f'v_and_b32 v{tmp}, 1, v{tmp}',
         f'v_lshrrev_b32 v{tmp+1}, 1, v{tmp+1}',
         f'v_lshl_or_b32 v{tmp}, v{tmp}, 1, v{tmp+1}']
    for ct in range(4):
        L += [f'v_xor_b32 v{tmp+1}, {ct}, v{tmp}', f'v_lshl_add_u32 v{dst+ct}, v{tmp+1}, 5, v{tmp+2}']
    return L

def areg(ks, rt):
    return A((ks * 4 + rt) * 4, 4)

def rtile(typ, ct, rt, base):
    if typ == 'N':
        return base + ((ct * 2 + rt // 2) * 2 + rt % 2) * 4
    return base + ((rt * 2 + ct // 2) * 2 + ct % 2) * 4
def rbase(p):
    return V_R + 64 * (p % 2)

class Passes:
    def __init__(self, types):
        self.types = types
        mf = []
        for p, typ in enumerate(types):
            for ss in range(8):
                for ct in range(4):
                    n = p * 32 + ss * 4 + ct
                    wb = V_WB + 8 * (n % 3)
                    for rt in range(4):
                        acc = V(V_ACC + (ct * 4 + rt) * 4, 4)
                        for k in range(2):
                            w = V(wb + 4 * k, 4); a = areg(2 * ss + k, rt)
                            c = '0' if (ss == 0 and k == 0) else acc
                            d = V(rtile(typ, ct, rt, rbase(p)), 4) if (ss == 7 and k == 1) else acc
                            mf.append(mfma(d, a, w, c) if typ == 'N' else mfma(d, w, a, c))
        self.sc = Sched(mf)
        self.m0_free = 0
        ng = len(types) * 32
        for n in range(2, ng):
            for i, t in enumerate(self.tr_reads(n)):
                self.sc.put(8 * (n - 2) + i, t)
        for st in range(1, len(types) * 4):
            g = 8 * (8 * (st - 1) + 5)
            self.sc.put(g + 6, f'WAITVM W{st}')
            self.sc.s[g + 6].append('s_waitcnt lgkmcnt(0)')
            self.sc.put(g + 7, 's_barrier')
    def tr_reads(self, n):
        p, ss, ct = n // 32, (n % 32) // 4, n % 4
        wb = V_WB + 8 * (n % 3)
        L = []
        for k in range(2):
            for hf in range(2):
                ks = 2 * ss + k
                if self.types[p] == 'G':
                    ad, off = V_AR + (ct & 1), ks * 4096 + (ct // 2) * 2048 + hf * 256
                else:
                    ad, off = V_TR + ct, ks * 4096 + hf * 512
                L.append(f'ds_read_b64_tr_b16 {V(wb + 4 * k + 2 * hf, 2)}, v{ad} offset:{off}')
        return L
    def dma_group(self, items, lo, vmspace=3):
        g = max(lo, self.m0_free)
        for t in items:
            g = self.sc.place(t, g, vmspace=vmspace) + 1
        self.m0_free = g
        return g

def cvt_pairs(base):
    return [f'v_cvt_pk_bf16_f32 v{base + i}, v{base + 2 * i}, v{base + 2 * i + 1}' for i in range(4)]

def gen_k1(code_bytes):
    nm = 'k1_kernel'
    L = entry(nm, 'K1_END', code_bytes) + stamp(0, 3)
    R_X, R_CKV, R_WK, R_WV, R_XN, R_KV = 32, 36, 40, 44, 48, 52
    sH, sRB, sW, sA, sT, sM0W, sM0A, sKVO = 60, 61, 62, 63, 64, 65, 66, 68
    sXO, sXN, sQS = 76, 77, 78
    L += srd(R_X, P_X, P_X + 1, 2 * MB) + srd(R_CKV, P_CKV, P_CKV + 1, 2 * MB)
    L += srd(R_WK, P_WK, P_WK + 1, 4 * MB) + srd(R_WV, P_WV, P_WV + 1, 4 * MB)
    L += srd_off(R_XN, P_WS, P_WS + 1, WS_XN, XN_SZ) + srd_off(R_KV, P_WS, P_WS + 1, WS_KV, KV_SZ)
    L += ['s_lshl_b32 s30, s2, 2', 's_add_u32 s30, s30, s3', f's_lshl_b32 s{sXO}, s30, 11',
          f'v_lshrrev_b32 v{V_T}, 5, v0', f'v_and_b32 v{V_T+1}, 31, v0', f'v_lshlrev_b32 v{V_T+1}, 4, v{V_T+1}',
          f'v_lshl_add_u32 v{V_T+2}, v{V_T}, 10, v{V_T+1}',
          f'buffer_load_dwordx4 {V(V_R, 4)}, v{V_T+2}, {S(R_X,4)}, s{sXO} offen',
          f'buffer_load_dwordx4 {V(V_R+4, 4)}, v{V_T+2}, {S(R_X,4)}, s{sXO} offen offset:512']
    L += ['s_and_b32 s30, s2, 1', 's_lshl_b32 s30, s30, 2', 's_bfe_u32 s31, s2, 0x20003', f's_add_u32 s{sRB}, s30, s31',
          's_bfe_u32 s30, s2, 0x20001', 's_lshl_b32 s30, s30, 3', 's_lshr_b32 s31, s2, 5', f's_add_u32 s{sH}, s30, s31']
    L += [f's_lshl_b32 s30, s{sRB}, 2', 's_add_u32 s30, s30, s3', f's_lshl_b32 s{sA}, s30, 16',
          f's_lshl_b32 s31, s{sH}, 20', 's_lshl_b32 s30, s30, 15', f's_add_u32 s{sKVO}, s30, s31',
          f's_lshl_b32 s30, s3, 18', f's_lshl_b32 s31, s{sH}, 8', f's_add_u32 s{sW}, s30, s31',
          f's_lshl_b32 s{sM0W}, s3, 12', f's_mul_i32 s{sM0A}, s3, 24576', f's_add_u32 s{sM0A}, s{sM0A}, 65536']
    t = V_T + 4
    L += [f'v_lshrrev_b32 v{t}, 3, v0', f'v_lshlrev_b32 v{t}, 10, v{t}',
          f'v_lshrrev_b32 v{t+1}, 4, v0', f'v_and_b32 v{t+2}, 7, v0', f'v_xor_b32 v{t+1}, v{t+1}, v{t+2}', f'v_xor_b32 v{t+2}, 4, v{t+1}',
          f'v_lshl_add_u32 v{t+1}, v{t+1}, 4, v{t}', f'v_lshl_add_u32 v{t+2}, v{t+2}, 4, v{t}']
    for i in range(4):
        L.append(f'v_add_u32 v{V_AD+i}, {i * 8192 - i * 1024}, v{t + 1 + (i & 1)}')
    L += w_dma_voff(V_WD, 8192, t)
    def a_items(c):
        it = []
        for hf in range(2):
            it += [f's_add_u32 m0, s{sM0A}, {(c % 3) * 8192 + hf * 4096}', f's_add_u32 s{sT}, s{sA}, {hf * 32768 + c * 128}']
            it += [f'buffer_load_dwordx4 v{V_AD+i}, {S(R_CKV,4)}, s{sT} offen offset:{i*1024} lds ; @A{c}' for i in range(4)]
        return it
    def w_items(st):
        p, s4 = st // 4, st % 4
        r = R_WK if p < 2 else R_WV
        it = [f's_add_u32 m0, s{sM0W}, {s4 * 16384}', f's_add_u32 s{sT}, s{sW}, {s4 * 128 * 8192 + (p % 2) * 128}']
        it += [f'buffer_load_dwordx4 v{V_WD+i}, {S(r,4)}, s{sT} offen offset:{i*1024} lds ; @W{st}' for i in range(4)]
        return it
    L += a_items(0) + w_items(0) + a_items(1) + w_items(1) + a_items(2) + w_items(2)
    L += [f'v_lshlrev_b32 v{V_L16}, 4, v0', f's_mov_b32 s{sQS}, {QSCALE:#x}']
    for m in range(1, 8):
        L.append(f's_add_u32 s{sKVO+m}, s{sKVO}, {4096*m}')
    L += tr_addrs(V_TR, t)
    L += [f'v_and_b32 v{t}, 15, v0', f'v_lshrrev_b32 v{t+1}, 1, v{t}', f'v_lshrrev_b32 v{t+2}, 4, v0', f'v_xor_b32 v{t+1}, v{t+1}, v{t+2}',
          f'v_lshlrev_b32 v{t}, 7, v{t}', f'v_add_u32 v{t}, s{sM0A}, v{t}',
          f'v_lshl_add_u32 v{V_AR}, v{t+1}, 4, v{t}', f'v_xor_b32 v{V_AR+1}, 64, v{V_AR}']
    X = V_ACC
    for i in range(8):
        L += [f'v_lshlrev_b32 v{X+2*i}, 16, v{V_R+i}', f'v_and_b32 v{X+2*i+1}, 0xffff0000, v{V_R+i}']
    def reduce32(r, tmp):
        o = []
        for n in (8, 4, 2, 1):
            o += ['s_nop 1', f'v_add_f32_dpp v{r}, v{r}, v{r} row_ror:{n} row_mask:0xf bank_mask:0xf']
        o += [f'v_mov_b32 v{tmp}, v{r}', 's_nop 1', f'v_permlane16_swap_b32 v{r}, v{tmp}', f'v_add_f32 v{r}, v{r}, v{tmp}']
        return o
    sm, s2_, tm = t, t + 1, t + 2
    L += [f'v_add_f32 v{sm}, v{X}, v{X+1}', f'v_add_f32 v{s2_}, v{X+2}, v{X+3}']
    for i in range(4, 16, 2):
        L += [f'v_add_f32 v{sm}, v{sm}, v{X+i}', f'v_add_f32 v{s2_}, v{s2_}, v{X+i+1}']
    L += [f'v_add_f32 v{sm}, v{sm}, v{s2_}'] + reduce32(sm, tm)
    L += [f'v_mul_f32 v{sm}, 0x3b000000, v{sm}']
    for i in range(16):
        L.append(f'v_sub_f32 v{X+i}, v{X+i}, v{sm}')
    L += [f'v_mul_f32 v{sm}, v{X}, v{X}', f'v_mul_f32 v{s2_}, v{X+1}, v{X+1}']
    for i in range(2, 16, 2):
        L += [f'v_fmac_f32 v{sm}, v{X+i}, v{X+i}', f'v_fmac_f32 v{s2_}, v{X+i+1}, v{X+i+1}']
    L += [f'v_add_f32 v{sm}, v{sm}, v{s2_}'] + reduce32(sm, tm)
    L += [f'v_mov_b32 v{s2_}, 0x3b000000', f'v_fmaak_f32 v{sm}, v{sm}, v{s2_}, 0x3727c5ac', f'v_rsq_f32 v{sm}, v{sm}', 's_nop 0']
    for i in range(16):
        L.append(f'v_mul_f32 v{X+i}, v{X+i}, v{sm}')
    L += [f'v_cvt_pk_bf16_f32 v{V_R+i}, v{X+2*i}, v{X+2*i+1}' for i in range(8)]
    L += [f'v_lshlrev_b32 v{t}, 3, v{V_T+1}',
          f'v_lshl_add_u32 v{t}, v{V_T}, 4, v{t}', 's_lshl_b32 s30, s3, 5', f'v_add_u32 v{t}, s30, v{t}',
          f'ds_write_b128 v{t}, {V(V_R,4)} offset:49152', f'ds_write_b128 v{t}, {V(V_R+4,4)} offset:{49152+4096}']
    L += ['s_lshr_b32 s30, s2, 2', f's_lshl_b32 s{sXN}, s30, 15', 's_bfe_u32 s30, s2, 0x10001', 's_lshl_b32 s30, s30, 10',
          f's_add_u32 s{sXN}, s{sXN}, s30', 's_and_b32 s30, s2, 1', 's_lshl_b32 s30, s30, 7', f's_add_u32 s{sXN}, s{sXN}, s30',
          's_lshl_b32 s30, s3, 13', f's_add_u32 s{sXN}, s{sXN}, s30', f's_add_u32 s{sXO}, s{sXN}, 4096',
          f'v_bfe_u32 v{t+1}, v0, 3, 2', f'v_and_b32 v{t+2}, 7, v0', f'v_lshlrev_b32 v{t+2}, 4, v{t+2}',
          f'v_lshl_add_u32 v{t+2}, v{t+1}, 8, v{t+2}', f'v_lshl_add_u32 v{t+2}, v{V_T}, 11, v{t+2}',
          's_lshl_b32 s30, s3, 11', f'v_add_u32 v{t+1}, s30, v{V_L16}']
    P = Passes(['T', 'T', 'N', 'N'])
    sc = P.sc
    def a_reads(c):
        return [f'ds_read_b128 {areg(2*c + k, rt)}, v{V_AR + k} offset:{(c % 3) * 8192 + rt * 2048}' for k in range(2) for rt in range(4)]
    L += stamp(1, 3) + ['WAITVM W0', 's_waitcnt lgkmcnt(0)', 's_barrier'] + stamp(2, 3)
    L += a_reads(0) + P.tr_reads(0)
    L += [f'ds_read_b128 {V(V_R,4)}, v{t+1} offset:49152', f'ds_read_b128 {V(V_R+4,4)}, v{t+1} offset:{49152+1024}']
    L += [f'TOUCH {areg(1,3)}'] + P.tr_reads(1)
    ev = []
    ev.append((0, a_items(3), None))
    for c in range(1, 8):
        g0 = 32 * (c - 1)
        sc.put(g0 + 11, f'WAITVM A{c}')
        for i, r in enumerate(a_reads(c)):
            sc.put(g0 + 12 + (i % 4) + 8 * (i // 4), r)
        if c + 3 < 8:
            ev.append((g0 + 29, a_items(c + 3), areg(2 * c + 1, 3)))
    ev.append((48, w_items(3), None))
    for st in range(4, 16):
        ev.append((8 * (8 * (st - 4) + 6), w_items(st), None))
    ev.sort(key=lambda e: e[0])
    sc.put(4, f'buffer_store_dwordx4 {V(V_R,4)}, v{t+2}, {S(R_XN,4)}, s{sXN} offen{ST}')
    sc.put(6, f'buffer_store_dwordx4 {V(V_R+4,4)}, v{t+2}, {S(R_XN,4)}, s{sXO} offen{ST}')
    for g, it, touch in ev:
        if touch: it = [f'TOUCH {touch}'] + it
        P.dma_group(it, g, vmspace=(1 if g < 200 else 3))
    def epi(p):
        fr = []
        for f in range(8):
            b = rbase(p) + 8 * f
            pre = []
            if p < 2:
                rt, p2 = f // 2, f % 2
                m, imm = (rt // 2) * 4 + rt % 2, (2 * p + p2) * 1024
                pre = [f'v_mul_f32 v{b+i}, s{sQS}, v{b+i}' for i in range(8)]
            else:
                ct, q = f // 2, f % 2
                m, imm = q * 4 + 2 + (p - 2), ct * 1024
            fr.append((pre + cvt_pairs(b), f'buffer_store_dwordx4 {V(b,4)}, v{V_L16}, {S(R_KV,4)}, s{sKVO+m} offen offset:{imm}{ST}'))
        return fr
    for p in range(3):
        for f, (cv, stt) in enumerate(epi(p)):
            g = (p + 1) * 256 + 6 + f * 24
            for c in cv: g = sc.place(c, g)
            sc.place(stt, g + 1)
    for p in range(4): sc.v[256 * p + 255] += stamp(3 + p, 3)
    L += sc.emit()
    L += ['s_nop 7']
    for cv, stt in epi(3):
        L += cv + [stt]
    L += stamp(7, 3) + stamp_out(0, 3, 8)
    L += ['K1_END:', 's_endpgm']
    return autowait(L), P.sc.overflow()

V_AV, V_AK, V_LB = 2, 3, 8
V_E = 4
V_NB, V_P, V_NA = 16, 32, 48
V_OB, V_OA = 64, 128
A_QL, A_K, A_V, A_ONE, A_L = 0, 32, 64, 96, 100
RING = 32768
NINF = 0xff800000

def qfrag(X, qs, ds):
    f = ((0 if X == 'A' else 2) + qs) * 2 + ds % 2
    return A(A_QL + 4 * f, 4) if ds < 2 else V(192 + 8 * f, 4)
def stile(buf, kvt, qs):
    return 196 + 8 * (buf * 4 + qs * 2 + kvt)
def otile(X, dt, qs):
    return (V_OA if X == 'A' else V_OB) + ((qs * 4 + dt // 2) * 2 + dt % 2) * 4
def ntile(X, kvt, qs):
    return (V_NA if X == 'A' else V_NB) + (kvt * 2 + qs) * 4
def lacc(X, qs):
    return A_L + (0 if X == 'A' else 8) + 4 * qs

def qk_mfmas(X, buf, czero=False):
    mf = []
    for kvt in range(2):
        for qs in range(2):
            d = V(stile(buf, kvt, qs), 4)
            for ds in range(4):
                c = d if ds else ('0' if czero else V(ntile(X, kvt, qs), 4))
                mf.append(mfma(d, A(A_K + 4 * (kvt * 4 + ds), 4), qfrag(X, qs, ds), c))
    return mf
def pv_mfmas(X, buf, vreg=A_V):
    mf = []
    for qs in range(2):
        l = A(lacc(X, qs), 4)
        mf.append(mfma(l, A(A_ONE, 4), V(V_P + 8 * buf + 4 * qs, 4), l))
    for dt in range(8):
        for qs in range(2):
            o = V(otile(X, dt, qs), 4)
            mf.append(mfma(o, A(vreg + 4 * dt, 4), V(V_P + 8 * buf + 4 * qs, 4), o))
    return mf
def sm_ops(buf):
    ex, cv = [], []
    for i in range(16):
        qs, kvt, r = i // 8, (i // 4) % 2, i % 4
        ex.append(f'v_exp_f32 v{V_E + i % 4}, v{stile(buf, kvt, qs) + r}')
    for c in range(8):
        cv.append(f'v_cvt_pk_bf16_f32 v{V_P + 8 * buf + c}, v{V_E + (2 * c) % 4}, v{V_E + (2 * c + 1) % 4}')
    return ex, cv
def k_reads(ad):
    return [f'ds_read_b128 {A(A_K + 4 * i, 4)}, v{ad} offset:{i * 1024}' for i in range(8)]
def v_reads(dst=A_V):
    return [f'ds_read_b128 {A(dst + 4 * i, 4)}, v{V_AV} offset:{8192 + i * 1024}' for i in range(8)]

def gen_k2(code_bytes):
    nm = 'k2_kernel'
    L = entry(nm, 'K2_END', code_bytes) + stamp(0, 15)
    R_XN, R_WQ, R_WG, R_WU, R_KV, R_A3, R_H = 32, 36, 40, 44, 48, 52, 56
    sH, sJ, sQA, sQB, sXA, sXB, sT, sT1, sT2, sM0W, sWQ, sWG = 60, 61, 62, 63, 64, 65, 66, 67, 68, 69, 70, 71
    sHA, sHB, sCA, sCB, sSRC, sSLOT, sM0R, sM0B, sCNT, sNINF, sTHR = 72, 73, 74, 75, 76, 77, 78, 79, 80, 81, 82
    sMASK, sFLAG = 84, 92
    L += ['s_and_b32 s30, s2, 7', 's_lshl_b32 s30, s30, 2', 's_bfe_u32 s31, s2, 0x20003', f's_add_u32 s{sH}, s30, s31',
          f's_lshr_b32 s{sJ}, s2, 5', f's_lshl_b32 s30, s{sJ}, 2', f's_add_u32 s{sQB}, s30, s3',
          's_sub_u32 s31, 60, s30', f's_add_u32 s{sQA}, s31, s3',
          f's_lshl_b32 s{sXA}, s{sQA}, 15', f's_lshl_b32 s{sXB}, s{sQB}, 15', f'v_lshlrev_b32 v{V_L16}, 4, v0']
    L += srd_off(R_XN, P_WS, P_WS + 1, WS_XN, XN_SZ)
    def x_items(ss):
        it = [f's_add_u32 s{sT1}, s{sXA}, {ss * 4096}', f's_add_u32 s{sT2}, s{sXB}, {ss * 4096}']
        for k in range(2):
            for rt in range(4):
                it.append(f'buffer_load_dwordx4 {areg(2 * ss + k, rt)}, v{V_L16}, {S(R_XN,4)}, s{sT1 if rt < 2 else sT2} offen offset:{k * 2048 + (rt % 2) * 1024}')
        return it
    L += x_items(0)
    L += srd(R_WQ, P_WQ, P_WQ + 1, 4 * MB) + srd(R_WG, P_WG, P_WG + 1, 512 * 3584) + srd(R_WU, P_WU, P_WU + 1, 512 * 3584)
    t = V_T
    L += [f's_lshl_b32 s30, s3, 18', f's_lshl_b32 s31, s{sH}, 8', f's_add_u32 s{sWQ}, s30, s31',
          f's_min_u32 s31, s{sH}, 27', 's_lshl_b32 s31, s31, 7', f's_mul_i32 s30, s3, {32 * 3584}', f's_add_u32 s{sWG}, s30, s31',
          f's_lshl_b32 s{sM0W}, s3, 12']
    L += [f'v_lshrrev_b32 v{t}, 2, v0', f'v_mul_u32_u24 v{t}, 3584, v{t}', f'v_lshrrev_b32 v{t+1}, 4, v0', f'v_and_b32 v{t+1}, 2, v{t+1}',
          f'v_and_b32 v{t+2}, 3, v0', f'v_xor_b32 v{t+1}, v{t+1}, v{t+2}', f'v_lshl_add_u32 v{V_AD}, v{t+1}, 4, v{t}',
          f'v_add_u32 v{V_AD+1}, {16 * 3584 - 1024}, v{V_AD}']
    def w_items(st):
        p, s4 = st // 4, st % 4
        if p < 2:
            it = [f's_add_u32 m0, s{sM0W}, {s4 * 16384}', f's_add_u32 s{sT}, s{sWG}, {s4 * 128 * 3584 + p * 64}']
            it += [f'buffer_load_dwordx4 v{V_AD+i}, {S(R_WG,4)}, s{sT} offen offset:{i*1024} lds ; @W{st}' for i in range(2)]
            it += [f's_add_u32 m0, s{sM0W}, {s4 * 16384 + 2048}', 's_nop 0']
            it += [f'buffer_load_dwordx4 v{V_AD+i}, {S(R_WU,4)}, s{sT} offen offset:{i*1024} lds ; @W{st}' for i in range(2)]
        else:
            it = [f's_add_u32 m0, s{sM0W}, {s4 * 16384}', f's_add_u32 s{sT}, s{sWQ}, {s4 * 128 * 8192 + (p % 2) * 128}']
            it += [f'buffer_load_dwordx4 v{V_WD+i}, {S(R_WQ,4)}, s{sT} offen offset:{i*1024} lds ; @W{st}' for i in range(4)]
        return it
    L += w_items(0) + x_items(1) + w_items(1) + x_items(2) + x_items(3) + w_items(2) + x_items(4) + w_items(3)
    L += w_dma_voff(V_WD, 8192, t) + tr_addrs(V_TR, t)
    L += [f'v_lshrrev_b32 v{t}, 4, v0', f'v_bfe_u32 v{t+1}, v0, 2, 2', f'v_lshl_add_u32 v{t+1}, v{t}, 3, v{t+1}', f'v_lshlrev_b32 v{t+1}, 6, v{t+1}',
          f'v_and_b32 v{t+2}, 3, v0', f'v_lshl_add_u32 v{t+1}, v{t+2}, 3, v{t+1}', f'v_and_b32 v{t}, 1, v{t}',
          f'v_lshl_add_u32 v{V_AR}, v{t}, 5, v{t+1}', f'v_xor_b32 v{V_AR+1}, 32, v{V_AR}']
    L += [f's_lshl_b32 s30, s{sH}, 20', f's_add_u32 s30, s30, {WS_KV:#x}', f's_add_u32 s{R_KV}, s{P_WS}, s30', f's_addc_u32 s{R_KV+1}, s{P_WS+1}, 0',
          f's_lshl_b32 s30, s{sJ}, 16', f's_sub_u32 s{R_KV+2}, 0x100000, s30', f's_mov_b32 s{R_KV+3}, 0x20000']
    L += srd_off(R_A3, P_WS, P_WS + 1, WS_A3, A3_SZ) + srd_off(R_H, P_WS, P_WS + 1, WS_A3, A3_SZ)
    L += [f's_cmp_lt_u32 s{sH}, 28', f's_cselect_b32 s{R_H+2}, s{R_H+2}, 0']
    for q, hh, cc in ((sQA, sHA, sCA), (sQB, sHB, sCB)):
        L += [f's_lshr_b32 s30, s{q}, 1', f's_mul_i32 s30, s30, {184 * 4096}', f's_and_b32 s31, s{q}, 1', 's_lshl_b32 s31, s31, 11',
              's_add_u32 s30, s30, s31', f's_min_u32 s31, s{sH}, 27', 's_lshl_b32 s31, s31, 13', f's_add_u32 s{hh}, s30, s31',
              f's_lshl_b32 s31, s{sH}, 14', 's_add_u32 s30, s30, s31', f's_add_u32 s{cc}, s30, {56 * 4096}']
    L += ['s_cmp_lt_u32 s3, 2', 's_cselect_b32 s30, 0xc000, 0', f's_add_u32 s{sSRC}, s30, s{sM0W}', f's_add_u32 s{sM0B}, s{sM0W}, {RING}',
          f's_mov_b32 s{sNINF}, {NINF:#x}', f's_mov_b32 s{sTHR}, 0x53800000', f's_mov_b64 s[{sFLAG}:{sFLAG+1}], 0']
    L += [f'v_lshrrev_b32 v{t}, 4, v0', f'v_lshlrev_b32 v{t}, 2, v{t}', f'v_and_b32 v{t+1}, 15, v0']
    for i in range(4):
        L += [f'v_add_u32 v{t+2}, {i}, v{t}', f'v_cmp_gt_u32 s[{sMASK+2*i}:{sMASK+2*i+1}], v{t+2}, v{t+1}']
    V_C2 = 3
    L += [f'v_mov_b32 v{V_C2}, 0xbdd2d3e8']
    P = Passes(['G', 'G', 'T', 'T'])
    sc = P.sc
    L += stamp(1, 15) + ['WAITVM W0', 's_barrier'] + stamp(2, 15) + P.tr_reads(0) + P.tr_reads(1)
    def kv_items(i):
        so = i * 16384
        it = [f's_add_u32 m0, s{sM0B}, {((i + 5) % 8) * 16384}']
        if i >= 0: it += [f's_add_u32 s{sT}, s{sSRC}, {so}']
        else: it += [f's_add_u32 s{sT}, s{sM0W}, {(i + 3) * 16384}']
        it += [f'buffer_load_dwordx4 v{V_L16}, {S(R_KV,4)}, s{sT} offen offset:{k*1024} lds ; @KV{i}' for k in range(4)]
        return it
    ev = [(8 + 32 * (ss - 5), x_items(ss)) for ss in range(5, 8)]
    for st in range(4, 16):
        ev.append((8 * (8 * (st - 4) + 6), [x for x in w_items(st) if x != 's_nop 0']))
    for i in range(-3, 3):
        ev.append((768 + 8 + 24 * (i + 3), kv_items(i)))
    ev.append((8 * (8 * 14 + 6), kv_items(3)))
    ev.sort(key=lambda e: e[0])
    for g, it in ev:
        P.dma_group(it, g, vmspace=(1 if g < 120 else 3))
    sc.s[8 * (8 * 14 + 5) + 6].insert(0, 'WAITVM KV-2')
    for i, r in enumerate(k_reads(V_AV)):
        sc.put(1024 - 16 + i, r)
    if PF:
        pf = ['s_lshl_b32 s30, s2, 2', 's_add_u32 s30, s30, s3', 's_cmp_lt_u32 s30, 512', f's_cselect_b32 s96, s{P_WO}, s{P_WD}', f's_cselect_b32 s97, s{P_WO+1}, s{P_WD+1}',
              f's_cselect_b32 s98, {4*MB}, s93', 's_and_b32 s30, s30, 511', 's_lshl_b32 s30, s30, 13', f'v_lshl_add_u32 v14, v0, 7, s30']
        sc.s[300] += [f's_mov_b32 s93, {1792*1024}'] + pf[:-1]
        sc.v[300] += pf[-1:]
        sc.place('buffer_load_dword v14, v14, s[96:99], 0 offen', 302)
    gp = 256 + 6
    ne = 0
    for p in range(2):
        gp = max(gp, (p + 1) * 256 + 6)
        for rt in range(4):
            bg = rbase(p) + (rt * 2) * 8; bu = bg + 8
            last = 0
            for e in range(8):
                tm = V_T + ne % 8; ne += 1
                ops = [f'v_mul_f32 v{tm}, v{bg+e}, v{bg+e}', f'v_fmaak_f32 v{tm}, v{tm}, v{V_C2}, 0xc0135761', f'v_mul_f32 v{tm}, v{tm}, v{bg+e}',
                       f'v_exp_f32 v{tm}, v{tm}', f'v_add_f32 v{tm}, 1.0, v{tm}', f'v_rcp_f32 v{tm}, v{tm}',
                       f'v_mul_f32 v{tm}, v{tm}, v{bg+e}', f'v_mul_f32 v{bu+e}, v{tm}, v{bu+e}']
                g = gp
                for o in ops: g = sc.place(o, g) + 1
                last = max(last, g)
                gp += 9
            g = last
            for c in cvt_pairs(bu): g = sc.place(c, g)
            sreg = sHA if rt < 2 else sHB
            if p == 1 and rt % 2 == 0:
                sc.place(f's_add_u32 s{sreg}, s{sreg}, 4096', g - 8, g)
            g = sc.place(f'buffer_store_dwordx4 {V(bu,4)}, v{V_L16}, {S(R_H,4)}, s{sreg} offen offset:{(rt % 2) * 1024}{ST}', g + 1)
            assert g < (p + 2) * 256 + 220, g
    g = 768 + 34
    for f in range(8):
        b = rbase(2) + 8 * f
        for c in cvt_pairs(b): g = sc.place(c, g)
        g += 1
        for i in range(4): g = sc.place(f'v_accvgpr_write_b32 a{A_QL + 4 * f + i}, v{b + i}', g)
        g += 1
        for i in range(8): sc.place(f'v_mov_b32 v{b + i}, 0', g)
    g = 768 + 130
    g = sc.place(f'v_mov_b32 v{V_T+8}, 0x3f803f80', g) + 1
    for i in range(4): g = sc.place(f'v_accvgpr_write_b32 a{A_ONE + i}, v{V_T+8}', g)
    for i in range(16): g = sc.place(f'v_accvgpr_write_b32 a{A_L + i}, 0', g)
    sc.place(f'v_add_u32 v{V_AV}, {RING + 2 * 16384}, v{V_L16}', 768 + 130, 1000)
    for p in range(4): sc.v[256 * p + 255] += stamp(3 + p, 15)
    L += sc.emit()
    ov = sc.overflow()
    L += ['s_barrier', f'v_add_u32 v{V_LB}, {RING}, v{V_L16}', f'v_add_u32 v{V_AK}, {RING + 3 * 16384}, v{V_L16}']
    L += [f'v_mov_b32 v{V_NB + i}, 0' for i in range(16)]
    def mask_ops(X):
        o = [f'v_mov_b32 v{ntile(X,1,0) + i}, s{sNINF}' for i in range(4)]
        for kq in range(2):
            o += [f'v_cndmask_b32 v{ntile(X,kq,kq) + i}, v{ntile(X,kq,kq) + i}, v{ntile(X,1,0)}, s[{sMASK+2*i}:{sMASK+2*i+1}]' for i in range(4)]
        return o
    L += [f's_cmp_lg_u32 s{sQB}, 0', 's_cbranch_scc1 K2_NM0'] + mask_ops('B') + ['K2_NM0:']
    for f in range(4): L += cvt_pairs(192 + 8 * f)
    L += ['s_nop 0']
    ps = Sched(qk_mfmas('A', 0, True) + qk_mfmas('B', 1))
    g = 0
    for f in range(4, 8):
        for c in cvt_pairs(192 + 8 * f): g = ps.place(c, g)
    g = 0
    for x in kv_items(4): g = ps.place(x, g) + 1
    for i, r in enumerate(k_reads(V_AK)[:4]): ps.place(r, 24 + i)
    zero = [f'v_mov_b32 v{V_OB + i}, 0' for i in range(64)]
    while zero and ps.place(zero[0], 0, force=False) is not None: zero.pop(0)
    L += ps.emit() + k_reads(V_AK)[4:] + zero
    def rowmax(X, buf):
        o = []
        m = [9, 10]; tm = [11, 12]
        for qs in range(2):
            a, b = stile(buf, 0, qs), stile(buf, 1, qs)
            o += [f'v_max3_f32 v{m[qs]}, v{a}, v{a+1}, v{a+2}', f'v_max3_f32 v{tm[qs]}, v{a+3}, v{b}, v{b+1}',
                  f'v_max3_f32 v{m[qs]}, v{m[qs]}, v{b+2}, v{b+3}', f'v_max_f32 v{m[qs]}, v{m[qs]}, v{tm[qs]}']
        for sw in ('v_permlane16_swap_b32', 'v_permlane32_swap_b32'):
            o += [f'v_mov_b32 v{tm[qs]}, v{m[qs]}' for qs in range(2)] + ['s_nop 0']
            o += [f'{sw} v{m[qs]}, v{tm[qs]}' for qs in range(2)]
            o += [f'v_max_f32 v{m[qs]}, v{m[qs]}, v{tm[qs]}' for qs in range(2)]
        for qs in range(2):
            for kvt in range(2):
                o += [f'v_sub_f32 v{stile(buf,kvt,qs)+i}, v{stile(buf,kvt,qs)+i}, v{m[qs]}' for i in range(4)]
                o += [f'v_sub_f32 v{ntile(X,kvt,qs)+i}, 0, v{m[qs]}' for i in range(4)]
        return o
    L += rowmax('A', 0)
    ex, cv = sm_ops(0)
    for c in range(8):
        L += ex[2 * c:2 * c + 2]
        if c: L.append(cv[c - 1])
    L += rowmax('B', 1) + [cv[7]]
    L += [f's_mov_b32 s{sSLOT}, {5 * 16384}', f's_mov_b32 s{sM0R}, {2 * 16384}', f's_add_u32 s{sSRC}, s{sSRC}, {5 * 16384}',
          f'v_add_u32 v{V_AV}, {5 * 16384}, v{V_LB}', f'v_add_u32 v{V_AK}, {4 * 16384}, v{V_LB}',
          f's_mov_b32 s{sCNT}, s{sQB}', 'WAITVM KV0', 's_waitcnt lgkmcnt(0)']
    L = autowait(L)
    def step(qk, pv, buf, first, last, rdK, mask=None, loop=None, prevK=True):
        s_ = Sched(qk_mfmas(qk, 1 - buf) + pv_mfmas(pv, 1 - buf))
        ex, cv = sm_ops(buf)
        for i, e in enumerate(ex): s_.put(2 * i, e)
        if first:
            s_.put(0, 's_barrier')
            for i, r in enumerate(v_reads()): s_.put(1 + 2 * i, r)
            s_.put(1, f's_add_u32 m0, s{sM0B}, s{sM0R}')
            s_.put(2, f's_add_u32 s{sM0R}, s{sM0R}, 16384'); s_.put(3, f's_and_b32 s{sM0R}, s{sM0R}, 0x1ffff')
            for k in range(4):
                s_.put(5 + 8 * k, f'buffer_load_dwordx4 v{V_L16}, {S(R_KV,4)}, s{sSRC} offen offset:{k*1024} lds')
            s_.put(30, f's_add_u32 s{sSRC}, s{sSRC}, 16384')
            s_.put(17, 's_waitcnt lgkmcnt(4)')
            s_.put(25, f's_waitcnt lgkmcnt({4 if rdK else 0})')
        if prevK: s_.put(7, f's_waitcnt lgkmcnt({3 if first else 0})')
        if rdK:
            for i, r in enumerate(k_reads(rdK)): s_.put(17 + 2 * i, r)
        for c, x in enumerate(cv): s_.put(4 * c + 3, x)
        w = []
        if last:
            s_.put(27, f's_add_u32 s{sSLOT}, s{sSLOT}, 16384'); s_.put(28, f's_and_b32 s{sSLOT}, s{sSLOT}, 0x1ffff')
            s_.put(32, f'v_mov_b32 v{V_AK}, v{V_AV}'); s_.put(32, f'v_add_u32 v{V_AV}, s{sSLOT}, v{V_LB}')
            w.append('vmcnt(16)')
        if rdK: w.append('lgkmcnt(4)')
        if w: s_.put(33, 's_waitcnt ' + ' '.join(w))
        if mask:
            s_.put(19, f's_cmp_eq_u32 s{sCNT}, 1'); s_.put(20, f's_cbranch_scc1 {mask}'); s_.s[20].append(f'{mask}_RET:')
        if loop:
            s_.put(31, f's_sub_u32 s{sCNT}, s{sCNT}, 1'); s_.put(32, f's_cmp_lg_u32 s{sCNT}, 0')
            s_.s[33].append(f's_cbranch_scc1 {loop}')
        return s_.emit()
    def epilogue(X, sC):
        o = []
        r = [9, 10]
        for qs in range(2): o.append(f'v_accvgpr_read_b32 v{r[qs]}, a{lacc(X, qs)}')
        o += [f'v_max_f32 v11, v{r[0]}, v{r[1]}', f'v_add_f32 v11, v{r[0]}, v{r[1]}', f'v_cmp_ngt_f32 vcc, s{sTHR}, v11']
        o += [f'v_rcp_f32 v{r[qs]}, v{r[qs]}' for qs in range(2)]
        o += [f's_or_b64 s[{sFLAG}:{sFLAG+1}], s[{sFLAG}:{sFLAG+1}], vcc']
        for p in range(4):
            o.append(f's_add_u32 s{sT}, s{sC}, {p * 4096}')
            for qs in range(2):
                b = otile(X, 2 * p, qs)
                o += [f'v_mul_f32 v{b+i}, v{b+i}, v{r[qs]}' for i in range(8)] + cvt_pairs(b)
                o.append(f'buffer_store_dwordx4 {V(b,4)}, v{V_L16}, {S(R_A3,4)}, s{sT} offen offset:{qs * 1024}{ST}')
        return o
    L += stamp(7, 15)
    L += [f's_cmp_eq_u32 s{sCNT}, 0', 's_cbranch_scc1 K2_TB', '.p2align 3', 'K2_DUAL:']
    L += step('A', 'A', 1, True, False, None, mask='K2_MB')
    L += step('B', 'B', 0, False, True, V_AK, loop='K2_DUAL', prevK=False)
    L += ['K2_TB:'] + stamp(8, 15)
    L += step('A', 'A', 1, True, False, V_AK)
    L += step('A', 'B', 0, False, True, V_AV)
    L += [f's_lshl_b32 s30, s{sJ}, 2', f's_sub_u32 s{sCNT}, 29, s30']
    L += stamp(9, 15) + epilogue('B', sCB) + stamp(10, 15)
    L += ['.p2align 3', 'K2_SINGLE:']
    L += step('A', 'A', 1, True, True, V_AV, mask='K2_MA')
    L += step('A', 'A', 0, True, True, V_AV, loop='K2_SINGLE')
    L += stamp(11, 15) + ['s_barrier'] + v_reads()
    ex, cv = sm_ops(1)
    L += ex[0:4] + cv[0:2]
    f1 = Sched(pv_mfmas('A', 0))
    f1.put(1, 's_waitcnt lgkmcnt(4)'); f1.put(9, 's_waitcnt lgkmcnt(0)')
    g = 0
    for c in range(2, 8):
        f1.put(g, ex[2 * c]); f1.put(g + 1, ex[2 * c + 1]); f1.put(g + 2, cv[c]); g += 3
    f1.put(12, f's_add_u32 s{sSLOT}, s{sSLOT}, 16384'); f1.put(13, f's_and_b32 s{sSLOT}, s{sSLOT}, 0x1ffff')
    f1.put(14, f'v_add_u32 v{V_AV}, s{sSLOT}, v{V_LB}')
    f1.put(15, 's_waitcnt vmcnt(12)'); f1.put(16, 's_barrier')
    L += f1.emit() + v_reads(A_K)
    f2 = Sched(pv_mfmas('A', 1, A_K))
    for dt in range(8): f2.put(1 + 2 * dt, f's_waitcnt lgkmcnt({7 - dt})')
    L += f2.emit()
    L += ['s_waitcnt vmcnt(0)', f's_sub_u32 s{sCNT}, 3, s3', 'K2_XB:', f's_cmp_eq_u32 s{sCNT}, 0', 's_cbranch_scc1 K2_XBD',
          's_barrier', f's_sub_u32 s{sCNT}, s{sCNT}, 1', 's_branch K2_XB', 'K2_XBD:']
    L += stamp(12, 15) + epilogue('A', sCA) + stamp(13, 15) + stamp_out(1, 15, 14)
    L += ['K2_END:', 's_endpgm']
    L += ['K2_MB:'] + mask_ops('B') + ['s_branch K2_MB_RET']
    L += ['K2_MA:'] + mask_ops('A') + ['s_branch K2_MA_RET']
    return L, ov

def gen_k3(code_bytes):
    nm = 'k3_kernel'
    L = entry(nm, 'K3_END', code_bytes) + stamp(0, 3)
    R_A3, R_WD, R_WO, R_X, R_OUT = 32, 36, 40, 44, 48
    sRB, sCB, sAH, sAC, sWD, sWO, sM0, sT, sT1, sO = 60, 61, 62, 63, 64, 65, 66, 67, 68, 69
    V_XR, V_OA_, V_WB3, V_AC3 = 24, 12, 64, 128
    L += srd_off(R_A3, P_WS, P_WS + 1, WS_A3, A3_SZ) + srd(R_WD, P_WD, P_WD + 1, 1792 * 1024) + srd(R_WO, P_WO, P_WO + 1, 4 * MB)
    L += ['s_and_b32 s30, s2, 7', 's_lshl_b32 s30, s30, 2', 's_bfe_u32 s31, s2, 0x20003', f's_add_u32 s{sRB}, s30, s31', f's_lshr_b32 s{sCB}, s2, 5',
          f's_mul_i32 s30, s{sRB}, {184 * 4096}', f's_mul_i32 s31, s3, {14 * 4096}', f's_add_u32 s{sAH}, s30, s31',
          's_lshl_b32 s31, s3, 17', 's_add_u32 s30, s30, s31', f's_add_u32 s{sAC}, s30, {56 * 4096}',
          f's_lshl_b32 s30, s{sCB}, 7', f's_mul_i32 s31, s3, {14 * 32768}', f's_add_u32 s{sWD}, s30, s31',
          's_lshl_b32 s31, s3, 20', f's_add_u32 s{sWO}, s30, s31', f's_mul_i32 s{sM0}, s3, 40960',
          f'v_lshlrev_b32 v{V_L16}, 4, v0']
    t = 16
    L += [f'v_lshrrev_b32 v{t}, 3, v0', f'v_lshlrev_b32 v{t}, 10, v{t}', f'v_lshrrev_b32 v{t+1}, 4, v0', f'v_lshlrev_b32 v{t+1}, 1, v{t+1}',
          f'v_and_b32 v{t+2}, 7, v0', f'v_xor_b32 v{t+1}, v{t+1}, v{t+2}', f'v_lshl_add_u32 v{V_WD}, v{t+1}, 4, v{t}',
          f'v_lshl_add_u32 v{V_OA_}, v{t+2}, 4, v{t}']
    for i in range(1, 4):
        L.append(f'v_add_u32 v{V_WD+i}, {i * 7168}, v{V_WD}')
    NSS = 23
    def w_items(ss):
        it = []
        for k in range(2):
            r, base, ks = (R_WD, sWD, 2 * ss + k) if ss < 7 else (R_WO, sWO, 2 * (ss - 7) + k)
            it += [f's_add_u32 m0, s{sM0}, {(ss % 5) * 8192 + k * 4096}', f's_add_u32 s{sT}, s{base}, {ks * 32768}']
            it += [f'buffer_load_dwordx4 v{V_WD+i}, {S(r,4)}, s{sT} offen offset:{i*1024} lds ; @W{ss}' for i in range(4)]
        return it
    def af(ss, k, rt):
        return A((ss % 4) * 32 + (k * 4 + rt) * 4, 4)
    def a_items(ss):
        it = []
        for k in range(2):
            base, ks = (sAH, 2 * ss + k) if ss < 7 else (sAC, 2 * (ss - 7) + k)
            it += [f's_add_u32 s{sT1}, s{base}, {ks * 4096}']
            it += [f'buffer_load_dwordx4 {af(ss, k, rt)}, v{V_L16}, {S(R_A3,4)}, s{sT1} offen offset:{rt*1024}{LD}' for rt in range(4)]
        return it
    L += w_items(0) + a_items(0) + w_items(1) + a_items(1) + w_items(2) + a_items(2) + w_items(3)
    L += srd(R_X, P_X, P_X + 1, 2 * MB) + srd(R_OUT, P_OUT, P_OUT + 1, 2 * MB)
    L += [f's_lshl_b32 s30, s{sRB}, 2', 's_add_u32 s30, s30, s3', 's_lshl_b32 s30, s30, 14', f's_lshl_b32 s31, s{sCB}, 7', f's_add_u32 s{sO}, s30, s31',
          f's_add_u32 s{sO+1}, s{sO}, 8192']
    L += [f'v_lshrrev_b32 v{t}, 2, v0', f'v_bfe_u32 v{t+1}, v0, 3, 2', f'v_lshlrev_b32 v{t}, 7, v{t}', f'v_and_b32 v{t+2}, 3, v0',
          f'v_lshl_add_u32 v{t}, v{t+2}, 3, v{t}', f'v_add_u32 v{t}, s{sM0}, v{t}']
    for ct in range(4):
        L += [f'v_xor_b32 v{t+2}, {ct}, v{t+1}', f'v_lshl_add_u32 v{V_TR+ct}, v{t+2}, 5, v{t}']
    def wf(ss, ct, k):
        return V_WB3 + (ss % 2) * 32 + (ct * 2 + k) * 4
    def tr_reads(ss):
        return [f'ds_read_b64_tr_b16 {V(wf(ss, ct, k) + 2 * hf, 2)}, v{V_TR+ct} offset:{(ss % 5) * 8192 + k * 4096 + hf * 2048}'
                for ct in range(4) for k in range(2) for hf in range(2)]
    L += stamp(1, 3) + ['WAITVM W0'] + stamp(2, 3) + tr_reads(0)
    mf = []
    for ss in range(NSS):
        for ct in range(4):
            for rt in range(4):
                acc = V(V_AC3 + (rt * 4 + ct) * 4, 4)
                for k in range(2):
                    mf.append(mfma(acc, V(wf(ss, ct, k), 4), af(ss, k, rt), '0' if (ss == 0 and k == 0) else acc))
    sc = Sched(mf)
    for ss in range(NSS):
        g0 = 32 * ss
        if ss + 1 < NSS:
            sc.put(g0, f'WAITVM W{ss+1}')
            for i, r in enumerate(tr_reads(ss + 1)): sc.put(g0 + 2 * i + 1, r)
        it = (w_items(ss + 4) if ss + 4 < NSS else []) + (a_items(ss + 3) if ss + 3 < NSS else [])
        g = g0 + 1
        for x in it:
            g = sc.place(x, g, vmspace=0) + 1
            if kind_of(x) == 'm' and x.endswith(('1024', '1024 lds ; @W%d' % (ss + 4))): g += 1
        assert g <= g0 + 33, (ss, g)
    g0 = 32 * 20
    sc.put(g0 + 2, f'buffer_load_dwordx4 {V(V_XR,4)}, v{V_OA_}, {S(R_X,4)}, s{sO} offen')
    sc.put(g0 + 6, f'buffer_load_dwordx4 {V(V_XR+4,4)}, v{V_OA_}, {S(R_X,4)}, s{sO+1} offen')
    red = [f'v_lshrrev_b32 v{t}, 4, v0', f'v_mul_u32_u24 v{t}, 288, v{t}', f'v_and_b32 v{t+1}, 15, v0', f'v_lshl_add_u32 v{t}, v{t+1}, 4, v{t}',
           f'v_add_u32 v{t}, s{sM0}, v{t}',
           f'v_and_b32 v{t+1}, 7, v0', f'v_mul_u32_u24 v{t+1}, 576, v{t+1}', f'v_lshrrev_b32 v{t+2}, 3, v0', f'v_lshl_add_u32 v{t+1}, v{t+2}, 4, v{t+1}',
           f's_mul_i32 s30, s3, 4608', f'v_add_u32 v{t+1}, s30, v{t+1}', f'v_add_u32 v{t+2}, 81920, v{t+1}']
    g = 32 * 21
    for x in red: g = sc.place(x, g) + 1
    for i, ss in enumerate((0, 3, 6, 10, 14, 18, 22)): sc.v[32 * ss + 31] += stamp(3 + i, 3)
    L += sc.emit()
    L += ['s_nop 4']
    order = [(rt, ct) for ct in range(4) for rt in range(4)]
    L += [f'ds_write_b128 v{t}, {V(V_AC3 + (rt * 4 + ct) * 4, 4)} offset:{(rt * 4 + ct) * 1152}' for rt, ct in order]
    X = 32
    for i in range(8):
        L += [f'v_lshlrev_b32 v{X+2*i}, 16, v{V_XR+i}', f'v_and_b32 v{X+2*i+1}, 0xffff0000, v{V_XR+i}']
    L += ['s_waitcnt lgkmcnt(0)', 's_barrier']
    for s_ in range(2):
        for src in range(4):
            for gg in range(2):
                L.append(f'ds_read_b128 {V(64 + ((s_ * 4 + src) * 2 + gg) * 4, 4)}, v{t + 1 + src // 2} offset:{(src % 2) * 40960 + gg * 288 + s_ * 128}')
    for s_ in range(2):
        b = 64 + s_ * 32
        for i in range(8):
            L += [f'v_add_f32 v{b+i}, v{b+i}, v{b+8+i}']
        for i in range(8):
            L += [f'v_add_f32 v{b+16+i}, v{b+16+i}, v{b+24+i}']
        for i in range(8):
            L += [f'v_add_f32 v{b+i}, v{b+i}, v{b+16+i}']
        for i in range(8):
            L += [f'v_add_f32 v{b+i}, v{b+i}, v{X+8*s_+i}']
        L += cvt_pairs(b)
        L += [f'buffer_store_dwordx4 {V(b,4)}, v{V_OA_}, {S(R_OUT,4)}, s{sO+s_} offen']
    L += stamp(10, 3) + stamp_out(2, 3, 11)
    L += ['K3_END:', 's_endpgm']
    return autowait(L), sc.overflow()

def build(kernels):
    hdr = open('cdna_kernels/' + NAME + '.s.ref').read().split('; Override launch')[0]
    out = hdr
    for k, _ in kernels:
        out += f'; @launch kernel={k} grid=(256,1,1) block=(256,1,1) lds={LDS_SZ}\n'
    out += '.amdgcn_target "amdgcn-amd-amdhsa--gfx950"\n.text\n'
    for k, lines in kernels:
        out += fmt(lines) + '\n'
    out += '.section .rodata,"a"\n'
    for k, _ in kernels:
        out += '.p2align 6\n' + kdesc(k) + '\n'
    return out

def sizes(path):
    import subprocess
    subprocess.run(['clang', '-x', 'assembler', '-target', 'amdgcn-amd-amdhsa', '-mcpu=gfx950', '-c', path, '-o', '_gen.o'], check=True)
    o = subprocess.run(['llvm-objdump', '-t', '_gen.o'], capture_output=True, text=True).stdout
    sym = {l.split()[-1]: int(l.split()[0], 16) for l in o.splitlines() if '.text' in l and len(l.split()) >= 5}
    return sym

if __name__ == '__main__':
    path = sys.argv[1] if len(sys.argv) > 1 else 'out.s'
    for a in sys.argv[2:]:
        k, v = a.split('=')
        globals()[k] = eval(v)
    gens = [('k1_kernel', gen_k1, 'K1_END'), ('k2_kernel', gen_k2, 'K2_END'), ('k3_kernel', gen_k3, 'K3_END')]
    cb = {k: 4096 for k, _, _ in gens}
    for it in range(2):
        ks = []
        for k, f, e in gens:
            lines, ov = f(cb[k])
            ks.append((k, lines))
            if it: print(k, 'overflow', ov, 'lines', len(lines), 'bytes', cb[k], file=sys.stderr)
        open(path, 'w').write(build(ks))
        sym = sizes(path)
        cb = {k: (sym[e] - sym[k] - 64) & ~63 for k, _, e in gens}
```

```python
import sys
from asmlib import *
import gen as G
from gen import (NAME, MB, V_L16, V_TR, V_WD, V_AD, V_AR, V_T, V_WB, V_ACC, V_R, QSCALE, w_dma_voff, tr_addrs, areg, rbase,
                 Passes, cvt_pairs, V_AV, V_AK, V_LB, V_E, V_NB, V_P, V_NA, V_OB, V_OA, A_QL, A_K, A_V, A_ONE, A_L, RING, NINF,
                 qfrag, stile, otile, ntile, lacc, qk_mfmas, pv_mfmas, sm_ops, k_reads, v_reads)

WS_XN, WS_KV, WS_A3, WS_FLG, WS_W3, WS_PROF = 0, 2 * MB, 34 * MB, 57 * MB, 58 * MB, 64 * MB
LDS_SZ = 163840
ST = ' sc1'
LD = ' sc1'
PROF = False
TOUCH1 = 1
TOUCH2 = 1
BIGOFF = 0x7fffff00
SPIN = 1 << 16

R_X, R_CKV, R_WQ, R_WK, R_WV, R_W3, R_WG, R_WU, R_OUT, R_DBG, R_WS, R_KV, R_TMP = 4, 8, 12, 16, 20, 24, 28, 32, 36, 40, 44, 48, 52
sT, sT1, sT2, sU, sV, sK = 56, 57, 58, 59, 60, 61
sM0W, sJ, sH = 62, 63, 64
sA, sW1, sM0A, sKVO, sXO, sXN, sQS, sF2P = 65, 66, 67, 68, 69, 70, 71, 72
sAH, sAC, sWH, sWC, sO, sO1, sF4C = 65, 66, 67, 68, 69, 70, 71
sXA, sXB, sWQ, sWG, sHA, sHB, sPS, sPD = 73, 74, 75, 76, 77, 78, 79, 80
sSLOT, sM0R, sCNT, sNINF, sTHR = 73, 74, 75, 76, 77
sCA, sCB, sSRC, sM0B, sQB, sFLAG, sMASK, sFX, sSPIN = 81, 82, 83, 84, 85, 86, 88, 96, 97
V_SIG, V_POLL, V_PROF = 14, 13, 15

def stamp(k, vp=V_PROF):
    if not PROF: return []
    o = [f'v_mov_b32 v{vp}, 0'] if k == 0 else []
    return o + ['s_memrealtime s[98:99]', 's_memtime s[100:101]', 's_waitcnt lgkmcnt(0)', f'v_writelane_b32 v{vp}, s98, {2*k}', f'v_writelane_b32 v{vp}, s100, {2*k+1}']

def chain(sc, ops, g, hi=None):
    prev = None
    for o in ops:
        if isinstance(o, int):
            g += o; continue
        k = kind_of(o)
        if prev is not None and not (k == 'v' and prev == 'v'): g += 1
        g = sc.place(o, g, hi)
        prev = k
    return g + 1

def wsrd(r):
    return S(r, 4)

def gen_fused(code_bytes):
    nm = NAME + '_kernel'
    OOL = []
    L = [f'.globl {nm}', '.p2align 8', f'.type {nm},@function', f'{nm}:', 's_cmp_ge_u32 s2, 256', 's_cbranch_scc1 K_END']
    for r, off in ((R_CKV, 8), (R_WK, 24), (R_X, 0), (R_WQ, 16), (R_WV, 32), (R_W3, 40), (R_WG, 56), (R_WU, 64), (R_KV, 72), (R_OUT, 80), (R_DBG, 88), (R_WS, 96)):
        L.append(f's_load_dwordx2 s[{r}:{r+1}], s[0:1], {off}')
    L += [f's_getpc_b64 s[{R_TMP}:{R_TMP+1}]', f's_mov_b32 s{R_TMP+2}, {code_bytes}', f's_mov_b32 s{R_TMP+3}, 0x20000',
          f's_lshr_b32 s{sU}, s2, 3', f's_lshl_b32 s{sV}, s{sU}, 12', f'v_lshl_add_u32 v1, v0, 4, s{sV}',
          f'buffer_load_dword v2, v1, {wsrd(R_TMP)}, 0 offen',
          f'v_lshl_add_u32 v18, s{sU}, 8, v0',
          f'v_cmp_eq_u32 vcc, 0, v0', f'v_mov_b32 v19, {BIGOFF:#x}',
          'v_lshrrev_b32 v1, 6, v0', 'v_and_b32 v0, 63, v0', 'v_readfirstlane_b32 s3, v1', 'v_cndmask_b32 v19, v19, v0, vcc']
    for r, sz in ((R_CKV, 2 * MB), (R_WK, 4 * MB), (R_X, 2 * MB), (R_WQ, 4 * MB), (R_WV, 4 * MB), (R_WG, 512 * 3584), (R_WU, 512 * 3584),
                  (R_OUT, 2 * MB), (R_DBG, 256), (R_WS, 64 * MB)):
        L += [f's_mov_b32 s{r+2}, {sz:#x}', f's_mov_b32 s{r+3}, 0x20000']
    sRB, sH1 = sT1, sT2
    L += [f's_and_b32 s{sU}, s2, 1', f's_lshl_b32 s{sCA}, s{sU}, 20', f's_lshl_b32 s{sU}, s{sU}, 2', f's_bfe_u32 s{sV}, s2, 0x20003', f's_add_u32 s{sRB}, s{sU}, s{sV}',
          f's_bfe_u32 s{sU}, s2, 0x20001', f's_lshl_b32 s{sCB}, s{sU}, 11', f's_lshl_b32 s{sU}, s{sU}, 3', f's_lshr_b32 s{sV}, s2, 5', f's_add_u32 s{sH1}, s{sU}, s{sV}']
    L += [f'v_lshl_add_u32 v20, v18, 7, s{sCA}', 'v_lshrrev_b32 v21, 4, v18', 'v_and_b32 v22, 15, v18', 'v_lshlrev_b32 v21, 13, v21',
          'v_lshl_add_u32 v21, v22, 7, v21', f'v_add_u32 v18, s{sCB}, v21', 's_waitcnt lgkmcnt(0)']
    L += stamp(0, 39)
    if TOUCH1:
        L += [f'buffer_load_dword v20, v20, {wsrd(R_CKV)}, 0 offen', f'buffer_load_dword v21, v18, {wsrd(R_WK)}, 0 offen']
    L += [f's_lshl_b32 s{sU}, s{sRB}, 2', f's_add_u32 s{sU}, s{sU}, s3', f's_lshl_b32 s{sA}, s{sU}, 16',
          f's_lshl_b32 s{sV}, s{sH1}, 20', f's_lshl_b32 s{sU}, s{sU}, 15', f's_add_u32 s{sKVO}, s{sU}, s{sV}', f's_add_u32 s{sKVO}, s{sKVO}, {WS_KV:#x}',
          f's_lshl_b32 s{sU}, s3, 18', f's_lshl_b32 s{sV}, s{sH1}, 8', f's_add_u32 s{sW1}, s{sU}, s{sV}',
          f's_lshl_b32 s{sM0W}, s3, 12', f's_mul_i32 s{sM0A}, s3, 24576', f's_add_u32 s{sM0A}, s{sM0A}, 65536',
          f's_lshl_b32 s{sF2P}, s{sH1}, 7', f's_add_u32 s{sF2P}, s{sF2P}, {WS_FLG:#x}']
    t = V_T + 4
    L += [f'v_lshrrev_b32 v{t}, 3, v0', f'v_lshlrev_b32 v{t}, 10, v{t}',
          f'v_lshrrev_b32 v{t+1}, 4, v0', f'v_and_b32 v{t+2}, 7, v0', f'v_xor_b32 v{t+1}, v{t+1}, v{t+2}', f'v_xor_b32 v{t+2}, 4, v{t+1}',
          f'v_lshl_add_u32 v{t+1}, v{t+1}, 4, v{t}', f'v_lshl_add_u32 v{t+2}, v{t+2}, 4, v{t}']
    for i in range(4):
        L.append(f'v_add_u32 v{V_AD+i}, {i * 8192 - i * 1024}, v{t + 1 + (i & 1)}')
    L += w_dma_voff(V_WD, 8192, t)
    def a_items(c):
        it = []
        for hf in range(2):
            it += [f's_add_u32 m0, s{sM0A}, {(c % 3) * 8192 + hf * 4096}', f's_add_u32 s{sT}, s{sA}, {hf * 32768 + c * 128}']
            it += [f'buffer_load_dwordx4 v{V_AD+i}, {wsrd(R_CKV)}, s{sT} offen offset:{i*1024} lds ; @A{c}' for i in range(4)]
        return it
    V_GD = 30
    def w_items(st):
        p, s4 = st // 4, st % 4
        if p in (4, 5):
            it = [f's_add_u32 m0, s{sM0W}, {s4 * 16384}', f's_add_u32 s{sT}, s{sWG}, {s4 * 128 * 3584 + (p % 2) * 64}']
            it += [f'buffer_load_dwordx4 v{V_GD+i}, {wsrd(R_WG)}, s{sT} offen offset:{i*1024} lds ; @W{st}' for i in range(2)]
            it += [f's_add_u32 m0, s{sM0W}, {s4 * 16384 + 2048}']
            it += [f'buffer_load_dwordx4 v{V_GD+i}, {wsrd(R_WU)}, s{sT} offen offset:{i*1024} lds ; @W{st}' for i in range(2)]
            return it
        r, so = (R_WK, sW1) if p < 2 else (R_WV, sW1) if p < 4 else (R_WQ, sWQ)
        it = [f's_add_u32 m0, s{sM0W}, {s4 * 16384}', f's_add_u32 s{sT}, s{so}, {s4 * 128 * 8192 + (p % 2) * 128}']
        it += [f'buffer_load_dwordx4 v{V_WD+i}, {wsrd(r)}, s{sT} offen offset:{i*1024} lds ; @W{st}' for i in range(4)]
        return it
    L += a_items(0) + w_items(0)
    L += [f'v_lshlrev_b32 v{V_L16}, 4, v0', f's_mov_b32 s{sQS}, {QSCALE:#x}']
    L += tr_addrs(V_TR, t)
    L += [f'v_and_b32 v{t}, 15, v0', f'v_lshrrev_b32 v{t+1}, 1, v{t}', f'v_lshrrev_b32 v{t+2}, 4, v0', f'v_xor_b32 v{t+1}, v{t+1}, v{t+2}',
          f'v_lshlrev_b32 v{t}, 7, v{t}', f'v_add_u32 v{t}, s{sM0A}, v{t}',
          f'v_lshl_add_u32 v{V_AR}, v{t+1}, 4, v{t}', f'v_xor_b32 v{V_AR+1}, 64, v{V_AR}']
    L += [f's_lshl_b32 s{sU}, s2, 2', f's_add_u32 s{sU}, s{sU}, s3', f's_lshl_b32 s{sXO}, s{sU}, 11',
          f's_lshr_b32 s{sU}, s2, 2', f's_lshl_b32 s{sXN}, s{sU}, 15', f's_bfe_u32 s{sU}, s2, 0x10001', f's_lshl_b32 s{sU}, s{sU}, 10',
          f's_add_u32 s{sXN}, s{sXN}, s{sU}', f's_and_b32 s{sU}, s2, 1', f's_lshl_b32 s{sU}, s{sU}, 7', f's_add_u32 s{sXN}, s{sXN}, s{sU}',
          f's_lshl_b32 s{sU}, s3, 13', f's_add_u32 s{sXN}, s{sXN}, s{sU}']
    sQA = sK
    L += [f's_and_b32 s{sU}, s2, 7', f's_lshl_b32 s{sU}, s{sU}, 2', f's_bfe_u32 s{sV}, s2, 0x20003', f's_add_u32 s{sH}, s{sU}, s{sV}',
          f's_lshr_b32 s{sJ}, s2, 5', f's_lshl_b32 s{sU}, s{sJ}, 2', f's_add_u32 s{sQB}, s{sU}, s3',
          f's_sub_u32 s{sV}, 60, s{sU}', f's_add_u32 s{sQA}, s{sV}, s3',
          f's_lshl_b32 s{sXA}, s{sQA}, 15', f's_lshl_b32 s{sXB}, s{sQB}, 15',
          f's_lshl_b32 s{sU}, s3, 18', f's_lshl_b32 s{sV}, s{sH}, 8', f's_add_u32 s{sWQ}, s{sU}, s{sV}',
          f's_min_u32 s{sV}, s{sH}, 27', f's_lshl_b32 s{sV}, s{sV}, 7', f's_mul_i32 s{sU}, s3, {32 * 3584}', f's_add_u32 s{sWG}, s{sU}, s{sV}']
    for q, hh, cc in ((sQA, sHA, sCA), (sQB, sHB, sCB)):
        L += [f's_lshr_b32 s{sU}, s{q}, 1', f's_mul_i32 s{sU}, s{sU}, {184 * 4096}', f's_and_b32 s{sV}, s{q}, 1', f's_lshl_b32 s{sV}, s{sV}, 11',
              f's_add_u32 s{sU}, s{sU}, s{sV}', f's_add_u32 s{sU}, s{sU}, {WS_A3:#x}', f's_min_u32 s{sV}, s{sH}, 27', f's_lshl_b32 s{sV}, s{sV}, 13', f's_add_u32 s{hh}, s{sU}, s{sV}',
              f's_lshl_b32 s{sV}, s{sH}, 14', f's_add_u32 s{sU}, s{sU}, s{sV}', f's_add_u32 s{cc}, s{sU}, {56 * 4096}']
    L += ['s_cmp_lt_u32 s2, 56', f's_cselect_b32 s{R_W3}, s{R_KV}, s{R_W3}', f's_cselect_b32 s{R_W3+1}, s{R_KV+1}, s{R_W3+1}',
          f's_cselect_b32 s{sU}, 0, 56', f's_mov_b32 s{sV}, {4*MB:#x}', f's_cselect_b32 s{R_W3+2}, {1792*1024:#x}, s{sV}', f's_mov_b32 s{R_W3+3}, 0x20000',
          f's_min_u32 s{sV}, s2, 183', f's_sub_u32 s{sU}, s{sV}, s{sU}', f's_lshl_b32 s{sU}, s{sU}, 15', f's_lshl_b32 s{sPS}, s3, 8', f's_add_u32 s{sPS}, s{sPS}, s{sU}',
          f's_lshl_b32 s{sV}, s{sV}, 12', f's_mul_i32 s{sU}, s3, {2 * 184 * 4096}', f's_add_u32 s{sPD}, s{sU}, s{sV}', f's_add_u32 s{sPD}, s{sPD}, {WS_W3:#x}']
    L += [f's_lshl_b32 s{sU}, s{sH}, 20', f's_add_u32 s{sU}, s{sU}, {WS_KV:#x}', f's_add_u32 s{R_KV}, s{R_WS}, s{sU}', f's_addc_u32 s{R_KV+1}, s{R_WS+1}, 0',
          f's_lshl_b32 s{sU}, s{sJ}, 16', f's_sub_u32 s{R_KV+2}, 0x100000, s{sU}', f's_mov_b32 s{R_KV+3}, 0x20000',
          's_cmp_lt_u32 s3, 2', f's_cselect_b32 s{sU}, 0xc000, 0', f's_add_u32 s{sSRC}, s{sU}, s{sM0W}', f's_add_u32 s{sM0B}, s{sM0W}, {RING}',
          f's_mov_b64 s[{sFLAG}:{sFLAG+1}], 0']
    L += ['s_cmp_eq_u32 s3, 0', f's_cselect_b32 s{R_TMP}, s{R_WG}, s{R_WU}', f's_cselect_b32 s{R_TMP+1}, s{R_WG+1}, s{R_WU+1}',
          f's_min_u32 s{sU}, s{sH}, 27', f's_lshl_b32 s{sU}, s{sU}, 7', f's_lshl_b32 s{sV}, s{sH}, 1', f's_add_u32 s{sV}, s{sV}, s3', f's_sub_u32 s{sV}, s{sV}, 2', f's_lshl_b32 s{sV}, s{sV}, 7',
          's_cmp_lt_u32 s3, 2', f's_cselect_b32 s{R_TMP}, s{R_TMP}, s{R_WQ}', f's_cselect_b32 s{R_TMP+1}, s{R_TMP+1}, s{R_WQ+1}',
          f's_cselect_b32 s{R_TMP+2}, s{R_WG+2}, s{R_WQ+2}', f's_cselect_b32 s{sU}, s{sU}, s{sV}', f's_mov_b32 s{sV}, 8192', f's_cselect_b32 s{sV}, 3584, s{sV}',
          f'v_lshl_add_u32 v29, s{sJ}, 6, v0', f'v_mul_lo_u32 v29, v29, s{sV}', f'v_add_u32 v29, s{sU}, v29']
    L += [f'v_lshrrev_b32 v{t}, 4, v0', f'v_lshlrev_b32 v{t}, 2, v{t}', f'v_and_b32 v{t+1}, 15, v0']
    for i in range(4):
        L += [f'v_add_u32 v{t+2}, {i}, v{t}', f'v_cmp_gt_u32 s[{sMASK+2*i}:{sMASK+2*i+1}], v{t+2}, v{t+1}']
    V_C2 = 3
    L += [f'v_mov_b32 v{V_C2}, 0xbdd2d3e8']
    L += [f'v_lshrrev_b32 v{t}, 2, v0', f'v_mul_u32_u24 v{t}, 3584, v{t}', f'v_lshrrev_b32 v{t+1}, 4, v0', f'v_and_b32 v{t+1}, 2, v{t+1}',
          f'v_and_b32 v{t+2}, 3, v0', f'v_xor_b32 v{t+1}, v{t+1}, v{t+2}', f'v_lshl_add_u32 v{V_GD}, v{t+1}, 4, v{t}',
          f'v_add_u32 v{V_GD+1}, {16 * 3584 - 1024}, v{V_GD}']
    L += a_items(1)
    P = Passes(['T', 'T', 'N', 'N', 'G', 'G', 'T', 'T'])
    sc = P.sc
    def barg(st):
        return 8 * (8 * (st - 1) + 5) + 7
    def a_reads(c):
        return [f'ds_read_b128 {areg(2*c + k, rt)}, v{V_AR + k} offset:{(c % 3) * 8192 + rt * 2048}' for k in range(2) for rt in range(4)]
    L += stamp(1, 39) + ['WAITVM W0', 's_barrier'] + stamp(2, 39)
    L += a_reads(0) + P.tr_reads(0) + w_items(1) + P.tr_reads(1) + [f'TOUCH {areg(1,3)}']
    ev = [(0, a_items(2), None), (1, a_items(3), None), (2, w_items(2), None), (62, w_items(3), None)]
    for c in range(1, 8):
        g0 = 32 * (c - 1)
        sc.put(g0 + 19, f'WAITVM A{c}')
        for i, r in enumerate(a_reads(c)):
            sc.put(g0 + 20 + (i // 2), r)
        if c + 3 < 8:
            ev.append((g0 + 29, a_items(c + 3), areg(2 * c + 1, 3)))
    for st in range(4, 32):
        ev.append((max(barg(st - 3) + 1, 130), w_items(st), None))
    def x_items(ss):
        it = [f's_add_u32 s{sT1}, s{sXA}, {ss * 4096}', f's_add_u32 s{sT2}, s{sXB}, {ss * 4096}']
        for k in range(2):
            for rt in range(4):
                it.append(f'buffer_load_dwordx4 {areg(2 * ss + k, rt)}, v{V_L16}, {wsrd(R_WS)}, s{sT1 if rt < 2 else sT2} offen offset:{k * 2048 + (rt % 2) * 1024}{LD}')
        return it
    def kv_items(i):
        it = [f's_add_u32 m0, s{sM0B}, {((i + 5) % 8) * 16384}']
        if i >= 0: it += [f's_add_u32 s{sT}, s{sSRC}, {i * 16384}']
        else: it += [f's_add_u32 s{sT}, s{sM0W}, {(i + 3) * 16384}']
        it += [f'buffer_load_dwordx4 v{V_L16}, {wsrd(R_KV)}, s{sT} offen offset:{k*1024}{LD} lds ; @KV{i}' for k in range(4)]
        return it
    for i in range(-3, 3):
        ev.append((7 * 256 + 8 + 24 * (i + 3), kv_items(i), None))
    ev.append((barg(31) + 1, kv_items(3), None))
    V_PK = 18
    pk = []
    for i in range(8):
        ev.append((5 * 256 + 10 + 26 * i, [f's_add_u32 m0, s{sM0A}, {i * 1024}', f's_add_u32 s{sT}, s{sPS}, {i * 4096}',
                                           f'buffer_load_dwordx4 v{V_PK + (i & 1)}, {wsrd(R_W3)}, s{sT} offen lds ; @PK'], None))
    ev.sort(key=lambda e: e[0])
    glastA = 0
    for g, it, touch in ev:
        if touch: it = [f'TOUCH {touch}'] + it
        ge = P.dma_group(it, g, vmspace=(0 if g < 60 else 1 if g < 200 else 3))
        if '@A7' in it[-1]: glastA = ge
    XR, X = 192, 200
    g = chain(sc, [f'v_lshrrev_b32 v{t}, 5, v0', f'v_and_b32 v{t+1}, 31, v0', f'v_lshlrev_b32 v{t+1}, 4, v{t+1}', f'v_lshl_add_u32 v{t+2}, v{t}, 10, v{t+1}',
                   f'v_mov_b32 v{V_SIG}, v19', f'v_mov_b32 v{V_POLL}, 0'] + ([f'v_mov_b32 v{V_PROF}, v39'] if PROF else []), glastA)
    g = sc.place(f'buffer_load_dwordx4 {V(XR, 4)}, v{t+2}, {wsrd(R_X)}, s{sXO} offen', g, vmspace=1) + 1
    g = sc.place(f'buffer_load_dwordx4 {V(XR+4, 4)}, v{t+2}, {wsrd(R_X)}, s{sXO} offen offset:512', g, vmspace=1) + 1
    if TOUCH1: g = sc.place(f'buffer_load_dword v18, v18, {wsrd(R_WV)}, 0 offen', g, vmspace=1) + 1
    g = chain(sc, [f's_min_u32 s{sFX}, s2, 127', f's_lshl_b32 s{sFX}, s{sFX}, 7', f's_add_u32 s{sFX}, s{sFX}, {WS_FLG:#x}',
                   f'buffer_store_dword v{V_POLL}, v{V_SIG}, {wsrd(R_WS)}, s{sFX} offen sc1 ; @Z'], g)
    assert g < 256, g
    sm, s2_, tm = t + 3, t + 4, t + 2
    def reduce32(r, tmp):
        o = []
        for n in (8, 4, 2, 1):
            o += [2, f'v_add_f32_dpp v{r}, v{r}, v{r} row_ror:{n} row_mask:0xf bank_mask:0xf']
        o += [f'v_mov_b32 v{tmp}, v{r}', 2, f'v_permlane16_swap_b32 v{r}, v{tmp}', f'v_add_f32 v{r}, v{r}, v{tmp}']
        return o
    ln = []
    for i in range(8):
        ln += [f'v_lshlrev_b32 v{X+2*i}, 16, v{XR+i}', f'v_and_b32 v{X+2*i+1}, 0xffff0000, v{XR+i}']
    ln += [f'v_add_f32 v{sm}, v{X}, v{X+1}', f'v_add_f32 v{s2_}, v{X+2}, v{X+3}']
    for i in range(4, 16, 2):
        ln += [f'v_add_f32 v{sm}, v{sm}, v{X+i}', f'v_add_f32 v{s2_}, v{s2_}, v{X+i+1}']
    ln += [f'v_add_f32 v{sm}, v{sm}, v{s2_}'] + reduce32(sm, tm) + [f'v_mul_f32 v{sm}, 0x3b000000, v{sm}']
    ln += [f'v_sub_f32 v{X+i}, v{X+i}, v{sm}' for i in range(16)]
    ln += [f'v_mul_f32 v{sm}, v{X}, v{X}', f'v_mul_f32 v{s2_}, v{X+1}, v{X+1}']
    for i in range(2, 16, 2):
        ln += [f'v_fmac_f32 v{sm}, v{X+i}, v{X+i}', f'v_fmac_f32 v{s2_}, v{X+i+1}, v{X+i+1}']
    ln += [f'v_add_f32 v{sm}, v{sm}, v{s2_}'] + reduce32(sm, tm)
    ln += [f'v_mov_b32 v{s2_}, 0x3b000000', f'v_fmaak_f32 v{sm}, v{sm}, v{s2_}, 0x3727c5ac', f'v_rsq_f32 v{sm}, v{sm}']
    ln += [f'v_mul_f32 v{X+i}, v{X+i}, v{sm}' for i in range(16)]
    ln += [f'v_cvt_pk_bf16_f32 v{XR+i}, v{X+2*i}, v{X+2*i+1}' for i in range(8)]
    ln += [f's_lshl_b32 s{sU}, s3, 5', f's_add_u32 s{sU}, s{sU}, 65536', f'v_lshlrev_b32 v{tm}, 3, v{t+1}', f'v_lshl_add_u32 v{tm}, v{t}, 4, v{tm}', f'v_add_u32 v{tm}, s{sU}, v{tm}',
           f'ds_write_b128 v{tm}, {V(XR,4)}', f'ds_write_b128 v{tm}, {V(XR+4,4)} offset:4096']
    g = chain(sc, ln, 262)
    lnbar = min(st for st in range(5, 9) if barg(st) - 2 >= g)
    g = chain(sc, [f's_lshl_b32 s{sU}, s3, 11', f's_add_u32 s{sU}, s{sU}, 65536', f'v_add_u32 v{sm}, s{sU}, v{V_L16}',
                   f'v_bfe_u32 v{tm}, v0, 3, 2', f'v_and_b32 v{s2_}, 7, v0', f'v_lshlrev_b32 v{s2_}, 4, v{s2_}',
                   f'v_lshl_add_u32 v{s2_}, v{tm}, 8, v{s2_}', f'v_lshl_add_u32 v{s2_}, v{t}, 11, v{s2_}', f's_add_u32 s{sXO}, s{sXN}, 4096'], g)
    g = chain(sc, [f'ds_read_b128 {V(XR,4)}, v{sm}', f'ds_read_b128 {V(XR+4,4)}, v{sm} offset:1024', 6,
                   f'buffer_store_dwordx4 {V(XR,4)}, v{s2_}, {wsrd(R_WS)}, s{sXN} offen{ST} ; @XN',
                   f'buffer_store_dwordx4 {V(XR+4,4)}, v{s2_}, {wsrd(R_WS)}, s{sXO} offen{ST} ; @XN'], max(g, barg(lnbar) + 1))
    assert g < 470, g
    def signal(st, tag, srdr, setup):
        sc.s[barg(st) - 1].insert(0, f'WAITVM {tag}')
        return chain(sc, setup + [f'v_mov_b32 v{V_POLL}, 1', f'buffer_atomic_add v{V_POLL}, v{V_SIG}, {wsrd(srdr)}, s{sFX} offen'], barg(st) + 1)
    def poll_ool(name, vaddr, srdr, soff, expect):
        nonlocal OOL
        OOL += [f'{name}:', f's_mov_b32 s{sSPIN}, {SPIN}', f'{name}_L:',
                f'buffer_load_dword v{V_POLL}, v{vaddr}, {wsrd(srdr)}, {soff} offen sc1', f's_sub_u32 s{sSPIN}, s{sSPIN}, 1', 's_waitcnt vmcnt(0)',
                f's_cbranch_scc1 {name}_RET', f'v_cmp_gt_u32 vcc, {expect}, v{V_POLL}', f's_cbranch_vccnz {name}_L', f's_branch {name}_RET']
    def poll(name, g_issue, g_check, setup, vaddr, srdr, soff, expect):
        g = chain(sc, setup + [f'buffer_load_dword v{V_POLL}, v{vaddr}, {wsrd(srdr)}, {soff} offen sc1'], g_issue)
        assert g <= g_check
        g = sc.place(f'v_cmp_gt_u32 vcc, {expect}, v{V_POLL}', g_check)
        g = sc.place(f's_cbranch_vccnz {name}', g + 1)
        sc.s[g].append(f'{name}_RET:')
        poll_ool(name, vaddr, srdr, soff, expect)
        return g + 1
    signal(lnbar + 1, 'XN', R_DBG, [f's_and_b32 s{sFX}, s2, 3', f's_lshl_b32 s{sFX}, s{sFX}, 6'])
    chain(sc, [f'v_lshrrev_b32 v{t}, 4, v0', f'v_bfe_u32 v{t+1}, v0, 2, 2', f'v_lshl_add_u32 v{t+1}, v{t}, 3, v{t+1}', f'v_lshlrev_b32 v{t+1}, 6, v{t+1}',
               f'v_and_b32 v{t+2}, 3, v0', f'v_lshl_add_u32 v{t+1}, v{t+2}, 3, v{t+1}', f'v_and_b32 v{t}, 1, v{t}',
               f'v_lshl_add_u32 v{V_AR}, v{t}, 5, v{t+1}', f'v_xor_b32 v{V_AR+1}, 32, v{V_AR}'], 600)
    if TOUCH2: sc.place(f'buffer_load_dword v29, v29, {wsrd(R_TMP)}, 0 offen', 580)
    g = poll('S1', 740, 790, ['v_and_b32 v12, 3, v0', 'v_lshlrev_b32 v12, 6, v12'], 12, R_DBG, '0', 64)
    assert g <= 800
    for ss in range(8):
        g = max(g, 768 + 32 * (ss + 1) - 2)
        for x in x_items(ss): g = sc.place(x, g, vmspace=1) + 1
    gst = 0
    for p in range(4):
        for f in range(8):
            b = rbase(p) + 8 * f
            ops = []
            if p < 2:
                rt, p2 = f // 2, f % 2
                m, imm = (rt // 2) * 4 + rt % 2, (2 * p + p2) * 1024
                ops = [f'v_mul_f32 v{b+i}, s{sQS}, v{b+i}' for i in range(8)]
            else:
                ct, q = f // 2, f % 2
                m, imm = q * 4 + 2 + (p - 2), ct * 1024
            g0 = (p + 1) * 256 + (6 + f * 28 if p < 3 else 40 + f * 20)
            g = chain(sc, ops + cvt_pairs(b), g0)
            g = max(g, sc.place(f's_add_u32 s{sK}, s{sKVO}, {m * 4096}', max(gst + 1, g0)) + 1)
            gst = sc.place(f'buffer_store_dwordx4 {V(b,4)}, v{V_L16}, {wsrd(R_WS)}, s{sK} offen offset:{imm}{ST} ; @KVS', g, vmspace=(1 if p == 2 else 2))
    assert gst < barg(20) - 8, gst
    signal(20, 'KVS', R_WS, [f's_mov_b32 s{sFX}, s{sF2P}'])
    V_PS, V_PA, V_PB = 12, 2, 32
    chain(sc, [f'v_lshrrev_b32 v{t}, 4, v0', f'v_and_b32 v{t+1}, 15, v0', f'v_lshlrev_b32 v{t+2}, 1, v{t}', f'v_xor_b32 v{t+1}, v{t+1}, v{t+2}',
               f'v_lshlrev_b32 v{t+1}, 4, v{t+1}', f'v_lshl_add_u32 v{V_PK}, v{t}, 10, v{t+1}',
               f's_sub_u32 s{sU}, 183, s2', f's_and_b32 s{sU}, s{sU}, 0x40000000', f'v_or_b32 v{V_PK}, s{sU}, v{V_PK}', f'v_xor_b32 v{V_PK+1}, 128, v{V_PK}',
               f'v_or_b32 v{V_PS}, s{sU}, v{V_L16}',
               f'v_lshrrev_b32 v{t}, 2, v0', f'v_and_b32 v{t+1}, 7, v{t}', f'v_lshlrev_b32 v{t}, 8, v{t}', f'v_lshl_add_u32 v{t}, v{t+1}, 5, v{t}',
               f'v_and_b32 v{t+1}, 3, v0', f'v_lshl_add_u32 v{t}, v{t+1}, 3, v{t}', f'v_add_u32 v29, s{sM0A}, v{t}'], 1100)
    g = 6 * 256 + 30
    g = sc.place('WAITVM PK', g) + 1
    for ct8 in range(8):
        b = V_PB + 4 * (ct8 & 1)
        g = chain(sc, [f'v_xor_b32 v{V_PA}, {ct8 << 5}, v29', f'ds_read_b64_tr_b16 {V(b,2)}, v{V_PA}', f'ds_read_b64_tr_b16 {V(b+2,2)}, v{V_PA} offset:4096',
                       f's_add_u32 s{sK}, s{sPD}, {(ct8 // 4) * 184 * 4096}', 5,
                       f'buffer_store_dwordx4 {V(b,4)}, v{V_PS}, {wsrd(R_WS)}, s{sK} offen offset:{(ct8 % 4) * 1024}{ST} ; @HS'], g)
    assert g < 7 * 256 - 52, g
    g = poll('S2', 7 * 256 - 50, 7 * 256 - 4, [f's_lshl_b32 s{sFX}, s{sH}, 7', f's_add_u32 s{sFX}, s{sFX}, {WS_FLG:#x}', 'v_mov_b32 v12, 0'], 12, R_WS, f's{sFX}', 8)
    assert g <= 7 * 256 + 8
    sc.s[barg(31) - 1].insert(0, 'WAITVM KV-2')
    for i, r in enumerate(k_reads(V_AV)):
        sc.put(2048 - 16 + i, r)
    gp = 5 * 256 + 6
    ne = 0
    for p in (4, 5):
        gp = max(gp, (p + 1) * 256 + 6)
        for rt in range(4):
            bg = rbase(p) + (rt * 2) * 8; bu = bg + 8
            last = 0
            for e in range(8):
                tm_ = V_T + ne % 8; ne += 1
                ops = [f'v_mul_f32 v{tm_}, v{bg+e}, v{bg+e}', f'v_fmaak_f32 v{tm_}, v{tm_}, v{V_C2}, 0xc0135761', f'v_mul_f32 v{tm_}, v{tm_}, v{bg+e}',
                       f'v_exp_f32 v{tm_}, v{tm_}', f'v_add_f32 v{tm_}, 1.0, v{tm_}', f'v_rcp_f32 v{tm_}, v{tm_}',
                       f'v_mul_f32 v{tm_}, v{tm_}, v{bg+e}', f'v_mul_f32 v{bu+e}, v{tm_}, v{bu+e}']
                g = gp
                for o in ops: g = sc.place(o, g) + 1
                assert g - gp < 72
                last = max(last, g)
                gp += 9
            g = last
            for c in cvt_pairs(bu): g = sc.place(c, g)
            sreg = sHA if rt < 2 else sHB
            if p == 5 and rt % 2 == 0:
                sc.place(f's_add_u32 s{sreg}, s{sreg}, 4096', g - 8, g)
            g = sc.place(f'buffer_store_dwordx4 {V(bu,4)}, v{V_L16}, {wsrd(R_WS)}, s{sreg} offen offset:{(rt % 2) * 1024}{ST} ; @HS', g + 1, vmspace=1)
            assert g < (p + 2) * 256 + 220, g
    g = 7 * 256 + 34
    for f in range(8):
        b = rbase(6) + 8 * f
        for c in cvt_pairs(b): g = sc.place(c, g)
        g += 1
        for i in range(4): g = sc.place(f'v_accvgpr_write_b32 a{A_QL + 4 * f + i}, v{b + i}', g)
        g += 1
        for i in range(8): sc.place(f'v_mov_b32 v{b + i}, 0', g)
    g = 7 * 256 + 130
    g = sc.place(f'v_mov_b32 v{V_T+8}, 0x3f803f80', g) + 1
    for i in range(4): g = sc.place(f'v_accvgpr_write_b32 a{A_ONE + i}, v{V_T+8}', g)
    for i in range(16): g = sc.place(f'v_accvgpr_write_b32 a{A_L + i}, 0', g)
    sc.place(f'v_add_u32 v{V_AV}, {RING + 2 * 16384}, v{V_L16}', 7 * 256 + 130, 2024)
    chain(sc, [f's_mul_i32 s{sU}, s{sH}, {184 * 4096}', f's_add_u32 s{sU}, s{sU}, {WS_A3:#x}', f's_mul_i32 s{sV}, s3, {14 * 4096}', f's_add_u32 s{sAH}, s{sU}, s{sV}',
               f's_mul_i32 s{sWH}, s{sJ}, {184 * 4096}', f's_add_u32 s{sWH}, s{sWH}, {WS_W3:#x}', f's_lshl_b32 s{sAC}, s3, 17', f's_add_u32 s{sAC}, s{sAC}, {56 * 4096}',
               f's_add_u32 s{sWC}, s{sWH}, s{sAC}', f's_add_u32 s{sAC}, s{sAC}, s{sU}', f's_add_u32 s{sWH}, s{sWH}, s{sV}',
               f's_lshl_b32 s{sU}, s{sH}, 2', f's_add_u32 s{sU}, s{sU}, s3', f's_lshl_b32 s{sU}, s{sU}, 14', f's_lshl_b32 s{sV}, s{sJ}, 7', f's_add_u32 s{sO}, s{sU}, s{sV}',
               f's_add_u32 s{sO1}, s{sO}, 8192',
               f's_lshr_b32 s{sU}, s{sH}, 1', f's_sub_u32 s{sV}, 15, s{sU}', f's_min_u32 s{sU}, s{sU}, s{sV}', f's_lshl_b32 s{sU}, s{sU}, 2', f's_add_u32 s{sU}, s{sU}, s3',
               f's_lshl_b32 s{sU}, s{sU}, 7', f's_add_u32 s{sF4C}, s{sU}, {WS_FLG + 64 * 128:#x}',
               f's_mov_b32 s{sNINF}, {NINF:#x}'], 7 * 256 + 10)
    for p in range(8): sc.v[256 * p + 255] += stamp(3 + p)
    L += sc.emit()
    ov = sc.overflow()
    L += ['s_barrier', f'v_add_u32 v{V_LB}, {RING}, v{V_L16}', f'v_add_u32 v{V_AK}, {RING + 3 * 16384}, v{V_L16}', f's_mov_b32 s{sTHR}, 0x53800000']
    L += [f'v_mov_b32 v{V_NB + i}, 0' for i in range(16)]
    def mask_ops(X):
        o = [f'v_mov_b32 v{ntile(X,1,0) + i}, s{sNINF}' for i in range(4)]
        for kq in range(2):
            o += [f'v_cndmask_b32 v{ntile(X,kq,kq) + i}, v{ntile(X,kq,kq) + i}, v{ntile(X,1,0)}, s[{sMASK+2*i}:{sMASK+2*i+1}]' for i in range(4)]
        return o
    L += [f's_cmp_lg_u32 s{sQB}, 0', 's_cbranch_scc1 K_NM0'] + mask_ops('B') + ['K_NM0:']
    for f in range(4): L += cvt_pairs(192 + 8 * f)
    L += ['s_nop 0']
    ps = Sched(qk_mfmas('A', 0, True) + qk_mfmas('B', 1))
    g = 0
    for f in range(4, 8):
        for c in cvt_pairs(192 + 8 * f): g = ps.place(c, g)
    g = 0
    for x in kv_items(4): g = ps.place(x, g) + 1
    for i, r in enumerate(k_reads(V_AK)[:4]): ps.place(r, 24 + i)
    zero = [f'v_mov_b32 v{V_OB + i}, 0' for i in range(64)]
    while zero and ps.place(zero[0], 0, force=False) is not None: zero.pop(0)
    L += ps.emit() + k_reads(V_AK)[4:] + zero
    def rowmax(X, buf):
        o = []
        m = [9, 10]; tm = [11, 12]
        for qs in range(2):
            a, b = stile(buf, 0, qs), stile(buf, 1, qs)
            o += [f'v_max3_f32 v{m[qs]}, v{a}, v{a+1}, v{a+2}', f'v_max3_f32 v{tm[qs]}, v{a+3}, v{b}, v{b+1}',
                  f'v_max3_f32 v{m[qs]}, v{m[qs]}, v{b+2}, v{b+3}', f'v_max_f32 v{m[qs]}, v{m[qs]}, v{tm[qs]}']
        for sw in ('v_permlane16_swap_b32', 'v_permlane32_swap_b32'):
            o += [f'v_mov_b32 v{tm[qs]}, v{m[qs]}' for qs in range(2)] + ['s_nop 0']
            o += [f'{sw} v{m[qs]}, v{tm[qs]}' for qs in range(2)]
            o += [f'v_max_f32 v{m[qs]}, v{m[qs]}, v{tm[qs]}' for qs in range(2)]
        for qs in range(2):
            for kvt in range(2):
                o += [f'v_sub_f32 v{stile(buf,kvt,qs)+i}, v{stile(buf,kvt,qs)+i}, v{m[qs]}' for i in range(4)]
                o += [f'v_sub_f32 v{ntile(X,kvt,qs)+i}, 0, v{m[qs]}' for i in range(4)]
        return o
    idx = L.index('s_barrier', len(L) - 200)
    L.insert(idx, 'WAITVM HS')
    L += [f's_lshl_b32 s{sFX}, s{sJ}, 7', f's_add_u32 s{sFX}, s{sFX}, {WS_FLG + 32 * 128:#x}', f'v_mov_b32 v{V_POLL}, 1',
          f'buffer_atomic_add v{V_POLL}, v{V_SIG}, {wsrd(R_WS)}, s{sFX} offen']
    L += rowmax('A', 0)
    ex, cv = sm_ops(0)
    for c in range(8):
        L += ex[2 * c:2 * c + 2]
        if c: L.append(cv[c - 1])
    L += rowmax('B', 1) + [cv[7]]
    L += [f's_mov_b32 s{sSLOT}, {5 * 16384}', f's_mov_b32 s{sM0R}, {2 * 16384}', f's_add_u32 s{sSRC}, s{sSRC}, {5 * 16384}',
          f'v_add_u32 v{V_AV}, {5 * 16384}, v{V_LB}', f'v_add_u32 v{V_AK}, {4 * 16384}, v{V_LB}',
          f's_mov_b32 s{sCNT}, s{sQB}', 'WAITVM KV0', 's_waitcnt lgkmcnt(0)']
    L = autowait(L)
    def step(qk, pv, buf, first, last, rdK, mask=None, loop=None, prevK=True):
        s_ = Sched(qk_mfmas(qk, 1 - buf) + pv_mfmas(pv, 1 - buf))
        ex, cv = sm_ops(buf)
        for i, e in enumerate(ex): s_.put(2 * i, e)
        if first:
            s_.put(0, 's_barrier')
            for i, r in enumerate(v_reads()): s_.put(1 + 2 * i, r)
            s_.put(1, f's_add_u32 m0, s{sM0B}, s{sM0R}')
            s_.put(2, f's_add_u32 s{sM0R}, s{sM0R}, 16384'); s_.put(3, f's_and_b32 s{sM0R}, s{sM0R}, 0x1ffff')
            for k in range(4):
                s_.put(5 + 8 * k, f'buffer_load_dwordx4 v{V_L16}, {wsrd(R_KV)}, s{sSRC} offen offset:{k*1024}{LD} lds')
            s_.put(30, f's_add_u32 s{sSRC}, s{sSRC}, 16384')
            s_.put(17, 's_waitcnt lgkmcnt(4)')
            s_.put(25, f's_waitcnt lgkmcnt({4 if rdK else 0})')
        if prevK: s_.put(7, f's_waitcnt lgkmcnt({3 if first else 0})')
        if rdK:
            for i, r in enumerate(k_reads(rdK)): s_.put(17 + 2 * i, r)
        for c, x in enumerate(cv): s_.put(4 * c + 3, x)
        w = []
        if last:
            s_.put(27, f's_add_u32 s{sSLOT}, s{sSLOT}, 16384'); s_.put(28, f's_and_b32 s{sSLOT}, s{sSLOT}, 0x1ffff')
            s_.put(32, f'v_mov_b32 v{V_AK}, v{V_AV}'); s_.put(32, f'v_add_u32 v{V_AV}, s{sSLOT}, v{V_LB}')
            w.append('vmcnt(16)')
        if rdK: w.append('lgkmcnt(4)')
        if w: s_.put(33, 's_waitcnt ' + ' '.join(w))
        if mask:
            s_.put(19, f's_cmp_eq_u32 s{sCNT}, 1'); s_.put(20, f's_cbranch_scc1 {mask}'); s_.s[20].append(f'{mask}_RET:')
        if loop:
            s_.put(31, f's_sub_u32 s{sCNT}, s{sCNT}, 1'); s_.put(32, f's_cmp_lg_u32 s{sCNT}, 0')
            s_.s[33].append(f's_cbranch_scc1 {loop}')
        return s_.emit()
    def epilogue(X, sC, extra=()):
        o = []
        extra = list(extra)
        r = [9, 10]
        for qs in range(2): o.append(f'v_accvgpr_read_b32 v{r[qs]}, a{lacc(X, qs)}')
        o += [f'v_add_f32 v11, v{r[0]}, v{r[1]}', f'v_cmp_ngt_f32 vcc, s{sTHR}, v11']
        o += [f'v_rcp_f32 v{r[qs]}, v{r[qs]}' for qs in range(2)]
        o += [f's_or_b64 s[{sFLAG}:{sFLAG+1}], s[{sFLAG}:{sFLAG+1}], vcc', 's_nop 0']
        for p in range(4):
            o.append(f's_add_u32 s{sT}, s{sC}, {p * 4096}')
            for qs in range(2):
                b = otile(X, 2 * p, qs)
                o += [f'v_mul_f32 v{b+i}, v{b+i}, v{r[qs]}' for i in range(8)] + cvt_pairs(b)
                o.append(f'buffer_store_dwordx4 {V(b,4)}, v{V_L16}, {wsrd(R_WS)}, s{sT} offen offset:{qs * 1024}{ST} ; @CS')
        return o
    L += stamp(11)
    L += [f's_cmp_eq_u32 s{sCNT}, 0', 's_cbranch_scc1 K_TB', '.p2align 3', 'K_DUAL:']
    L += step('A', 'A', 1, True, False, None, mask='K_MB')
    L += step('B', 'B', 0, False, True, V_AK, loop='K_DUAL', prevK=False)
    L += ['K_TB:']
    L += step('A', 'A', 1, True, False, V_AK)
    L += step('A', 'B', 0, False, True, V_AV)
    L += [f's_lshl_b32 s{sU}, s{sJ}, 2', f's_sub_u32 s{sCNT}, 29, s{sU}']
    L += stamp(12) + epilogue('B', sCB)
    L += ['.p2align 3', 'K_SINGLE:']
    L += step('A', 'A', 1, True, True, V_AV, mask='K_MA')
    L += step('A', 'A', 0, True, True, V_AV, loop='K_SINGLE')
    OOL += ['K_MB:'] + mask_ops('B') + ['s_branch K_MB_RET', 'K_MA:'] + mask_ops('A') + ['s_branch K_MA_RET']
    L += stamp(13)
    L += ['s_barrier'] + v_reads()
    L += ['v_and_b32 v12, 7, v0', 'v_lshlrev_b32 v12, 7, v12', f's_mov_b32 s{sFX}, {WS_FLG + 32 * 128:#x}',
          f'buffer_load_dword v{V_POLL}, v12, {wsrd(R_WS)}, s{sFX} offen sc1']
    ex, cv = sm_ops(1)
    L += ex[0:4] + cv[0:2]
    f1 = Sched(pv_mfmas('A', 0))
    f1.put(1, 's_waitcnt lgkmcnt(4)'); f1.put(9, 's_waitcnt lgkmcnt(0)')
    g = 0
    for c in range(2, 8):
        f1.put(g, ex[2 * c]); f1.put(g + 1, ex[2 * c + 1]); f1.put(g + 2, cv[c]); g += 3
    f1.put(12, f's_add_u32 s{sSLOT}, s{sSLOT}, 16384'); f1.put(13, f's_and_b32 s{sSLOT}, s{sSLOT}, 0x1ffff')
    f1.put(14, f'v_add_u32 v{V_AV}, s{sSLOT}, v{V_LB}')
    f1.put(15, 's_waitcnt vmcnt(13)'); f1.put(16, 's_barrier')
    L += f1.emit() + v_reads(A_K)
    L += ['s_waitcnt vmcnt(0)', f'v_cmp_gt_u32 vcc, 32, v{V_POLL}', 's_cbranch_vccnz S3', 'S3_RET:']
    poll_ool('S3', 12, R_WS, f's{sFX}', 32)
    NSS = 23
    V_AC3, V_XR, V_OA_ = 64, 24, 16
    def buf(ss): return (128 + 64 * ss) % 256
    def af(ss, k, rt): return A(buf(ss) + (k * 4 + rt) * 4, 4)
    def wf(ss, k, ct): return A(buf(ss) + 32 + (k * 4 + ct) * 4, 4)
    def ld_items(ss, which='WA'):
        it = []
        for k in range(2):
            ks = 2 * ss + k if ss < 7 else 2 * (ss - 7) + k
            if 'W' in which:
                it += [f's_add_u32 s{sT2}, s{sWH if ss < 7 else sWC}, {ks * 4096}']
                it += [f'buffer_load_dwordx4 {wf(ss, k, i)}, v{V_L16}, {wsrd(R_WS)}, s{sT2} offen offset:{i*1024}{LD}' for i in range(4)]
            if 'A' in which:
                it += [f's_add_u32 s{sT1}, s{sAH if ss < 7 else sAC}, {ks * 4096}']
                it += [f'buffer_load_dwordx4 {af(ss, k, i)}, v{V_L16}, {wsrd(R_WS)}, s{sT1} offen offset:{i*1024}{LD}' for i in range(4)]
        return it
    T = []
    f2 = Sched(pv_mfmas('A', 1, A_K))
    for dt in range(8): f2.put(1 + 2 * dt, f's_waitcnt lgkmcnt({7 - dt})')
    g = 0
    for x in ld_items(0):
        if kind_of(x) == 's': f2.m[g].append(x)
        else:
            f2.m[g].append(x); g += 1
    T += f2.emit()
    T += [f's_sub_u32 s{sCNT}, 3, s3', 'K_XB:', f's_cmp_eq_u32 s{sCNT}, 0', 's_cbranch_scc1 K_XBD',
          's_barrier', f's_sub_u32 s{sCNT}, s{sCNT}, 1', 's_branch K_XB', 'K_XBD:']
    T += stamp(14) + epilogue('A', sCA) + stamp(15)
    T += ld_items(1) + ld_items(2)[:10]
    mf = []
    for ss in range(NSS):
        for ct in range(4):
            for rt in range(4):
                acc = V(V_AC3 + (rt * 4 + ct) * 4, 4)
                for k in range(2):
                    mf.append(mfma(acc, wf(ss, k, ct), af(ss, k, rt), '0' if (ss == 0 and k == 0) else acc))
    sc = Sched(mf)
    sc.put(30, 'WAITVM CS'); sc.put(31, 's_barrier')
    chain(sc, [f's_lshr_b32 s{sU}, s{sH}, 3', f's_lshl_b32 s{sV}, s{sJ}, 2', f's_add_u32 s{sU}, s{sU}, s{sV}', f's_lshl_b32 s{sU}, s{sU}, 7',
               f's_add_u32 s{sFX}, s{sU}, {WS_FLG + 64 * 128:#x}', f'v_mov_b32 v{V_POLL}, 1', 'v_mov_b32 v12, 0'], 16)
    sc.put(32, f'buffer_atomic_add v{V_POLL}, v{V_SIG}, {wsrd(R_WS)}, s{sFX} offen')
    pend = ld_items(2)[10:]
    DEP = 3
    for ss in range(NSS):
        g0 = 32 * ss
        n = ss + DEP
        if n == 7: it = ld_items(7, 'W')
        elif n == 8: it = ld_items(8, 'W')
        elif n == 9: it = ld_items(7, 'A') + ld_items(8, 'A')
        elif n == 10: it = ld_items(9) + ld_items(10)
        elif n < NSS: it = ld_items(n)
        else: it = []
        it = pend + it; pend = []
        g = g0 + (1 if ss == 1 else 0)
        if n == 8:
            sc.put(g0 + 18, f'buffer_load_dword v{V_POLL}, v12, {wsrd(R_WS)}, s{sF4C} offen sc1')
        if n == 9:
            sc.put(g0, f'v_cmp_gt_u32 vcc, 8, v{V_POLL}'); sc.put(g0 + 1, 's_cbranch_vccnz S4'); sc.s[g0 + 1].append('S4_RET:')
            poll_ool('S4', 12, R_WS, f's{sF4C}', 8)
            g = g0 + 2
        nm_ = sum(1 for x in it if kind_of(x) == 'm')
        k = 0
        for x in it:
            gg = g + (k * (g0 + 30 - g)) // max(nm_, 16)
            sc.m[gg].append(x)
            if kind_of(x) == 'm': k += 1
    g0 = 32 * 20
    t = 17
    chain(sc, [f'v_lshrrev_b32 v{t}, 3, v0', f'v_and_b32 v{t+1}, 7, v0', f'v_lshlrev_b32 v{t+1}, 4, v{t+1}', f'v_lshl_add_u32 v{V_OA_}, v{t}, 10, v{t+1}',
               f'buffer_load_dwordx4 {V(V_XR,4)}, v{V_OA_}, {wsrd(R_X)}, s{sO} offen', f'buffer_load_dwordx4 {V(V_XR+4,4)}, v{V_OA_}, {wsrd(R_X)}, s{sO1} offen',
               f's_mul_i32 s{sU}, s3, 40960', f's_mul_i32 s{sV}, s3, 4608',
               f'v_lshrrev_b32 v{t}, 4, v0', f'v_mul_u32_u24 v{t}, 288, v{t}', f'v_and_b32 v{t+1}, 15, v0', f'v_lshl_add_u32 v{t}, v{t+1}, 4, v{t}',
               f'v_add_u32 v{t}, s{sU}, v{t}',
               f'v_and_b32 v{t+1}, 7, v0', f'v_mul_u32_u24 v{t+1}, 576, v{t+1}', f'v_lshrrev_b32 v{t+2}, 3, v0', f'v_lshl_add_u32 v{t+1}, v{t+2}, 4, v{t+1}',
               f'v_add_u32 v{t+1}, s{sV}, v{t+1}', f'v_add_u32 v{t+2}, 81920, v{t+1}'], g0)
    for i, ss in enumerate((0, 3, 5, 7, 12, 17, 22)): sc.v[32 * ss + 31] += stamp(16 + i)
    T += sc.emit()
    T += ['s_nop 4']
    order = [(rt, ct) for ct in range(4) for rt in range(4)]
    T += [f'ds_write_b128 v{t}, {V(V_AC3 + (rt * 4 + ct) * 4, 4)} offset:{(rt * 4 + ct) * 1152}' for rt, ct in order]
    X = 32
    for i in range(8):
        T += [f'v_lshlrev_b32 v{X+2*i}, 16, v{V_XR+i}', f'v_and_b32 v{X+2*i+1}, 0xffff0000, v{V_XR+i}']
    T += ['s_waitcnt lgkmcnt(0)', 's_barrier']
    for s_ in range(2):
        for src in range(4):
            for gg in range(2):
                T.append(f'ds_read_b128 {V(128 + ((s_ * 4 + src) * 2 + gg) * 4, 4)}, v{t + 1 + src // 2} offset:{(src % 2) * 40960 + gg * 288 + s_ * 128}')
    for s_ in range(2):
        b = 128 + s_ * 32
        T += [f'v_add_f32 v{b+i}, v{b+i}, v{b+8+i}' for i in range(8)]
        T += [f'v_add_f32 v{b+16+i}, v{b+16+i}, v{b+24+i}' for i in range(8)]
        T += [f'v_add_f32 v{b+i}, v{b+i}, v{b+16+i}' for i in range(8)]
        T += [f'v_add_f32 v{b+i}, v{b+i}, v{X+8*s_+i}' for i in range(8)]
        T += cvt_pairs(b)
        T += [f'buffer_store_dwordx4 {V(b,4)}, v{V_OA_}, {wsrd(R_OUT)}, s{sO+s_} offen']
    if PROF:
        T += stamp(23) + ['s_waitcnt vmcnt(0)'] + stamp(24) + [f's_add_u32 s{R_TMP}, s{R_WS}, {WS_PROF:#x}', f's_addc_u32 s{R_TMP+1}, s{R_WS+1}, 0', f's_mov_b32 s{R_TMP+2}, 0x40000',
             f's_lshl_b32 s{sU}, s2, 2', f's_add_u32 s{sU}, s{sU}, s3', f's_lshl_b32 s{sU}, s{sU}, 8', 'v_lshlrev_b32 v0, 2, v0',
             f'buffer_store_dword v{V_PROF}, v0, {wsrd(R_TMP)}, s{sU} offen']
    L += autowait(T)
    L += ['K_END:', 's_endpgm'] + OOL + ['K_LAST:', 's_endpgm']
    return L, ov

def build(lines):
    hdr = open('cdna_kernels/' + NAME + '.s.ref').read().split('; Override launch')[0]
    out = hdr + f'; @launch grid=(256,1,1) block=(256,1,1) lds={LDS_SZ}\n'
    out += '.amdgcn_target "amdgcn-amd-amdhsa--gfx950"\n.text\n' + fmt(lines) + '\n'
    out += '.section .rodata,"a"\n.p2align 6\n' + kdesc(NAME + '_kernel') + '\n'
    return out

if __name__ == '__main__':
    path = sys.argv[1]
    for a in sys.argv[2:]:
        k, v = a.split('=')
        globals()[k] = eval(v)
    cb = 4096
    for it in range(2):
        lines, ov = gen_fused(cb)
        open(path, 'w').write(build(lines))
        sym = G.sizes(path)
        cb = (sym['K_LAST'] - sym[NAME + '_kernel'] - 128) & ~63
    print('overflow', ov, 'lines', len(lines), 'bytes', cb, file=sys.stderr)
```

```python
import re, math
import numpy as np

U32 = np.uint32
LANES = np.arange(64, dtype=np.int64)

class EmuError(Exception):
    pass

def bf16_round(f):
    u = np.ascontiguousarray(f, dtype=np.float32).view(np.uint32)
    r = ((u.astype(np.uint64) + 0x7fff + ((u >> 16) & 1)) >> 16).astype(np.uint32) & 0xffff
    nan = np.isnan(f)
    if nan.any():
        r = np.where(nan, 0x7fc0, r)
    return r.astype(np.uint32)

def f2u(x):
    return int(np.float32(x).view(np.uint32))

class Mem:
    def __init__(self):
        self.bufs = []
        self.next = 0x100000000
        self.frozen = []
        self.log = []
        self.written = {}
        self.region = None
        self.sigof = None
    def add(self, arr, name):
        a = np.ascontiguousarray(arr).view(np.uint8).reshape(-1)
        base = self.next
        self.bufs.append((base, a, name))
        self.next += (len(a) + 0xfffff + 0x200000) & ~0xfffff
        return base
    def find(self, addr):
        for base, a, name in self.bufs:
            if base <= addr < base + len(a):
                return base, a, name
        raise EmuError('bad base address %x' % addr)

OPRE = re.compile(r'^(-?)(abs\()?([sva])(?:(\d+)|\[(\d+):(\d+)\])\)?$')

class Op:
    __slots__ = ('k', 'i', 'n', 'neg', 'abs', 'val')
    def __init__(self, t):
        self.neg = self.abs = False
        self.n = 1
        t = t.strip()
        if t.startswith('|') or t.startswith('-|'):
            raise EmuError('use abs()')
        m = OPRE.match(t)
        if m:
            self.neg = bool(m.group(1)); self.abs = bool(m.group(2))
            self.k = m.group(3)
            if m.group(4) is not None:
                self.i = int(m.group(4))
            else:
                self.i = int(m.group(5)); self.n = int(m.group(6)) - self.i + 1
            if self.k == 'a':
                self.k = 'v'; self.i += 256
        elif t in ('vcc', 'exec'):
            self.k = 's'; self.i = 106 if t == 'vcc' else 126; self.n = 2
        elif t in ('vcc_lo', 'vcc_hi', 'exec_lo', 'exec_hi'):
            self.k = 's'; self.i = (106 if t[0] == 'v' else 126) + (1 if t.endswith('hi') else 0)
        elif t == 'm0':
            self.k = 's'; self.i = 124
        elif t == 'off':
            self.k = 'off'
        else:
            self.k = 'c'
            try:
                self.val = int(t, 0) & 0xffffffffffffffff
            except ValueError:
                try:
                    self.val = f2u(float(t))
                except ValueError:
                    self.k = 'l'; self.val = t
    def regs(self):
        return range(self.i, self.i + self.n)

class Ins:
    __slots__ = ('mn', 'ops', 'mods', 'text', 'line', 'fn', 'cls', 'vr', 'vw', 'sr', 'sw', 'size')

TRANS = ('v_exp_f32', 'v_log_f32', 'v_rcp_f32', 'v_rsq_f32', 'v_sqrt_f32')

def parse(text):
    ins = []; labels = {}
    for ln, raw in enumerate(text.split('\n'), 1):
        s = raw.split(';')[0].strip()
        if not s or s.startswith('.'):
            if s.startswith('.section'):
                break
            continue
        if s.endswith(':'):
            labels[s[:-1]] = len(ins); continue
        p = s.split(None, 1)
        I = Ins(); I.mn = p[0]; I.text = s; I.line = ln
        for suf in ('_e32', '_e64', '_dpp'):
            if I.mn.endswith(suf): I.mn = I.mn[:-len(suf)]
        I.ops = []; I.mods = {}
        if len(p) > 1:
            if I.mn == 's_waitcnt':
                for k, v in re.findall(r'(\w+)\((\d+)\)', p[1]): I.mods[k] = int(v)
            elif I.mn in ('buffer_inv', 'buffer_wbl2', 's_getreg_b32'):
                if I.mn == 's_getreg_b32':
                    I.ops = [Op(p[1].split(',')[0])]
            else:
                parts = p[1].split(',')
                last = parts[-1].split()
                parts[-1] = last[0]
                for m in last[1:]:
                    if ':' in m:
                        k, v = m.split(':', 1); I.mods[k] = int(v, 0)
                    else:
                        I.mods[m] = True
                I.ops = [Op(x) for x in parts]
        ins.append(I)
    return ins, labels

class WG:
    def __init__(self, prog, mem, kernarg, wgid, entry, nwaves=4, lds=163840, check=True):
        self.ins, self.labels = prog
        self.mem = mem; self.lds = np.full(lds, 0xcd, np.uint8); self.ldsz = lds
        ng = lds // 8
        self.w_wave = np.full(ng, -1, np.int32)
        self.w_ep = np.full(ng, -1, np.int64)
        self.r_ep = np.full((nwaves, ng), -1, np.int64)
        self.r_cnt = np.zeros((nwaves, ng), np.int32)
        self.epoch = 0
        self.check = check
        self.waves = [Wave(self, w, kernarg, wgid, self.labels[entry]) for w in range(nwaves)]
        self.rets = {v: k for k, v in self.labels.items() if k.startswith('S') and k.endswith('_RET')}
        self.stores = []; self.signalled = set()
    def run(self, maxsteps=10**8):
        while True:
            alive = [w for w in self.waves if not w.done]
            if not alive: break
            for w in alive:
                w.run(maxsteps)
            self.epoch += 1
        n = [w.nbar for w in self.waves]
        if len(set(n)) != 1:
            raise EmuError('barrier count mismatch %s' % n)

BIG = 1 << 60

class Wave:
    def __init__(self, wg, wid, kernarg, wgid, pc):
        self.wg = wg; self.wid = wid; self.pc = pc
        self.s = [0xdeadbeef] * 128
        self.s[0] = kernarg & 0xffffffff; self.s[1] = kernarg >> 32; self.s[2] = wgid
        self.s[126] = self.s[127] = 0xffffffff
        self.scc = 0
        self.v = np.full((512, 64), 0x7fc0dead, np.uint32)
        self.v[0] = LANES + 64 * wid
        self.vinit = np.zeros(512, bool); self.vinit[0] = True
        self.done = False; self.nbar = 0
        self.vmq = []; self.lgq = []
        self.vpend = np.zeros(512, np.int32); self.spend = set()
        self.t = 0
        NEG = -1000
        self.t_valu_w = np.full(512, NEG, np.int64); self.t_trans_w = np.full(512, NEG, np.int64)
        self.t_mfma_w = np.full(512, NEG, np.int64); self.mfma_d = np.full(512, -1, np.int64)
        self.t_mfma_c = np.full(512, NEG, np.int64); self.t_store_r = np.full(512, NEG, np.int64)
        self.t_s_valu = [NEG] * 128; self.t_m0 = NEG
        self.count = {}; self.nins = 0; self.passed = set()
    def err(self, I, msg):
        raise EmuError('wave %d line %d [%s]: %s' % (self.wid, I.line, I.text, msg))
    def exec_mask(self):
        e = self.s[126] | (self.s[127] << 32)
        if e == 0xffffffffffffffff: return None
        return ((e >> LANES.astype(object)) & 1).astype(bool)
    def sget(self, I, o):
        if o.k == 'c': return o.val & 0xffffffff
        if o.i in self.spend: self.err(I, 'pending sgpr s%d' % o.i)
        return self.s[o.i]
    def sget64(self, I, o):
        if o.k == 'c':
            return o.val
        if o.i in self.spend or o.i + 1 in self.spend: self.err(I, 'pending sgpr')
        return self.s[o.i] | (self.s[o.i + 1] << 32)
    def sset(self, I, o, v):
        if o.i in self.spend: self.err(I, 'write pending sgpr')
        self.s[o.i] = v & 0xffffffff
        if o.i == 124: self.t_m0 = self.t
    def sset64(self, I, o, v):
        self.s[o.i] = v & 0xffffffff; self.s[o.i + 1] = (v >> 32) & 0xffffffff
    def chk_vread(self, I, o, kind):
        sl = slice(o.i, o.i + o.n)
        if self.vpend[sl].any(): self.err(I, 'read of pending vgpr %d' % o.i)
        if not self.vinit[sl].all(): self.err(I, 'read of uninitialised vgpr %d' % o.i)
        t = self.t
        d = t - self.t_mfma_w[sl].max() - 1
        if kind == 'mfma_c':
            if d < 6 and not (self.mfma_d[sl] == o.i).all(): self.err(I, 'mfma D->C overlap hazard %d' % d)
        elif d < 8: self.err(I, 'mfma D->read hazard (%d states)' % d)
        d = t - self.t_valu_w[sl].max() - 1
        if kind in ('mfma_ab', 'mfma_c', 'perm') and d < 2: self.err(I, 'valu->%s hazard (%d)' % (kind, d))
        if kind == 'rl' and d < 1: self.err(I, 'valu->readlane hazard')
        if kind in ('valu', 'perm', 'rl', 'mem') and t - self.t_trans_w[sl].max() - 1 < 1: self.err(I, 'trans->use hazard')
    def chk_vwrite(self, I, o, kind):
        sl = slice(o.i, o.i + o.n)
        if self.vpend[sl].any(): self.err(I, 'write of pending vgpr %d' % o.i)
        t = self.t
        if kind != 'mfma':
            d = t - self.t_mfma_w[sl].max() - 1
            if d < 8: self.err(I, 'mfma D->write hazard (%d)' % d)
            if t - self.t_mfma_c[sl].max() - 1 < 3: self.err(I, 'mfma C WAR hazard')
        if t - self.t_store_r[sl].max() - 1 < 2: self.err(I, 'store data WAR hazard')
        self.vinit[sl] = True
        if kind in ('valu', 'trans'): self.t_valu_w[sl] = t
        if kind == 'trans': self.t_trans_w[sl] = t
    def vsrc(self, I, o, kind='valu'):
        if o.k == 'v':
            if o.i >= 256 and kind in ('valu', 'trans') and not I.mn.startswith('v_accvgpr'): self.err(I, 'agpr in valu')
            self.chk_vread(I, o, kind)
            return self.v[o.i]
        if o.k == 's' and self.t - self.t_s_valu[o.i] - 1 < 2: self.err(I, 'valu sgpr write -> valu read hazard')
        return np.full(64, self.sget(I, o), np.uint32)
    def fsrc(self, I, o, kind='valu'):
        x = self.vsrc(I, o, kind).view(np.float32)
        if o.abs: x = np.abs(x)
        if o.neg: x = -x
        return x
    def vdst(self, I, o, val, kind='valu'):
        self.chk_vwrite(I, o, kind)
        val = np.asarray(val)
        if val.dtype == np.float32: val = val.view(np.uint32)
        elif val.dtype != np.uint32: val = (val & 0xffffffff).astype(np.uint32)
        m = self.exec_mask()
        if m is None: self.v[o.i] = val
        else: self.v[o.i] = np.where(m, val, self.v[o.i])
    def set_mask(self, I, o, c):
        m = self.exec_mask()
        if m is not None: c = c & m
        val = 0
        for b in np.nonzero(c)[0]: val |= 1 << int(b)
        self.sset64(I, o, val)
        self.t_s_valu[o.i] = self.t_s_valu[o.i + 1] = self.t
    def get_mask(self, I, o):
        if self.t - max(self.t_s_valu[o.i], self.t_s_valu[o.i + 1]) - 1 < 2: self.err(I, 'valu mask write -> read hazard')
        e = self.sget64(I, o)
        return np.array([(e >> i) & 1 for i in range(64)], bool)
    def lds_gran(self, I, addr, nb, m):
        if m is not None: addr = addr[m]
        if len(addr) and (addr.max() + nb > self.wg.ldsz): self.err(I, 'LDS OOB %d' % addr.max())
        g = addr // 8
        if nb > 8: g = np.concatenate([g + k for k in range(nb // 8)])
        return np.unique(g)
    def lds_read_chk(self, I, g):
        wg = self.wg
        if (wg.w_wave[g] < 0).any(): self.err(I, 'LDS read of never written data at %d' % (g[wg.w_wave[g] < 0][0] * 8))
        bad = (wg.w_ep[g] == BIG) | ((wg.w_wave[g] != self.wid) & (wg.w_ep[g] >= wg.epoch))
        if bad.any(): self.err(I, 'LDS RAW hazard at %d (writer wave %d, ep %d, now %d)' % (g[bad][0] * 8, wg.w_wave[g][bad][0], wg.w_ep[g][bad][0], wg.epoch))
        wg.r_cnt[self.wid, g] += 1
        def done():
            wg.r_cnt[self.wid, g] -= 1; wg.r_ep[self.wid, g] = wg.epoch
        return done
    def lds_write_chk(self, I, g, dma):
        wg = self.wg
        for y in range(len(wg.waves)):
            if y == self.wid and not dma: continue
            if wg.r_cnt[y, g].any(): self.err(I, 'LDS WAR hazard: read in flight by wave %d at %d' % (y, g[wg.r_cnt[y, g] > 0][0] * 8))
            if y != self.wid and (wg.r_ep[y, g] >= wg.epoch).any(): self.err(I, 'LDS WAR hazard vs wave %d at %d' % (y, g[wg.r_ep[y, g] >= wg.epoch][0] * 8))
        bad = (wg.w_ep[g] == BIG) | ((wg.w_wave[g] != self.wid) & (wg.w_wave[g] >= 0) & (wg.w_ep[g] >= wg.epoch))
        if bad.any(): self.err(I, 'LDS WAW hazard at %d' % (g[bad][0] * 8))
        wg.w_wave[g] = self.wid
        if dma:
            wg.w_ep[g] = BIG
        else:
            wg.w_ep[g] = BIG - 1
        def done():
            wg.w_ep[g] = wg.epoch
        return done
    def bank_conf(self, I, addr, kind):
        if kind == 'b128':
            groups = [[0,1,2,3,12,13,14,15,20,21,22,23,24,25,26,27],[4,5,6,7,8,9,10,11,16,17,18,19,28,29,30,31]]
            groups += [[x + 32 for x in g] for g in groups]; nd = 4
        else:
            groups = [list(range(32)), list(range(32, 64))]; nd = 2
        ex = 0
        for g in groups:
            a = np.unique(addr[g] // 4)
            b = np.concatenate([(a + k) % 64 for k in range(nd)])
            ex += np.bincount(b).max() - 1
        if ex:
            k = 'bankconf:' + str(I.line)
            self.count[k] = self.count.get(k, 0) + ex
    def baddr(self, I, vo, srd, so):
        for r in list(srd.regs()) + ([so.i] if so.k == 's' else []):
            if self.t - self.t_s_valu[r] - 1 < 5: self.err(I, 'valu sgpr -> vmem hazard')
            if r in self.spend: self.err(I, 'pending srd')
        base = self.s[srd.i] | ((self.s[srd.i + 1] & 0xffff) << 32)
        if self.s[srd.i + 3] != 0x20000: self.err(I, 'bad srd word3')
        off = np.full(64, I.mods.get('offset', 0) + self.sget(I, so), np.int64)
        if vo.k == 'v':
            self.chk_vread(I, vo, 'mem')
            off = off + self.v[vo.i].astype(np.int64)
        return base, off, self.s[srd.i + 2]
    def gather(self, I, base, off, nrec, nb):
        if base == 0x7777000000: return np.zeros((64, nb // 4), np.uint32)
        b0, a, name = self.wg.mem.find(base)
        if base - b0 + nrec > len(a): self.err(I, 'SRD range exceeds buffer %s' % name)
        ok = off + nb <= nrec
        if self.wg.mem.region and ok.any():
            r = self.wg.mem.region(name, base - b0 + int(off[ok].min()))
            if r and r not in self.passed: self.err(I, 'load before sync %s' % r)
            if r and 'sc1' not in I.mods: self.err(I, 'hand-off load without sc1')
        idx = (base - b0 + np.where(ok, off, 0))[:, None] + np.arange(nb)[None, :]
        d = a[idx]
        if not ok.all():
            d[~ok] = 0
            self.count['oob_load'] = self.count.get('oob_load', 0) + 1
        return np.ascontiguousarray(d).view(np.uint32)
    def retire(self, q, n):
        while len(q) > n:
            for f in q.pop(0): f()
    def pend(self, o):
        sl = slice(o.i, o.i + o.n)
        self.vpend[sl] += 1
        def done(): self.vpend[sl] -= 1
        return done
    def run(self, maxsteps):
        ins = self.wg.ins
        while True:
            if self.pc in self.wg.rets: self.passed.add(self.wg.rets[self.pc][:-4])
            I = ins[self.pc]; self.pc += 1
            self.nins += 1
            if self.nins > maxsteps: self.err(I, 'too many steps')
            r = self.step(I)
            self.t += 1
            if r: return
    def step(self, I):
        mn = I.mn; o = I.ops
        c = mn[0]
        if c == 'v':
            if mn == 'v_mfma_f32_16x16x32_bf16':
                self.chk_vread(I, o[1], 'mfma_ab'); self.chk_vread(I, o[2], 'mfma_ab')
                def frag(x):
                    r = self.v[x.i:x.i + 4]
                    lo = (r << 16).view(np.float32); hi = (r & 0xffff0000).view(np.float32)
                    f = np.stack([lo, hi], 1).reshape(8, 4, 16)
                    return f.transpose(2, 1, 0).reshape(16, 32)
                A = frag(o[1]); B = frag(o[2])
                with np.errstate(all='ignore'):
                    D = A @ B.T
                    D = D.reshape(4, 4, 16).transpose(1, 0, 2).reshape(4, 64)
                    if o[3].k == 'v':
                        if (o[3].i >= 256) != (o[0].i >= 256): self.err(I, 'C/D class mismatch')
                        self.chk_vread(I, o[3], 'mfma_c')
                        D = D + self.v[o[3].i:o[3].i + 4].view(np.float32)
                        self.t_mfma_c[o[3].i:o[3].i + 4] = self.t
                    elif o[3].val != 0: self.err(I, 'const C')
                self.chk_vwrite(I, o[0], 'mfma')
                if self.exec_mask() is not None: self.err(I, 'mfma under partial exec')
                self.v[o[0].i:o[0].i + 4] = D.astype(np.float32).view(np.uint32)
                self.t_mfma_w[o[0].i:o[0].i + 4] = self.t; self.mfma_d[o[0].i:o[0].i + 4] = o[0].i
                self.count['mfma'] = self.count.get('mfma', 0) + 1
                return
            return self.valu(I)
        if c == 's': return self.salu(I)
        if c == 'd': return self.ds(I)
        if c == 'b': return self.vmem(I)
        self.err(I, 'unknown')
    def valu(self, I):
        mn = I.mn; o = I.ops
        F = self.fsrc; V = self.vsrc
        with np.errstate(all='ignore'):
            if mn in TRANS:
                x = F(I, o[1], 'trans')
                r = {'v_exp_f32': np.exp2, 'v_log_f32': np.log2, 'v_rcp_f32': lambda x: np.float32(1) / x,
                     'v_rsq_f32': lambda x: np.float32(1) / np.sqrt(x), 'v_sqrt_f32': np.sqrt}[mn](x)
                return self.vdst(I, o[0], r.astype(np.float32), 'trans')
            dpp = [k for k in I.mods if k.startswith(('row_ror', 'row_shr', 'quad_perm', 'row_half_mirror', 'row_mirror'))]
            if dpp:
                self.chk_vread(I, o[1], 'perm')
                src = self.v[o[1].i]
                k = dpp[0]
                if k == 'row_ror':
                    n = I.mods[k]; idx = (LANES & ~15) | ((LANES - n) & 15)
                elif k == 'row_mirror': idx = (LANES & ~15) | (15 - (LANES & 15))
                elif k == 'row_half_mirror': idx = (LANES & ~7) | (7 - (LANES & 7))
                else: self.err(I, 'dpp')
                a = src[idx].view(np.float32)
                if mn == 'v_mov_b32': return self.vdst(I, o[0], a.copy())
                b = F(I, o[2])
                r = {'v_add_f32': np.add, 'v_max_f32': np.fmax}[mn](a, b)
                return self.vdst(I, o[0], r)
            if mn == 'v_cvt_pk_bf16_f32':
                return self.vdst(I, o[0], bf16_round(F(I, o[1])) | (bf16_round(F(I, o[2])) << 16))
            if mn in ('v_mov_b32', 'v_accvgpr_write_b32', 'v_accvgpr_read_b32', 'v_accvgpr_mov_b32'):
                return self.vdst(I, o[0], V(I, o[1]).copy())
            f2 = {'v_add_f32': np.add, 'v_sub_f32': np.subtract, 'v_mul_f32': np.multiply, 'v_max_f32': np.fmax, 'v_min_f32': np.fmin,
                  'v_subrev_f32': lambda a, b: b - a}
            if mn in f2: return self.vdst(I, o[0], f2[mn](F(I, o[1]), F(I, o[2])))
            if mn == 'v_fma_f32':
                return self.vdst(I, o[0], (F(I, o[1]).astype(np.float64) * F(I, o[2]) + F(I, o[3])).astype(np.float32))
            if mn == 'v_fmac_f32':
                return self.vdst(I, o[0], (F(I, o[1]).astype(np.float64) * F(I, o[2]) + F(I, o[0])).astype(np.float32))
            if mn == 'v_fmaak_f32':
                return self.vdst(I, o[0], (F(I, o[1]).astype(np.float64) * F(I, o[2]) + F(I, o[3])).astype(np.float32))
            if mn == 'v_max3_f32': return self.vdst(I, o[0], np.fmax(np.fmax(F(I, o[1]), F(I, o[2])), F(I, o[3])))
            L = lambda x: V(I, x).astype(np.int64)
            i2 = {'v_add_u32': lambda a, b: a + b, 'v_sub_u32': lambda a, b: a - b, 'v_subrev_u32': lambda a, b: b - a,
                  'v_and_b32': lambda a, b: a & b, 'v_or_b32': lambda a, b: a | b, 'v_xor_b32': lambda a, b: a ^ b,
                  'v_lshlrev_b32': lambda a, b: b << (a & 31), 'v_lshrrev_b32': lambda a, b: b >> (a & 31),
                  'v_mul_u32_u24': lambda a, b: (a & 0xffffff) * (b & 0xffffff), 'v_mul_lo_u32': lambda a, b: (a * b),
                  'v_min_u32': np.minimum, 'v_max_u32': np.maximum}
            if mn in i2: return self.vdst(I, o[0], i2[mn](L(o[1]), L(o[2])))
            i3 = {'v_lshl_add_u32': lambda a, b, c: (a << (b & 31)) + c, 'v_lshl_or_b32': lambda a, b, c: (a << (b & 31)) | c,
                  'v_add_lshl_u32': lambda a, b, c: (a + b) << (c & 31), 'v_and_or_b32': lambda a, b, c: (a & b) | c,
                  'v_mad_u32_u24': lambda a, b, c: (a & 0xffffff) * (b & 0xffffff) + c, 'v_add3_u32': lambda a, b, c: a + b + c,
                  'v_bfe_u32': lambda a, b, c: (a >> (b & 31)) & ((1 << (c & 31)) - 1), 'v_or3_b32': lambda a, b, c: a | b | c,
                  'v_xad_u32': lambda a, b, c: (a ^ b) + c}
            if mn in i3: return self.vdst(I, o[0], i3[mn](L(o[1]), L(o[2]), L(o[3])))
            if mn.startswith('v_cmp_'):
                _, _, op, ty = mn.split('_')
                if ty == 'f32': a, b = F(I, o[1]), F(I, o[2])
                elif ty == 'u32': a, b = L(o[1]), L(o[2])
                else: a, b = V(I, o[1]).view(np.int32), V(I, o[2]).view(np.int32)
                neg = False
                if ty == 'f32' and op in ('nlt', 'nle', 'ngt', 'nge', 'neq'): neg = True; op = op[1:]
                r = {'lt': a < b, 'le': a <= b, 'gt': a > b, 'ge': a >= b, 'eq': a == b, 'ne': a != b}[op]
                if neg: r = ~r
                return self.set_mask(I, o[0], r)
            if mn == 'v_cndmask_b32':
                m = self.get_mask(I, o[3])
                return self.vdst(I, o[0], np.where(m, V(I, o[2]), V(I, o[1])))
            if mn == 'v_readfirstlane_b32':
                self.chk_vread(I, o[1], 'rl')
                m = self.exec_mask()
                l = 0 if m is None or not m.any() else int(np.argmax(m))
                self.sset(I, o[0], int(self.v[o[1].i][l])); self.t_s_valu[o[0].i] = self.t
                return
            if mn in ('v_permlane32_swap_b32', 'v_permlane16_swap_b32'):
                self.chk_vread(I, o[0], 'perm'); self.chk_vread(I, o[1], 'perm')
                a = self.v[o[0].i].copy(); b = self.v[o[1].i].copy()
                if mn == 'v_permlane32_swap_b32':
                    t = a[32:].copy(); a[32:] = b[:32]; b[:32] = t
                else:
                    for r in (0, 32):
                        t = a[r + 16:r + 32].copy(); a[r + 16:r + 32] = b[r:r + 16]; b[r:r + 16] = t
                self.vdst(I, o[0], a); self.vdst(I, o[1], b)
                return
            if mn == 'v_nop': return
        self.err(I, 'unknown valu')
    def salu(self, I):
        mn = I.mn; o = I.ops; S = lambda x: self.sget(I, x)
        if mn == 's_waitcnt':
            if 'vmcnt' in I.mods: self.retire(self.vmq, I.mods['vmcnt'])
            if 'lgkmcnt' in I.mods:
                n = I.mods['lgkmcnt']
                if n > 15: self.err(I, 'lgkmcnt range')
                if self.spend and n != 0: self.err(I, 'counted lgkm with smem pending')
                self.retire(self.lgq, n)
                if n == 0: self.spend = set()
            if I.mods.get('vmcnt', 0) > 63: self.err(I, 'vmcnt range')
            return
        if mn == 's_nop': self.t += o[0].val; return
        if mn == 's_barrier': self.nbar += 1; return True
        if mn == 's_endpgm':
            self.retire(self.vmq, 0); self.retire(self.lgq, 0); self.done = True; return True
        if mn in ('s_setprio', 's_sleep'):
            return
        if mn == 's_branch': self.pc = self.wg.labels[o[0].val]; return
        if mn.startswith('s_cbranch_'):
            k = mn[10:]
            vcc = self.s[106] | self.s[107]; ex = self.s[126] | self.s[127]
            t = {'scc0': not self.scc, 'scc1': self.scc, 'vccz': vcc == 0, 'vccnz': vcc != 0, 'execz': ex == 0, 'execnz': ex != 0}[k]
            if t: self.pc = self.wg.labels[o[0].val]
            return
        if mn.startswith('s_load_dword'):
            addr = self.sget64(I, o[1]) + o[2].val
            b0, a, _ = self.wg.mem.find(addr)
            d = a[addr - b0: addr - b0 + 4 * o[0].n].view(np.uint32)
            for k in range(o[0].n):
                self.s[o[0].i + k] = int(d[k]); self.spend.add(o[0].i + k)
            return
        if mn == 's_getpc_b64': return self.sset64(I, o[0], 0x7777000000)
        if mn in ('s_memtime', 's_memrealtime'): return self.sset64(I, o[0], 1)
        if mn == 's_getreg_b32': return self.sset(I, o[0], 0)
        if mn in ('s_mov_b32', 's_movk_i32'): return self.sset(I, o[0], S(o[1]))
        if mn == 's_mov_b64': return self.sset64(I, o[0], self.sget64(I, o[1]))
        if mn.startswith('s_cmp_'):
            _, _, op, ty = mn.split('_')
            if ty == 'u64': a, b = self.sget64(I, o[0]), self.sget64(I, o[1])
            else: a, b = S(o[0]), S(o[1])
            if ty == 'i32':
                a -= (a >> 31) << 32; b -= (b >> 31) << 32
            self.scc = int({'eq': a == b, 'lg': a != b, 'lt': a < b, 'le': a <= b, 'gt': a > b, 'ge': a >= b}[op]); return
        if mn == 's_bitcmp1_b32': self.scc = (S(o[0]) >> (S(o[1]) & 31)) & 1; return
        if mn == 's_cselect_b32': return self.sset(I, o[0], S(o[1]) if self.scc else S(o[2]))
        if mn == 's_and_saveexec_b64':
            e = self.s[126] | (self.s[127] << 32); m = self.sget64(I, o[1])
            self.sset64(I, o[0], e); e &= m
            self.s[126] = e & 0xffffffff; self.s[127] = e >> 32; self.scc = int(e != 0); return
        if mn in ('s_or_b64', 's_and_b64'):
            a, b = self.sget64(I, o[1]), self.sget64(I, o[2])
            r = a | b if mn == 's_or_b64' else a & b
            self.sset64(I, o[0], r); self.scc = int(r != 0); return
        a, b = S(o[1]), S(o[2])
        if mn == 's_add_u32': r = a + b; self.scc = r >> 32
        elif mn == 's_addc_u32': r = a + b + self.scc; self.scc = r >> 32
        elif mn == 's_sub_u32': r = a - b; self.scc = int(r < 0)
        elif mn == 's_mul_i32': r = a * b
        elif mn == 's_mul_hi_u32': r = (a * b) >> 32
        elif mn == 's_min_u32': r = min(a, b); self.scc = int(a < b)
        elif mn == 's_max_u32': r = max(a, b); self.scc = int(a > b)
        else:
            r = {'s_lshl_b32': a << (b & 31), 's_lshr_b32': a >> (b & 31), 's_and_b32': a & b, 's_or_b32': a | b, 's_xor_b32': a ^ b,
                 's_bfe_u32': (a >> (b & 31)) & ((1 << ((b >> 16) & 127)) - 1)}.get(mn)
            if r is None: self.err(I, 'unknown salu')
            self.scc = int((r & 0xffffffff) != 0)
        self.sset(I, o[0], r)
    def ds(self, I):
        mn = I.mn; o = I.ops; lds = self.wg.lds
        m = self.exec_mask()
        if mn.startswith('ds_read'):
            nb = {'ds_read_b128': 16, 'ds_read_b64': 8, 'ds_read_b64_tr_b16': 8, 'ds_read_b32': 4}[mn]
            self.chk_vread(I, o[1], 'mem')
            addr = self.v[o[1].i].astype(np.int64) + I.mods.get('offset', 0)
            if I.mods.get('offset', 0) > 65535: self.err(I, 'ds offset')
            if (addr % nb).any(): self.err(I, 'unaligned ds')
            g = self.lds_gran(I, addr, nb, m)
            d1 = self.lds_read_chk(I, g)
            if m is not None:
                if mn.endswith('tr_b16'): self.err(I, 'tr under mask')
                addr = np.where(m, addr, 0)
            elif nb >= 8: self.bank_conf(I, addr, 'b128' if nb == 16 else 'b64')
            d = np.ascontiguousarray(lds[addr[:, None] + np.arange(nb)[None, :]])
            if mn.endswith('tr_b16'):
                h = d.view(np.uint16).reshape(4, 4, 16)
                d = np.ascontiguousarray(h.transpose(0, 2, 1)).reshape(64, 4)
            d = d.view(np.uint32).reshape(64, nb // 4)
            self.chk_vwrite(I, o[0], 'load')
            for k in range(nb // 4):
                self.v[o[0].i + k] = d[:, k] if m is None else np.where(m, d[:, k], self.v[o[0].i + k])
            self.lgq.append([d1, self.pend(o[0])])
        elif mn.startswith('ds_write'):
            nb = {'ds_write_b128': 16, 'ds_write_b64': 8, 'ds_write_b32': 4}[mn]
            self.chk_vread(I, o[0], 'mem'); self.chk_vread(I, o[1], 'mem')
            addr = self.v[o[0].i].astype(np.int64) + I.mods.get('offset', 0)
            g = self.lds_gran(I, addr, nb, m)
            d1 = self.lds_write_chk(I, g, False)
            d = np.ascontiguousarray(self.v[o[1].i:o[1].i + nb // 4].T).view(np.uint8)
            sel = slice(None) if m is None else m
            lds[addr[sel][:, None] + np.arange(nb)[None, :]] = d[sel]
            self.lgq.append([d1])
        else: self.err(I, 'unknown ds')
        if len(self.lgq) > 15: self.count['lgkm_overflow'] = self.count.get('lgkm_overflow', 0) + 1
    def vmem(self, I):
        mn = I.mn; o = I.ops
        m = self.exec_mask()
        if I.mods.get('offset', 0) > 4095: self.err(I, 'buffer offset')
        if mn in ('buffer_inv', 'buffer_wbl2'):
            self.vmq.append([]); return
        nb = 4 * {'dword': 1, 'dwordx2': 2, 'dwordx4': 4, 'add': 1}[mn.split('_')[-1]]
        if mn.startswith('buffer_load'):
            if 'lds' in I.mods:
                if self.t - self.t_m0 - 1 < 1: self.err(I, 'm0 -> lds dma hazard')
                if m is not None: self.err(I, 'dma under mask')
                base, off, nrec = self.baddr(I, o[0], o[1], o[2])
                d = self.gather(I, base, off, nrec, nb)
                la = (self.s[124] & 0x3fffc) + I.mods.get('offset', 0) + LANES * nb
                g = self.lds_gran(I, la, nb, None)
                d1 = self.lds_write_chk(I, g, True)
                self.wg.lds[la[0]:la[0] + 64 * nb] = d.view(np.uint8).reshape(-1)
                self.vmq.append([d1])
            else:
                base, off, nrec = self.baddr(I, o[1], o[2], o[3])
                if m is not None: off = np.where(m, off, 0)
                d = self.gather(I, base, off, nrec, nb)
                self.chk_vwrite(I, o[0], 'load')
                for k in range(nb // 4):
                    self.v[o[0].i + k] = d[:, k] if m is None else np.where(m, d[:, k], self.v[o[0].i + k])
                self.vmq.append([self.pend(o[0])])
        else:
            base, off, nrec = self.baddr(I, o[1], o[2], o[3])
            self.chk_vread(I, o[0], 'mem')
            b0, a, name = self.wg.mem.find(base)
            if base - b0 + nrec > len(a): self.err(I, 'SRD range exceeds buffer %s' % name)
            ok = off + nb <= nrec
            if m is not None: ok = ok & m
            elif not ok.all() and nrec and (off[~ok] < 0x40000000).any(): self.err(I, 'OOB store')
            mem = self.wg.mem; cbs = []
            if ok.any():
                lo_ = base - b0 + off[ok].min()
                rec = None
                if mem.region:
                    if mn.startswith('buffer_store'):
                        r = mem.region(name, int(lo_))
                        if r:
                            if r in self.wg.signalled: self.err(I, 'store after signal %s' % r)
                            if 'sc1' not in I.mods: self.err(I, 'hand-off store without sc1')
                            rec = [r, None]; self.wg.stores.append(rec)
                    else:
                        r = mem.sigof(name, int(lo_))
                        if r != 'S1' and 'S1' not in self.passed: self.err(I, 'signal before flags are known cleared')
                        for q in self.wg.stores:
                            if q[0] == r and (q[1] is None or q[1] >= self.wg.epoch): self.err(I, 'signal %s before stores complete' % r)
                        self.wg.signalled.add(r)
                if rec:
                    def fin(rec=rec): rec[1] = self.wg.epoch
                    cbs.append(fin)
                if any(n == name and l <= lo_ < h for n, l, h in mem.frozen):
                    mem.log.append((mn, name, int(lo_), int(ok.sum()), int(self.v[o[0].i][np.argmax(ok)]), self.wid, I.line))
                    self.vmq.append(cbs); return
                if name in mem.written:
                    mem.written[name][((base - b0 + off[ok]) // 2)[:, None] + np.arange(nb // 2)[None, :]] = True
            if mn.startswith('buffer_store'):
                d = np.ascontiguousarray(self.v[o[0].i:o[0].i + nb // 4].T).view(np.uint8)
                a[(base - b0 + off[ok])[:, None] + np.arange(nb)[None, :]] = d[ok]
                if nb > 8: self.t_store_r[o[0].i:o[0].i + o[0].n] = self.t
            else:
                w = a.view(np.uint32)
                for l in np.nonzero(ok)[0]:
                    w[(base - b0 + off[l]) // 4] += self.v[o[0].i][l]
            self.vmq.append(cbs)
        if len(self.vmq) > 63: self.count['vm_overflow'] = self.count.get('vm_overflow', 0) + 1
```

```python
import sys
from asmlib import *
import gen as G
from gen import (NAME, MB, V_L16, V_TR, V_WD, V_AD, V_AR, V_T, V_WB, V_ACC, V_R, QSCALE, w_dma_voff, tr_addrs, areg, rbase,
                 Passes, cvt_pairs, V_AV, V_AK, V_LB, V_E, V_NB, V_P, V_NA, V_OB, V_OA, A_QL, A_K, A_V, A_ONE, A_L, RING, NINF,
                 qfrag, stile, otile, ntile, lacc, qk_mfmas, pv_mfmas, sm_ops, k_reads, v_reads)

WS_XN, WS_KV, WS_A3, WS_FLG, WS_W3, WS_PROF = 0, 2 * MB, 34 * MB, 57 * MB, 58 * MB, 64 * MB
LDS_SZ = 163840
ST = ' sc1'
LD = ' sc1'
PROF = False
TOUCH1 = 1
TOUCH2 = 1
BIGOFF = 0x7fffff00
SPIN = 1 << 16
PGAPS = [256 * p + 255 for p in range(8)]

R_X, R_CKV, R_WQ, R_WK, R_WV, R_W3, R_WG, R_WU, R_OUT, R_DBG, R_WS, R_KV, R_TMP = 4, 8, 12, 16, 20, 24, 28, 32, 36, 40, 44, 48, 52
sT, sT1, sT2, sU, sV, sK = 56, 57, 58, 59, 60, 61
sM0W, sJ, sH = 62, 63, 64
sA, sW1, sM0A, sKVO, sXO, sXN, sQS, sF2P = 65, 66, 67, 68, 69, 70, 71, 72
sAH, sAC, sWH, sWC, sO, sO1, sF4C = 65, 66, 67, 68, 69, 70, 71
sXA, sXB, sWQ, sWG, sHA, sHB, sPS, sPD = 73, 74, 75, 76, 77, 78, 79, 80
sSLOT, sM0R, sCNT, sNINF, sTHR = 73, 74, 75, 76, 77
sCA, sCB, sSRC, sM0B, sQB, sFLAG, sMASK, sFX, sSPIN = 81, 82, 83, 84, 85, 86, 88, 96, 97
V_SIG, V_POLL, V_PROF = 14, 13, 15

def stamp(k, vp=V_PROF):
    if not PROF: return []
    o = [f'v_mov_b32 v{vp}, 0'] if k == 0 else []
    return o + ['s_memrealtime s[98:99]', 's_memtime s[100:101]', 's_waitcnt lgkmcnt(0)', f'v_writelane_b32 v{vp}, s98, {2*k}', f'v_writelane_b32 v{vp}, s100, {2*k+1}']

def chain(sc, ops, g, hi=None):
    prev = None
    for o in ops:
        if isinstance(o, int):
            g += o; continue
        k = kind_of(o)
        if prev is not None and not (k == 'v' and prev == 'v'): g += 1
        g = sc.place(o, g, hi)
        prev = k
    return g + 1

def wsrd(r):
    return S(r, 4)

def gen_fused(code_bytes):
    nm = NAME + '_kernel'
    OOL = []
    L = [f'.globl {nm}', '.p2align 8', f'.type {nm},@function', f'{nm}:', 's_cmp_ge_u32 s2, 256', 's_cbranch_scc1 K_END']
    for r, off in ((R_CKV, 8), (R_WK, 24), (R_X, 0), (R_WQ, 16), (R_WV, 32), (R_W3, 40), (R_WG, 56), (R_WU, 64), (R_KV, 72), (R_OUT, 80), (R_DBG, 88), (R_WS, 96)):
        L.append(f's_load_dwordx2 s[{r}:{r+1}], s[0:1], {off}')
    L += [f's_getpc_b64 s[{R_TMP}:{R_TMP+1}]', f's_mov_b32 s{R_TMP+2}, {code_bytes}', f's_mov_b32 s{R_TMP+3}, 0x20000',
          f's_lshr_b32 s{sU}, s2, 3', f's_lshl_b32 s{sV}, s{sU}, 12', f'v_lshl_add_u32 v1, v0, 4, s{sV}',
          f'buffer_load_dword v2, v1, {wsrd(R_TMP)}, 0 offen',
          f'v_lshl_add_u32 v18, s{sU}, 8, v0',
          f'v_cmp_eq_u32 vcc, 0, v0', f'v_mov_b32 v19, {BIGOFF:#x}',
          'v_lshrrev_b32 v1, 6, v0', 'v_and_b32 v0, 63, v0', 'v_readfirstlane_b32 s3, v1', 'v_cndmask_b32 v19, v19, v0, vcc']
    for r, sz in ((R_CKV, 2 * MB), (R_WK, 4 * MB), (R_X, 2 * MB), (R_WQ, 4 * MB), (R_WV, 4 * MB), (R_WG, 512 * 3584), (R_WU, 512 * 3584),
                  (R_OUT, 2 * MB), (R_DBG, 256), (R_WS, 64 * MB)):
        L += [f's_mov_b32 s{r+2}, {sz:#x}', f's_mov_b32 s{r+3}, 0x20000']
    sRB, sH1 = sT1, sT2
    L += [f's_and_b32 s{sU}, s2, 1', f's_lshl_b32 s{sCA}, s{sU}, 20', f's_lshl_b32 s{sU}, s{sU}, 2', f's_bfe_u32 s{sV}, s2, 0x20003', f's_add_u32 s{sRB}, s{sU}, s{sV}',
          f's_bfe_u32 s{sU}, s2, 0x20001', f's_lshl_b32 s{sCB}, s{sU}, 11', f's_lshl_b32 s{sU}, s{sU}, 3', f's_lshr_b32 s{sV}, s2, 5', f's_add_u32 s{sH1}, s{sU}, s{sV}']
    L += [f'v_lshl_add_u32 v20, v18, 7, s{sCA}', 'v_lshrrev_b32 v21, 4, v18', 'v_and_b32 v22, 15, v18', 'v_lshlrev_b32 v21, 13, v21',
          'v_lshl_add_u32 v21, v22, 7, v21', f'v_add_u32 v18, s{sCB}, v21', 's_waitcnt lgkmcnt(0)']
    L += stamp(0, 39)
    if TOUCH1:
        L += [f'buffer_load_dword v20, v20, {wsrd(R_CKV)}, 0 offen', f'buffer_load_dword v21, v18, {wsrd(R_WK)}, 0 offen']
    L += [f's_lshl_b32 s{sU}, s{sRB}, 2', f's_add_u32 s{sU}, s{sU}, s3', f's_lshl_b32 s{sA}, s{sU}, 16',
          f's_lshl_b32 s{sV}, s{sH1}, 20', f's_lshl_b32 s{sU}, s{sU}, 15', f's_add_u32 s{sKVO}, s{sU}, s{sV}', f's_add_u32 s{sKVO}, s{sKVO}, {WS_KV:#x}',
          f's_lshl_b32 s{sU}, s3, 18', f's_lshl_b32 s{sV}, s{sH1}, 8', f's_add_u32 s{sW1}, s{sU}, s{sV}',
          f's_lshl_b32 s{sM0W}, s3, 12', f's_mul_i32 s{sM0A}, s3, 24576', f's_add_u32 s{sM0A}, s{sM0A}, 65536',
          f's_lshl_b32 s{sF2P}, s{sH1}, 7', f's_add_u32 s{sF2P}, s{sF2P}, {WS_FLG:#x}']
    t = V_T + 4
    L += [f'v_lshrrev_b32 v{t}, 3, v0', f'v_lshlrev_b32 v{t}, 10, v{t}',
          f'v_lshrrev_b32 v{t+1}, 4, v0', f'v_and_b32 v{t+2}, 7, v0', f'v_xor_b32 v{t+1}, v{t+1}, v{t+2}', f'v_xor_b32 v{t+2}, 4, v{t+1}',
          f'v_lshl_add_u32 v{t+1}, v{t+1}, 4, v{t}', f'v_lshl_add_u32 v{t+2}, v{t+2}, 4, v{t}']
    for i in range(4):
        L.append(f'v_add_u32 v{V_AD+i}, {i * 8192 - i * 1024}, v{t + 1 + (i & 1)}')
    L += w_dma_voff(V_WD, 8192, t)
    def a_items(c):
        it = []
        for hf in range(2):
            it += [f's_add_u32 m0, s{sM0A}, {(c % 3) * 8192 + hf * 4096}', f's_add_u32 s{sT}, s{sA}, {hf * 32768 + c * 128}']
            it += [f'buffer_load_dwordx4 v{V_AD+i}, {wsrd(R_CKV)}, s{sT} offen offset:{i*1024} lds ; @A{c}' for i in range(4)]
        return it
    V_GD = 30
    def w_items(st):
        p, s4 = st // 4, st % 4
        if p in (4, 5):
            it = [f's_add_u32 m0, s{sM0W}, {s4 * 16384}', f's_add_u32 s{sT}, s{sWG}, {s4 * 128 * 3584 + (p % 2) * 64}']
            it += [f'buffer_load_dwordx4 v{V_GD+i}, {wsrd(R_WG)}, s{sT} offen offset:{i*1024} lds ; @W{st}' for i in range(2)]
            it += [f's_add_u32 m0, s{sM0W}, {s4 * 16384 + 2048}']
            it += [f'buffer_load_dwordx4 v{V_GD+i}, {wsrd(R_WU)}, s{sT} offen offset:{i*1024} lds ; @W{st}' for i in range(2)]
            return it
        r, so = (R_WK, sW1) if p < 2 else (R_WV, sW1) if p < 4 else (R_WQ, sWQ)
        it = [f's_add_u32 m0, s{sM0W}, {s4 * 16384}', f's_add_u32 s{sT}, s{so}, {s4 * 128 * 8192 + (p % 2) * 128}']
        it += [f'buffer_load_dwordx4 v{V_WD+i}, {wsrd(r)}, s{sT} offen offset:{i*1024} lds ; @W{st}' for i in range(4)]
        return it
    L += a_items(0) + w_items(0)
    L += [f'v_lshlrev_b32 v{V_L16}, 4, v0', f's_mov_b32 s{sQS}, {QSCALE:#x}']
    L += tr_addrs(V_TR, t)
    L += [f'v_and_b32 v{t}, 15, v0', f'v_lshrrev_b32 v{t+1}, 1, v{t}', f'v_lshrrev_b32 v{t+2}, 4, v0', f'v_xor_b32 v{t+1}, v{t+1}, v{t+2}',
          f'v_lshlrev_b32 v{t}, 7, v{t}', f'v_add_u32 v{t}, s{sM0A}, v{t}',
          f'v_lshl_add_u32 v{V_AR}, v{t+1}, 4, v{t}', f'v_xor_b32 v{V_AR+1}, 64, v{V_AR}']
    L += [f's_lshl_b32 s{sU}, s2, 2', f's_add_u32 s{sU}, s{sU}, s3', f's_lshl_b32 s{sXO}, s{sU}, 11',
          f's_lshr_b32 s{sU}, s2, 2', f's_lshl_b32 s{sXN}, s{sU}, 15', f's_bfe_u32 s{sU}, s2, 0x10001', f's_lshl_b32 s{sU}, s{sU}, 10',
          f's_add_u32 s{sXN}, s{sXN}, s{sU}', f's_and_b32 s{sU}, s2, 1', f's_lshl_b32 s{sU}, s{sU}, 7', f's_add_u32 s{sXN}, s{sXN}, s{sU}',
          f's_lshl_b32 s{sU}, s3, 13', f's_add_u32 s{sXN}, s{sXN}, s{sU}']
    sQA = sK
    L += [f's_and_b32 s{sU}, s2, 7', f's_lshl_b32 s{sU}, s{sU}, 2', f's_bfe_u32 s{sV}, s2, 0x20003', f's_add_u32 s{sH}, s{sU}, s{sV}',
          f's_lshr_b32 s{sJ}, s2, 5', f's_lshl_b32 s{sU}, s{sJ}, 2', f's_add_u32 s{sQB}, s{sU}, s3',
          f's_sub_u32 s{sV}, 60, s{sU}', f's_add_u32 s{sQA}, s{sV}, s3',
          f's_lshl_b32 s{sXA}, s{sQA}, 15', f's_lshl_b32 s{sXB}, s{sQB}, 15',
          f's_lshl_b32 s{sU}, s3, 18', f's_lshl_b32 s{sV}, s{sH}, 8', f's_add_u32 s{sWQ}, s{sU}, s{sV}',
          f's_min_u32 s{sV}, s{sH}, 27', f's_lshl_b32 s{sV}, s{sV}, 7', f's_mul_i32 s{sU}, s3, {32 * 3584}', f's_add_u32 s{sWG}, s{sU}, s{sV}']
    for q, hh, cc in ((sQA, sHA, sCA), (sQB, sHB, sCB)):
        L += [f's_lshr_b32 s{sU}, s{q}, 1', f's_mul_i32 s{sU}, s{sU}, {184 * 4096}', f's_and_b32 s{sV}, s{q}, 1', f's_lshl_b32 s{sV}, s{sV}, 11',
              f's_add_u32 s{sU}, s{sU}, s{sV}', f's_add_u32 s{sU}, s{sU}, {WS_A3:#x}', f's_min_u32 s{sV}, s{sH}, 27', f's_lshl_b32 s{sV}, s{sV}, 13', f's_add_u32 s{hh}, s{sU}, s{sV}',
              f's_lshl_b32 s{sV}, s{sH}, 14', f's_add_u32 s{sU}, s{sU}, s{sV}', f's_add_u32 s{cc}, s{sU}, {56 * 4096}']
    L += ['s_cmp_lt_u32 s2, 56', f's_cselect_b32 s{R_W3}, s{R_KV}, s{R_W3}', f's_cselect_b32 s{R_W3+1}, s{R_KV+1}, s{R_W3+1}',
          f's_cselect_b32 s{sU}, 0, 56', f's_mov_b32 s{sV}, {4*MB:#x}', f's_cselect_b32 s{R_W3+2}, {1792*1024:#x}, s{sV}', f's_mov_b32 s{R_W3+3}, 0x20000',
          f's_min_u32 s{sV}, s2, 183', f's_sub_u32 s{sU}, s{sV}, s{sU}', f's_lshl_b32 s{sU}, s{sU}, 15', f's_lshl_b32 s{sPS}, s3, 8', f's_add_u32 s{sPS}, s{sPS}, s{sU}',
          f's_lshl_b32 s{sV}, s{sV}, 12', f's_mul_i32 s{sU}, s3, {2 * 184 * 4096}', f's_add_u32 s{sPD}, s{sU}, s{sV}', f's_add_u32 s{sPD}, s{sPD}, {WS_W3:#x}']
    L += [f's_lshl_b32 s{sU}, s{sH}, 20', f's_add_u32 s{sU}, s{sU}, {WS_KV:#x}', f's_add_u32 s{R_KV}, s{R_WS}, s{sU}', f's_addc_u32 s{R_KV+1}, s{R_WS+1}, 0',
          f's_lshl_b32 s{sU}, s{sJ}, 16', f's_sub_u32 s{R_KV+2}, 0x100000, s{sU}', f's_mov_b32 s{R_KV+3}, 0x20000',
          's_cmp_lt_u32 s3, 2', f's_cselect_b32 s{sU}, 0xc000, 0', f's_add_u32 s{sSRC}, s{sU}, s{sM0W}', f's_add_u32 s{sM0B}, s{sM0W}, {RING}',
          f's_mov_b64 s[{sFLAG}:{sFLAG+1}], 0']
    L += ['s_cmp_eq_u32 s3, 0', f's_cselect_b32 s{R_TMP}, s{R_WG}, s{R_WU}', f's_cselect_b32 s{R_TMP+1}, s{R_WG+1}, s{R_WU+1}',
          f's_min_u32 s{sU}, s{sH}, 27', f's_lshl_b32 s{sU}, s{sU}, 7', f's_lshl_b32 s{sV}, s{sH}, 1', f's_add_u32 s{sV}, s{sV}, s3', f's_sub_u32 s{sV}, s{sV}, 2', f's_lshl_b32 s{sV}, s{sV}, 7',
          's_cmp_lt_u32 s3, 2', f's_cselect_b32 s{R_TMP}, s{R_TMP}, s{R_WQ}', f's_cselect_b32 s{R_TMP+1}, s{R_TMP+1}, s{R_WQ+1}',
          f's_cselect_b32 s{R_TMP+2}, s{R_WG+2}, s{R_WQ+2}', f's_cselect_b32 s{sU}, s{sU}, s{sV}', f's_mov_b32 s{sV}, 8192', f's_cselect_b32 s{sV}, 3584, s{sV}',
          f'v_lshl_add_u32 v29, s{sJ}, 6, v0', f'v_mul_lo_u32 v29, v29, s{sV}', f'v_add_u32 v29, s{sU}, v29']
    L += [f'v_lshrrev_b32 v{t}, 4, v0', f'v_lshlrev_b32 v{t}, 2, v{t}', f'v_and_b32 v{t+1}, 15, v0']
    for i in range(4):
        L += [f'v_add_u32 v{t+2}, {i}, v{t}', f'v_cmp_gt_u32 s[{sMASK+2*i}:{sMASK+2*i+1}], v{t+2}, v{t+1}']
    V_C2 = 3
    L += [f'v_mov_b32 v{V_C2}, 0xbdd2d3e8']
    L += [f'v_lshrrev_b32 v{t}, 2, v0', f'v_mul_u32_u24 v{t}, 3584, v{t}', f'v_lshrrev_b32 v{t+1}, 4, v0', f'v_and_b32 v{t+1}, 2, v{t+1}',
          f'v_and_b32 v{t+2}, 3, v0', f'v_xor_b32 v{t+1}, v{t+1}, v{t+2}', f'v_lshl_add_u32 v{V_GD}, v{t+1}, 4, v{t}',
          f'v_add_u32 v{V_GD+1}, {16 * 3584 - 1024}, v{V_GD}']
    L += a_items(1)
    P = Passes(['T', 'T', 'N', 'N', 'G', 'G', 'T', 'T'])
    sc = P.sc
    def barg(st):
        return 8 * (8 * (st - 1) + 5) + 7
    def a_reads(c):
        return [f'ds_read_b128 {areg(2*c + k, rt)}, v{V_AR + k} offset:{(c % 3) * 8192 + rt * 2048}' for k in range(2) for rt in range(4)]
    L += stamp(1, 39) + ['WAITVM W0', 's_barrier'] + stamp(2, 39)
    L += a_reads(0) + P.tr_reads(0) + w_items(1) + P.tr_reads(1) + [f'TOUCH {areg(1,3)}']
    ev = [(0, a_items(2), None), (1, a_items(3), None), (2, w_items(2), None), (62, w_items(3), None)]
    for c in range(1, 8):
        g0 = 32 * (c - 1)
        sc.put(g0 + 19, f'WAITVM A{c}')
        for i, r in enumerate(a_reads(c)):
            sc.put(g0 + 20 + (i // 2), r)
        if c + 3 < 8:
            ev.append((g0 + 29, a_items(c + 3), areg(2 * c + 1, 3)))
    for st in range(4, 32):
        ev.append((max(barg(st - 3) + 1, 130), w_items(st), None))
    def x_items(ss):
        it = [f's_add_u32 s{sT1}, s{sXA}, {ss * 4096}', f's_add_u32 s{sT2}, s{sXB}, {ss * 4096}']
        for k in range(2):
            for rt in range(4):
                it.append(f'buffer_load_dwordx4 {areg(2 * ss + k, rt)}, v{V_L16}, {wsrd(R_WS)}, s{sT1 if rt < 2 else sT2} offen offset:{k * 2048 + (rt % 2) * 1024}{LD}')
        return it
    def kv_items(i):
        it = [f's_add_u32 m0, s{sM0B}, {((i + 5) % 8) * 16384}']
        if i >= 0: it += [f's_add_u32 s{sT}, s{sSRC}, {i * 16384}']
        else: it += [f's_add_u32 s{sT}, s{sM0W}, {(i + 3) * 16384}']
        it += [f'buffer_load_dwordx4 v{V_L16}, {wsrd(R_KV)}, s{sT} offen offset:{k*1024}{LD} lds ; @KV{i}' for k in range(4)]
        return it
    for i in range(-3, 3):
        ev.append((7 * 256 + 8 + 24 * (i + 3), kv_items(i), None))
    ev.append((barg(31) + 1, kv_items(3), None))
    V_PK = 18
    pk = []
    for i in range(8):
        ev.append((5 * 256 + 10 + 26 * i, [f's_add_u32 m0, s{sM0A}, {i * 1024}', f's_add_u32 s{sT}, s{sPS}, {i * 4096}',
                                           f'buffer_load_dwordx4 v{V_PK + (i & 1)}, {wsrd(R_W3)}, s{sT} offen lds ; @PK'], None))
    ev.sort(key=lambda e: e[0])
    glastA = 0
    for g, it, touch in ev:
        if touch: it = [f'TOUCH {touch}'] + it
        ge = P.dma_group(it, g, vmspace=(0 if g < 60 else 1 if g < 200 else 3))
        if '@A7' in it[-1]: glastA = ge
    XR, X = 192, 200
    g = chain(sc, [f'v_lshrrev_b32 v{t}, 5, v0', f'v_and_b32 v{t+1}, 31, v0', f'v_lshlrev_b32 v{t+1}, 4, v{t+1}', f'v_lshl_add_u32 v{t+2}, v{t}, 10, v{t+1}',
                   f'v_mov_b32 v{V_SIG}, v19', f'v_mov_b32 v{V_POLL}, 0'] + ([f'v_mov_b32 v{V_PROF}, v39'] if PROF else []), glastA)
    gmove = g - 2
    g = sc.place(f'buffer_load_dwordx4 {V(XR, 4)}, v{t+2}, {wsrd(R_X)}, s{sXO} offen', g, vmspace=1) + 1
    g = sc.place(f'buffer_load_dwordx4 {V(XR+4, 4)}, v{t+2}, {wsrd(R_X)}, s{sXO} offen offset:512', g, vmspace=1) + 1
    if TOUCH1: g = sc.place(f'buffer_load_dword v18, v18, {wsrd(R_WV)}, 0 offen', g, vmspace=1) + 1
    g = chain(sc, [f's_lshl_b32 s{sFX}, s2, 7', f's_add_u32 s{sFX}, s{sFX}, {WS_FLG:#x}',
                   f'buffer_store_dword v{V_POLL}, v{V_SIG}, {wsrd(R_WS)}, s{sFX} offen sc1 ; @Z'], g)
    assert g < 256, g
    sm, s2_, tm = t + 3, t + 4, t + 2
    def reduce32(r, tmp):
        o = []
        for n in (8, 4, 2, 1):
            o += [2, f'v_add_f32_dpp v{r}, v{r}, v{r} row_ror:{n} row_mask:0xf bank_mask:0xf']
        o += [f'v_mov_b32 v{tmp}, v{r}', 2, f'v_permlane16_swap_b32 v{r}, v{tmp}', f'v_add_f32 v{r}, v{r}, v{tmp}']
        return o
    ln = []
    for i in range(8):
        ln += [f'v_lshlrev_b32 v{X+2*i}, 16, v{XR+i}', f'v_and_b32 v{X+2*i+1}, 0xffff0000, v{XR+i}']
    ln += [f'v_add_f32 v{sm}, v{X}, v{X+1}', f'v_add_f32 v{s2_}, v{X+2}, v{X+3}']
    for i in range(4, 16, 2):
        ln += [f'v_add_f32 v{sm}, v{sm}, v{X+i}', f'v_add_f32 v{s2_}, v{s2_}, v{X+i+1}']
    ln += [f'v_add_f32 v{sm}, v{sm}, v{s2_}'] + reduce32(sm, tm) + [f'v_mul_f32 v{sm}, 0x3b000000, v{sm}']
    ln += [f'v_sub_f32 v{X+i}, v{X+i}, v{sm}' for i in range(16)]
    ln += [f'v_mul_f32 v{sm}, v{X}, v{X}', f'v_mul_f32 v{s2_}, v{X+1}, v{X+1}']
    for i in range(2, 16, 2):
        ln += [f'v_fmac_f32 v{sm}, v{X+i}, v{X+i}', f'v_fmac_f32 v{s2_}, v{X+i+1}, v{X+i+1}']
    ln += [f'v_add_f32 v{sm}, v{sm}, v{s2_}'] + reduce32(sm, tm)
    ln += [f'v_mov_b32 v{s2_}, 0x3b000000', f'v_fmaak_f32 v{sm}, v{sm}, v{s2_}, 0x3727c5ac', f'v_rsq_f32 v{sm}, v{sm}']
    ln += [f'v_mul_f32 v{X+i}, v{X+i}, v{sm}' for i in range(16)]
    ln += [f'v_cvt_pk_bf16_f32 v{XR+i}, v{X+2*i}, v{X+2*i+1}' for i in range(8)]
    ln += [f's_lshl_b32 s{sU}, s3, 5', f's_add_u32 s{sU}, s{sU}, 65536', f'v_lshlrev_b32 v{tm}, 3, v{t+1}', f'v_lshl_add_u32 v{tm}, v{t}, 4, v{tm}', f'v_add_u32 v{tm}, s{sU}, v{tm}',
           f'ds_write_b128 v{tm}, {V(XR,4)}', f'ds_write_b128 v{tm}, {V(XR+4,4)} offset:4096']
    g = chain(sc, ln, 262)
    lnbar = min(st for st in range(5, 9) if barg(st) - 2 >= g)
    g = chain(sc, [f's_lshl_b32 s{sU}, s3, 11', f's_add_u32 s{sU}, s{sU}, 65536', f'v_add_u32 v{sm}, s{sU}, v{V_L16}',
                   f'v_bfe_u32 v{tm}, v0, 3, 2', f'v_and_b32 v{s2_}, 7, v0', f'v_lshlrev_b32 v{s2_}, 4, v{s2_}',
                   f'v_lshl_add_u32 v{s2_}, v{tm}, 8, v{s2_}', f'v_lshl_add_u32 v{s2_}, v{t}, 11, v{s2_}', f's_add_u32 s{sXO}, s{sXN}, 4096'], g)
    g = chain(sc, [f'ds_read_b128 {V(XR,4)}, v{sm}', f'ds_read_b128 {V(XR+4,4)}, v{sm} offset:1024', 6,
                   f'buffer_store_dwordx4 {V(XR,4)}, v{s2_}, {wsrd(R_WS)}, s{sXN} offen{ST} ; @XN',
                   f'buffer_store_dwordx4 {V(XR+4,4)}, v{s2_}, {wsrd(R_WS)}, s{sXO} offen{ST} ; @XN'], max(g, barg(lnbar) + 1))
    assert g < 470, g
    def signal(st, tag, srdr, setup):
        sc.s[barg(st) - 1].insert(0, f'WAITVM {tag}')
        return chain(sc, setup + [f'v_mov_b32 v{V_POLL}, 1', f'buffer_atomic_add v{V_POLL}, v{V_SIG}, {wsrd(srdr)}, s{sFX} offen'], barg(st) + 1)
    def poll_ool(name, vaddr, srdr, soff, expect):
        nonlocal OOL
        OOL += [f'{name}:', f's_mov_b32 s{sSPIN}, {SPIN}', f'{name}_L:',
                f'buffer_load_dword v{V_POLL}, v{vaddr}, {wsrd(srdr)}, {soff} offen sc1', f's_sub_u32 s{sSPIN}, s{sSPIN}, 1', 's_waitcnt vmcnt(0)',
                f's_cbranch_scc1 {name}_RET', f'v_cmp_gt_u32 vcc, {expect}, v{V_POLL}', f's_cbranch_vccnz {name}_L', f's_branch {name}_RET']
    def poll(name, g_issue, g_check, setup, vaddr, srdr, soff, expect):
        g = chain(sc, setup + [f'buffer_load_dword v{V_POLL}, v{vaddr}, {wsrd(srdr)}, {soff} offen sc1'], g_issue)
        assert g <= g_check
        g = sc.place(f'v_cmp_gt_u32 vcc, {expect}, v{V_POLL}', g_check)
        g = sc.place(f's_cbranch_vccnz {name}', g + 1)
        sc.s[g].append(f'{name}_RET:')
        poll_ool(name, vaddr, srdr, soff, expect)
        return g + 1
    signal(lnbar + 1, 'XN', R_DBG, [f's_and_b32 s{sFX}, s2, 3', f's_lshl_b32 s{sFX}, s{sFX}, 6'])
    chain(sc, [f'v_lshrrev_b32 v{t}, 4, v0', f'v_bfe_u32 v{t+1}, v0, 2, 2', f'v_lshl_add_u32 v{t+1}, v{t}, 3, v{t+1}', f'v_lshlrev_b32 v{t+1}, 6, v{t+1}',
               f'v_and_b32 v{t+2}, 3, v0', f'v_lshl_add_u32 v{t+1}, v{t+2}, 3, v{t+1}', f'v_and_b32 v{t}, 1, v{t}',
               f'v_lshl_add_u32 v{V_AR}, v{t}, 5, v{t+1}', f'v_xor_b32 v{V_AR+1}, 32, v{V_AR}'], 600)
    if TOUCH2: sc.place(f'buffer_load_dword v29, v29, {wsrd(R_TMP)}, 0 offen', 580)
    g = poll('S1', 740, 790, ['v_and_b32 v12, 3, v0', 'v_lshlrev_b32 v12, 6, v12'], 12, R_DBG, '0', 64)
    assert g <= 800
    for ss in range(8):
        g = max(g, 768 + 32 * (ss + 1) - 2)
        for x in x_items(ss): g = sc.place(x, g, vmspace=1) + 1
    gst = 0
    for p in range(4):
        for f in range(8):
            b = rbase(p) + 8 * f
            ops = []
            if p < 2:
                rt, p2 = f // 2, f % 2
                m, imm = (rt // 2) * 4 + rt % 2, (2 * p + p2) * 1024
                ops = [f'v_mul_f32 v{b+i}, s{sQS}, v{b+i}' for i in range(8)]
            else:
                ct, q = f // 2, f % 2
                m, imm = q * 4 + 2 + (p - 2), ct * 1024
            g0 = (p + 1) * 256 + (6 + f * 28 if p < 3 else 40 + f * 20)
            g = chain(sc, ops + cvt_pairs(b), g0)
            g = max(g, sc.place(f's_add_u32 s{sK}, s{sKVO}, {m * 4096}', max(gst + 1, g0)) + 1)
            gst = sc.place(f'buffer_store_dwordx4 {V(b,4)}, v{V_L16}, {wsrd(R_WS)}, s{sK} offen offset:{imm}{ST} ; @KVS', g, vmspace=(1 if p == 2 else 2))
    assert gst < barg(20) - 8, gst
    signal(20, 'KVS', R_WS, [f's_mov_b32 s{sFX}, s{sF2P}'])
    V_PS, V_PA, V_PB = 12, 2, 32
    chain(sc, [f'v_lshrrev_b32 v{t}, 4, v0', f'v_and_b32 v{t+1}, 15, v0', f'v_lshlrev_b32 v{t+2}, 1, v{t}', f'v_xor_b32 v{t+1}, v{t+1}, v{t+2}',
               f'v_lshlrev_b32 v{t+1}, 4, v{t+1}', f'v_lshl_add_u32 v{V_PK}, v{t}, 10, v{t+1}',
               f's_sub_u32 s{sU}, 183, s2', f's_and_b32 s{sU}, s{sU}, 0x40000000', f'v_or_b32 v{V_PK}, s{sU}, v{V_PK}', f'v_xor_b32 v{V_PK+1}, 128, v{V_PK}',
               f'v_or_b32 v{V_PS}, s{sU}, v{V_L16}',
               f's_sub_u32 s{sU}, 27, s{sH}', f's_and_b32 s{sU}, s{sU}, 0x40000000', f'v_or_b32 v28, s{sU}, v{V_L16}',
               f'v_lshrrev_b32 v{t}, 2, v0', f'v_and_b32 v{t+1}, 7, v{t}', f'v_lshlrev_b32 v{t}, 8, v{t}', f'v_lshl_add_u32 v{t}, v{t+1}, 5, v{t}',
               f'v_and_b32 v{t+1}, 3, v0', f'v_lshl_add_u32 v{t}, v{t+1}, 3, v{t}', f'v_add_u32 v29, s{sM0A}, v{t}'], 1100)
    g = 6 * 256 + 30
    g = sc.place('WAITVM PK', g) + 1
    for ct8 in range(8):
        b = V_PB + 4 * (ct8 & 1)
        g = chain(sc, [f'v_xor_b32 v{V_PA}, {ct8 << 5}, v29', f'ds_read_b64_tr_b16 {V(b,2)}, v{V_PA}', f'ds_read_b64_tr_b16 {V(b+2,2)}, v{V_PA} offset:4096',
                       f's_add_u32 s{sK}, s{sPD}, {(ct8 // 4) * 184 * 4096}', 5,
                       f'buffer_store_dwordx4 {V(b,4)}, v{V_PS}, {wsrd(R_WS)}, s{sK} offen offset:{(ct8 % 4) * 1024}{ST} ; @HS'], g)
    assert g < 7 * 256 - 52, g
    g = poll('S2', 7 * 256 - 50, 7 * 256 - 4, [f's_lshl_b32 s{sFX}, s{sH}, 7', f's_add_u32 s{sFX}, s{sFX}, {WS_FLG:#x}', 'v_mov_b32 v12, 0'], 12, R_WS, f's{sFX}', 8)
    assert g <= 7 * 256 + 8
    sc.s[barg(31) - 1].insert(0, 'WAITVM KV-2')
    for i, r in enumerate(k_reads(V_AV)):
        sc.put(2048 - 16 + i, r)
    gp = 5 * 256 + 6
    ne = 0
    for p in (4, 5):
        gp = max(gp, (p + 1) * 256 + 6)
        for rt in range(4):
            bg = rbase(p) + (rt * 2) * 8; bu = bg + 8
            last = 0
            for e in range(8):
                tm_ = V_T + ne % 8; ne += 1
                ops = [f'v_mul_f32 v{tm_}, v{bg+e}, v{bg+e}', f'v_fmaak_f32 v{tm_}, v{tm_}, v{V_C2}, 0xc0135761', f'v_mul_f32 v{tm_}, v{tm_}, v{bg+e}',
                       f'v_exp_f32 v{tm_}, v{tm_}', f'v_add_f32 v{tm_}, 1.0, v{tm_}', f'v_rcp_f32 v{tm_}, v{tm_}',
                       f'v_mul_f32 v{tm_}, v{tm_}, v{bg+e}', f'v_mul_f32 v{bu+e}, v{tm_}, v{bu+e}']
                g = gp
                for o in ops: g = sc.place(o, g) + 1
                assert g - gp < 72
                last = max(last, g)
                gp += 9
            g = last
            for c in cvt_pairs(bu): g = sc.place(c, g)
            sreg = sHA if rt < 2 else sHB
            if p == 5 and rt % 2 == 0:
                sc.place(f's_add_u32 s{sreg}, s{sreg}, 4096', g - 8, g)
            g = sc.place(f'buffer_store_dwordx4 {V(bu,4)}, v28, {wsrd(R_WS)}, s{sreg} offen offset:{(rt % 2) * 1024}{ST} ; @HS', g + 1, vmspace=1)
            assert g < (p + 2) * 256 + 220, g
    g = 7 * 256 + 34
    for f in range(8):
        b = rbase(6) + 8 * f
        for c in cvt_pairs(b): g = sc.place(c, g)
        g += 1
        for i in range(4): g = sc.place(f'v_accvgpr_write_b32 a{A_QL + 4 * f + i}, v{b + i}', g)
        g += 1
        for i in range(8): sc.place(f'v_mov_b32 v{b + i}, 0', g)
    g = 7 * 256 + 130
    g = sc.place(f'v_mov_b32 v29, 0x3f803f80', g) + 1
    for i in range(4): g = sc.place(f'v_accvgpr_write_b32 a{A_ONE + i}, v29', g)
    for i in range(16): g = sc.place(f'v_accvgpr_write_b32 a{A_L + i}, 0', g)
    sc.place(f'v_add_u32 v{V_AV}, {RING + 2 * 16384}, v{V_L16}', 7 * 256 + 130, 2024)
    chain(sc, [f's_mul_i32 s{sU}, s{sH}, {184 * 4096}', f's_add_u32 s{sU}, s{sU}, {WS_A3:#x}', f's_mul_i32 s{sV}, s3, {14 * 4096}', f's_add_u32 s{sAH}, s{sU}, s{sV}',
               f's_mul_i32 s{sWH}, s{sJ}, {184 * 4096}', f's_add_u32 s{sWH}, s{sWH}, {WS_W3:#x}', f's_lshl_b32 s{sAC}, s3, 17', f's_add_u32 s{sAC}, s{sAC}, {56 * 4096}',
               f's_add_u32 s{sWC}, s{sWH}, s{sAC}', f's_add_u32 s{sAC}, s{sAC}, s{sU}', f's_add_u32 s{sWH}, s{sWH}, s{sV}',
               f's_lshl_b32 s{sU}, s{sH}, 2', f's_add_u32 s{sU}, s{sU}, s3', f's_lshl_b32 s{sU}, s{sU}, 14', f's_lshl_b32 s{sV}, s{sJ}, 7', f's_add_u32 s{sO}, s{sU}, s{sV}',
               f's_add_u32 s{sO1}, s{sO}, 8192',
               f's_lshr_b32 s{sU}, s{sH}, 1', f's_sub_u32 s{sV}, 15, s{sU}', f's_min_u32 s{sU}, s{sU}, s{sV}', f's_lshl_b32 s{sU}, s{sU}, 2', f's_add_u32 s{sU}, s{sU}, s3',
               f's_lshl_b32 s{sU}, s{sU}, 7', f's_add_u32 s{sF4C}, s{sU}, {WS_FLG + 64 * 128:#x}',
               f's_mov_b32 s{sNINF}, {NINF:#x}'], 7 * 256 + 10)
    for p in range(8): sc.v[PGAPS[p]] += stamp(3 + p, V_PROF if PGAPS[p] > gmove else 39)
    L += sc.emit()
    ov = sc.overflow()
    L += ['s_barrier', f'v_add_u32 v{V_LB}, {RING}, v{V_L16}', f'v_add_u32 v{V_AK}, {RING + 3 * 16384}, v{V_L16}', f's_mov_b32 s{sTHR}, 0x53800000']
    L += [f'v_mov_b32 v{V_NB + i}, 0' for i in range(16)]
    def mask_ops(X):
        o = [f'v_mov_b32 v{ntile(X,1,0) + i}, s{sNINF}' for i in range(4)]
        for kq in range(2):
            o += [f'v_cndmask_b32 v{ntile(X,kq,kq) + i}, v{ntile(X,kq,kq) + i}, v{ntile(X,1,0)}, s[{sMASK+2*i}:{sMASK+2*i+1}]' for i in range(4)]
        return o
    L += [f's_cmp_lg_u32 s{sQB}, 0', 's_cbranch_scc1 K_NM0'] + mask_ops('B') + ['K_NM0:']
    for f in range(4): L += cvt_pairs(192 + 8 * f)
    L += ['s_nop 0']
    ps = Sched(qk_mfmas('A', 0, True) + qk_mfmas('B', 1))
    g = 0
    for f in range(4, 8):
        for c in cvt_pairs(192 + 8 * f): g = ps.place(c, g)
    g = 0
    for x in kv_items(4): g = ps.place(x, g) + 1
    for i, r in enumerate(k_reads(V_AK)[:4]): ps.place(r, 24 + i)
    zero = [f'v_mov_b32 v{V_OB + i}, 0' for i in range(64)]
    while zero and ps.place(zero[0], 0, force=False) is not None: zero.pop(0)
    L += ps.emit() + k_reads(V_AK)[4:] + zero
    def rowmax(X, buf):
        o = []
        m = [9, 10]; tm = [11, 12]
        for qs in range(2):
            a, b = stile(buf, 0, qs), stile(buf, 1, qs)
            o += [f'v_max3_f32 v{m[qs]}, v{a}, v{a+1}, v{a+2}', f'v_max3_f32 v{tm[qs]}, v{a+3}, v{b}, v{b+1}',
                  f'v_max3_f32 v{m[qs]}, v{m[qs]}, v{b+2}, v{b+3}', f'v_max_f32 v{m[qs]}, v{m[qs]}, v{tm[qs]}']
        for sw in ('v_permlane16_swap_b32', 'v_permlane32_swap_b32'):
            o += [f'v_mov_b32 v{tm[qs]}, v{m[qs]}' for qs in range(2)] + ['s_nop 0']
            o += [f'{sw} v{m[qs]}, v{tm[qs]}' for qs in range(2)]
            o += [f'v_max_f32 v{m[qs]}, v{m[qs]}, v{tm[qs]}' for qs in range(2)]
        for qs in range(2):
            for kvt in range(2):
                o += [f'v_sub_f32 v{stile(buf,kvt,qs)+i}, v{stile(buf,kvt,qs)+i}, v{m[qs]}' for i in range(4)]
                o += [f'v_sub_f32 v{ntile(X,kvt,qs)+i}, 0, v{m[qs]}' for i in range(4)]
        return o
    idx = L.index('s_barrier', len(L) - 200)
    L.insert(idx, 'WAITVM HS')
    L += [f's_lshl_b32 s{sFX}, s{sJ}, 7', f's_add_u32 s{sFX}, s{sFX}, {WS_FLG + 32 * 128:#x}', f'v_mov_b32 v{V_POLL}, 1',
          f'buffer_atomic_add v{V_POLL}, v{V_SIG}, {wsrd(R_WS)}, s{sFX} offen']
    L += rowmax('A', 0)
    ex, cv = sm_ops(0)
    for c in range(8):
        L += ex[2 * c:2 * c + 2]
        if c: L.append(cv[c - 1])
    L += rowmax('B', 1) + [cv[7]]
    L += [f's_mov_b32 s{sSLOT}, {5 * 16384}', f's_mov_b32 s{sM0R}, {2 * 16384}', f's_add_u32 s{sSRC}, s{sSRC}, {5 * 16384}',
          f'v_add_u32 v{V_AV}, {5 * 16384}, v{V_LB}', f'v_add_u32 v{V_AK}, {4 * 16384}, v{V_LB}',
          f's_mov_b32 s{sCNT}, s{sQB}', 'WAITVM KV0', 's_waitcnt lgkmcnt(0)']
    L = autowait(L)
    def step(qk, pv, buf, first, last, rdK, mask=None, loop=None, prevK=True):
        s_ = Sched(qk_mfmas(qk, 1 - buf) + pv_mfmas(pv, 1 - buf))
        ex, cv = sm_ops(buf)
        for i, e in enumerate(ex): s_.put(2 * i, e)
        if first:
            s_.put(0, 's_barrier')
            for i, r in enumerate(v_reads()): s_.put(1 + 2 * i, r)
            s_.put(1, f's_add_u32 m0, s{sM0B}, s{sM0R}')
            s_.put(2, f's_add_u32 s{sM0R}, s{sM0R}, 16384'); s_.put(3, f's_and_b32 s{sM0R}, s{sM0R}, 0x1ffff')
            for k in range(4):
                s_.put(5 + 8 * k, f'buffer_load_dwordx4 v{V_L16}, {wsrd(R_KV)}, s{sSRC} offen offset:{k*1024}{LD} lds')
            s_.put(30, f's_add_u32 s{sSRC}, s{sSRC}, 16384')
            s_.put(17, 's_waitcnt lgkmcnt(4)')
            s_.put(25, f's_waitcnt lgkmcnt({4 if rdK else 0})')
        if prevK: s_.put(7, f's_waitcnt lgkmcnt({3 if first else 0})')
        if rdK:
            for i, r in enumerate(k_reads(rdK)): s_.put(17 + 2 * i, r)
        for c, x in enumerate(cv): s_.put(4 * c + 3, x)
        w = []
        if last:
            s_.put(27, f's_add_u32 s{sSLOT}, s{sSLOT}, 16384'); s_.put(28, f's_and_b32 s{sSLOT}, s{sSLOT}, 0x1ffff')
            s_.put(32, f'v_mov_b32 v{V_AK}, v{V_AV}'); s_.put(32, f'v_add_u32 v{V_AV}, s{sSLOT}, v{V_LB}')
            w.append('vmcnt(16)')
        if rdK: w.append('lgkmcnt(4)')
        if w: s_.put(33, 's_waitcnt ' + ' '.join(w))
        if mask:
            s_.put(19, f's_cmp_eq_u32 s{sCNT}, 1'); s_.put(20, f's_cbranch_scc1 {mask}'); s_.s[20].append(f'{mask}_RET:')
        if loop:
            s_.put(31, f's_sub_u32 s{sCNT}, s{sCNT}, 1'); s_.put(32, f's_cmp_lg_u32 s{sCNT}, 0')
            s_.s[33].append(f's_cbranch_scc1 {loop}')
        return s_.emit()
    def epilogue(X, sC, extra=()):
        o = []
        extra = list(extra)
        r = [9, 10]
        for qs in range(2): o.append(f'v_accvgpr_read_b32 v{r[qs]}, a{lacc(X, qs)}')
        o += [f'v_add_f32 v11, v{r[0]}, v{r[1]}', f'v_cmp_ngt_f32 vcc, s{sTHR}, v11']
        o += [f'v_rcp_f32 v{r[qs]}, v{r[qs]}' for qs in range(2)]
        o += [f's_or_b64 s[{sFLAG}:{sFLAG+1}], s[{sFLAG}:{sFLAG+1}], vcc', 's_nop 0']
        for p in range(4):
            o.append(f's_add_u32 s{sT}, s{sC}, {p * 4096}')
            for qs in range(2):
                b = otile(X, 2 * p, qs)
                o += [f'v_mul_f32 v{b+i}, v{b+i}, v{r[qs]}' for i in range(8)] + cvt_pairs(b)
                o.append(f'buffer_store_dwordx4 {V(b,4)}, v{V_L16}, {wsrd(R_WS)}, s{sT} offen offset:{qs * 1024}{ST} ; @CS')
        return o
    L += stamp(11)
    L += [f's_cmp_eq_u32 s{sCNT}, 0', 's_cbranch_scc1 K_TB', '.p2align 3', 'K_DUAL:']
    L += step('A', 'A', 1, True, False, None, mask='K_MB')
    L += step('B', 'B', 0, False, True, V_AK, loop='K_DUAL', prevK=False)
    L += ['K_TB:']
    L += step('A', 'A', 1, True, False, V_AK)
    L += step('A', 'B', 0, False, True, V_AV)
    L += [f's_lshl_b32 s{sU}, s{sJ}, 2', f's_sub_u32 s{sCNT}, 29, s{sU}']
    L += stamp(12) + epilogue('B', sCB)
    L += ['.p2align 3', 'K_SINGLE:']
    L += step('A', 'A', 1, True, True, V_AV, mask='K_MA')
    L += step('A', 'A', 0, True, True, V_AV, loop='K_SINGLE')
    OOL += ['K_MB:'] + mask_ops('B') + ['s_branch K_MB_RET', 'K_MA:'] + mask_ops('A') + ['s_branch K_MA_RET']
    L += stamp(13)
    L += ['s_barrier'] + v_reads()
    L += ['v_and_b32 v12, 7, v0', 'v_lshlrev_b32 v12, 7, v12', f's_mov_b32 s{sFX}, {WS_FLG + 32 * 128:#x}',
          f'buffer_load_dword v{V_POLL}, v12, {wsrd(R_WS)}, s{sFX} offen sc1']
    ex, cv = sm_ops(1)
    L += ex[0:4] + cv[0:2]
    f1 = Sched(pv_mfmas('A', 0))
    f1.put(1, 's_waitcnt lgkmcnt(4)'); f1.put(9, 's_waitcnt lgkmcnt(0)')
    g = 0
    for c in range(2, 8):
        f1.put(g, ex[2 * c]); f1.put(g + 1, ex[2 * c + 1]); f1.put(g + 2, cv[c]); g += 3
    f1.put(12, f's_add_u32 s{sSLOT}, s{sSLOT}, 16384'); f1.put(13, f's_and_b32 s{sSLOT}, s{sSLOT}, 0x1ffff')
    f1.put(14, f'v_add_u32 v{V_AV}, s{sSLOT}, v{V_LB}')
    f1.put(15, 's_waitcnt vmcnt(13)'); f1.put(16, 's_barrier')
    L += f1.emit() + v_reads(A_K)
    L += ['s_waitcnt vmcnt(0)', f'v_cmp_gt_u32 vcc, 32, v{V_POLL}', 's_cbranch_vccnz S3', 'S3_RET:']
    poll_ool('S3', 12, R_WS, f's{sFX}', 32)
    NSS = 23
    V_AC3, V_XR, V_OA_ = 64, 24, 16
    def buf(ss): return (128 + 64 * ss) % 256
    def af(ss, k, rt): return A(buf(ss) + (k * 4 + rt) * 4, 4)
    def wf(ss, k, ct): return A(buf(ss) + 32 + (k * 4 + ct) * 4, 4)
    def ld_items(ss, which='WA'):
        it = []
        for k in range(2):
            ks = 2 * ss + k if ss < 7 else 2 * (ss - 7) + k
            if 'W' in which:
                it += [f's_add_u32 s{sT2}, s{sWH if ss < 7 else sWC}, {ks * 4096}']
                it += [f'buffer_load_dwordx4 {wf(ss, k, i)}, v{V_L16}, {wsrd(R_WS)}, s{sT2} offen offset:{i*1024}{LD}' for i in range(4)]
            if 'A' in which:
                it += [f's_add_u32 s{sT1}, s{sAH if ss < 7 else sAC}, {ks * 4096}']
                it += [f'buffer_load_dwordx4 {af(ss, k, i)}, v{V_L16}, {wsrd(R_WS)}, s{sT1} offen offset:{i*1024}{LD}' for i in range(4)]
        return it
    T = []
    f2 = Sched(pv_mfmas('A', 1, A_K))
    for dt in range(8): f2.put(1 + 2 * dt, f's_waitcnt lgkmcnt({7 - dt})')
    g = 0
    for x in ld_items(0):
        if kind_of(x) == 's': f2.m[g].append(x)
        else:
            f2.m[g].append(x); g += 1
    T += f2.emit()
    T += [f's_sub_u32 s{sCNT}, 3, s3', 'K_XB:', f's_cmp_eq_u32 s{sCNT}, 0', 's_cbranch_scc1 K_XBD',
          's_barrier', f's_sub_u32 s{sCNT}, s{sCNT}, 1', 's_branch K_XB', 'K_XBD:']
    T += stamp(14) + epilogue('A', sCA) + stamp(15)
    T += ld_items(1) + ld_items(2)[:10]
    mf = []
    for ss in range(NSS):
        for ct in range(4):
            for rt in range(4):
                acc = V(V_AC3 + (rt * 4 + ct) * 4, 4)
                for k in range(2):
                    mf.append(mfma(acc, wf(ss, k, ct), af(ss, k, rt), '0' if (ss == 0 and k == 0) else acc))
    sc = Sched(mf)
    sc.put(30, 'WAITVM CS'); sc.put(31, 's_barrier')
    chain(sc, [f's_lshr_b32 s{sU}, s{sH}, 3', f's_lshl_b32 s{sV}, s{sJ}, 2', f's_add_u32 s{sU}, s{sU}, s{sV}', f's_lshl_b32 s{sU}, s{sU}, 7',
               f's_add_u32 s{sFX}, s{sU}, {WS_FLG + 64 * 128:#x}', f'v_mov_b32 v{V_POLL}, 1', 'v_mov_b32 v12, 0'], 16)
    sc.put(32, f'buffer_atomic_add v{V_POLL}, v{V_SIG}, {wsrd(R_WS)}, s{sFX} offen')
    pend = ld_items(2)[10:]
    DEP = 3
    for ss in range(NSS):
        g0 = 32 * ss
        n = ss + DEP
        if n == 7: it = ld_items(7, 'W')
        elif n == 8: it = ld_items(8, 'W')
        elif n == 9: it = ld_items(7, 'A') + ld_items(8, 'A')
        elif n == 10: it = ld_items(9) + ld_items(10)
        elif n < NSS: it = ld_items(n)
        else: it = []
        it = pend + it; pend = []
        g = g0 + (1 if ss == 1 else 0)
        if n == 8:
            sc.put(g0 + 18, f'buffer_load_dword v{V_POLL}, v12, {wsrd(R_WS)}, s{sF4C} offen sc1')
        if n == 9:
            sc.put(g0, f'v_cmp_gt_u32 vcc, 8, v{V_POLL}'); sc.put(g0 + 1, 's_cbranch_vccnz S4'); sc.s[g0 + 1].append('S4_RET:')
            poll_ool('S4', 12, R_WS, f's{sF4C}', 8)
            g = g0 + 2
        nm_ = sum(1 for x in it if kind_of(x) == 'm')
        k = 0
        for x in it:
            gg = g + (k * (g0 + 30 - g)) // max(nm_, 16)
            sc.m[gg].append(x)
            if kind_of(x) == 'm': k += 1
    g0 = 32 * 20
    t = 17
    chain(sc, [f'v_lshrrev_b32 v{t}, 3, v0', f'v_and_b32 v{t+1}, 7, v0', f'v_lshlrev_b32 v{t+1}, 4, v{t+1}', f'v_lshl_add_u32 v{V_OA_}, v{t}, 10, v{t+1}',
               f'buffer_load_dwordx4 {V(V_XR,4)}, v{V_OA_}, {wsrd(R_X)}, s{sO} offen', f'buffer_load_dwordx4 {V(V_XR+4,4)}, v{V_OA_}, {wsrd(R_X)}, s{sO1} offen',
               f's_mul_i32 s{sU}, s3, 40960', f's_mul_i32 s{sV}, s3, 4608',
               f'v_lshrrev_b32 v{t}, 4, v0', f'v_mul_u32_u24 v{t}, 288, v{t}', f'v_and_b32 v{t+1}, 15, v0', f'v_lshl_add_u32 v{t}, v{t+1}, 4, v{t}',
               f'v_add_u32 v{t}, s{sU}, v{t}',
               f'v_and_b32 v{t+1}, 7, v0', f'v_mul_u32_u24 v{t+1}, 576, v{t+1}', f'v_lshrrev_b32 v{t+2}, 3, v0', f'v_lshl_add_u32 v{t+1}, v{t+2}, 4, v{t+1}',
               f'v_add_u32 v{t+1}, s{sV}, v{t+1}', f'v_add_u32 v{t+2}, 81920, v{t+1}'], g0)
    for i, ss in enumerate((0, 3, 5, 7, 12, 17, 22)): sc.v[32 * ss + 31] += stamp(16 + i)
    T += sc.emit()
    T += ['s_nop 4']
    order = [(rt, ct) for ct in range(4) for rt in range(4)]
    T += [f'ds_write_b128 v{t}, {V(V_AC3 + (rt * 4 + ct) * 4, 4)} offset:{(rt * 4 + ct) * 1152}' for rt, ct in order]
    X = 32
    for i in range(8):
        T += [f'v_lshlrev_b32 v{X+2*i}, 16, v{V_XR+i}', f'v_and_b32 v{X+2*i+1}, 0xffff0000, v{V_XR+i}']
    T += ['s_waitcnt lgkmcnt(0)', 's_barrier']
    for s_ in range(2):
        for src in range(4):
            for gg in range(2):
                T.append(f'ds_read_b128 {V(128 + ((s_ * 4 + src) * 2 + gg) * 4, 4)}, v{t + 1 + src // 2} offset:{(src % 2) * 40960 + gg * 288 + s_ * 128}')
    for s_ in range(2):
        b = 128 + s_ * 32
        T += [f'v_add_f32 v{b+i}, v{b+i}, v{b+8+i}' for i in range(8)]
        T += [f'v_add_f32 v{b+16+i}, v{b+16+i}, v{b+24+i}' for i in range(8)]
        T += [f'v_add_f32 v{b+i}, v{b+i}, v{b+16+i}' for i in range(8)]
        T += [f'v_add_f32 v{b+i}, v{b+i}, v{X+8*s_+i}' for i in range(8)]
        T += cvt_pairs(b)
        T += [f'buffer_store_dwordx4 {V(b,4)}, v{V_OA_}, {wsrd(R_OUT)}, s{sO+s_} offen']
    if PROF:
        T += stamp(23) + ['s_waitcnt vmcnt(0)'] + stamp(24) + [f's_add_u32 s{R_TMP}, s{R_WS}, {WS_PROF:#x}', f's_addc_u32 s{R_TMP+1}, s{R_WS+1}, 0', f's_mov_b32 s{R_TMP+2}, 0x40000',
             f's_lshl_b32 s{sU}, s2, 2', f's_add_u32 s{sU}, s{sU}, s3', f's_lshl_b32 s{sU}, s{sU}, 8', 'v_lshlrev_b32 v0, 2, v0',
             f'buffer_store_dword v{V_PROF}, v0, {wsrd(R_TMP)}, s{sU} offen']
    L += autowait(T)
    L += ['K_END:', 's_endpgm'] + OOL + ['K_LAST:', 's_endpgm']
    return L, ov

def build(lines):
    hdr = open('cdna_kernels/' + NAME + '.s.ref').read().split('; Override launch')[0]
    out = hdr + f'; @launch grid=(256,1,1) block=(256,1,1) lds={LDS_SZ}\n'
    out += '.amdgcn_target "amdgcn-amd-amdhsa--gfx950"\n.text\n' + fmt(lines) + '\n'
    out += '.section .rodata,"a"\n.p2align 6\n' + kdesc(NAME + '_kernel') + '\n'
    return out

if __name__ == '__main__':
    path = sys.argv[1]
    for a in sys.argv[2:]:
        k, v = a.split('=')
        globals()[k] = eval(v)
    cb = 4096
    for it in range(2):
        lines, ov = gen_fused(cb)
        open(path, 'w').write(build(lines))
        sym = G.sizes(path)
        cb = (sym['K_LAST'] - sym[NAME + '_kernel'] - 128) & ~63
    print('overflow', ov, 'lines', len(lines), 'bytes', cb, file=sys.stderr)
```

```python
import sys
from asmlib import *
import gen as G
from gen import (NAME, MB, V_L16, V_TR, V_WD, V_AD, V_AR, V_T, V_WB, V_ACC, V_R, QSCALE, w_dma_voff, tr_addrs, areg, rbase,
                 Passes, cvt_pairs, V_AV, V_AK, V_LB, V_E, V_NB, V_P, V_NA, V_OB, V_OA, A_QL, A_K, A_V, A_ONE, A_L, RING, NINF,
                 qfrag, stile, otile, ntile, lacc, qk_mfmas, pv_mfmas, sm_ops, k_reads, v_reads)

WS_XN, WS_KV, WS_A3, WS_FLG, WS_W3, WS_PROF = 0, 2 * MB, 34 * MB, 57 * MB, 58 * MB, 64 * MB
LDS_SZ = 163840
ST = ' sc1'
LD = ' sc1'
PROF = False
TOUCH1 = 1
TOUCH2 = 1
BIGOFF = 0x7fffff00
SPIN = 1 << 16
PGAPS = [256 * p + 255 for p in range(8)]

R_X, R_CKV, R_WQ, R_WK, R_WV, R_W3, R_WG, R_WU, R_OUT, R_DBG, R_WS, R_KV, R_TMP = 4, 8, 12, 16, 20, 24, 28, 32, 36, 40, 44, 48, 52
sT, sT1, sT2, sU, sV, sK = 56, 57, 58, 59, 60, 61
sM0W, sJ, sH = 62, 63, 64
sA, sW1, sM0A, sKVO, sXO, sXN, sQS, sF2P = 65, 66, 67, 68, 69, 70, 71, 72
sAH, sAC, sWH, sWC, sO, sO1, sF4C = 65, 66, 67, 68, 69, 70, 71
sXA, sXB, sWQ, sWG, sHA, sHB, sPS, sPD = 73, 74, 75, 76, 77, 78, 79, 80
sSLOT, sM0R, sCNT, sNINF, sTHR = 73, 74, 75, 76, 77
sCA, sCB, sSRC, sM0B, sQB, sFLAG, sMASK, sFX, sSPIN = 81, 82, 83, 84, 85, 86, 88, 96, 97
V_SIG, V_POLL, V_PROF = 14, 13, 15

DIAG = None
def stamp(k, vp=V_PROF):
    if DIAG == k: return ['s_memrealtime s[98:99]', 's_waitcnt lgkmcnt(0)']
    if not PROF: return []
    o = [f'v_mov_b32 v{vp}, 0'] if k == 0 else []
    return o + ['s_memrealtime s[98:99]', 's_memtime s[100:101]', 's_waitcnt lgkmcnt(0)', f'v_writelane_b32 v{vp}, s98, {2*k}', f'v_writelane_b32 v{vp}, s100, {2*k+1}']

def chain(sc, ops, g, hi=None):
    prev = None
    for o in ops:
        if isinstance(o, int):
            g += o; continue
        k = kind_of(o)
        if prev is not None and not (k == 'v' and prev == 'v'): g += 1
        g = sc.place(o, g, hi)
        prev = k
    return g + 1

def wsrd(r):
    return S(r, 4)

def gen_fused(code_bytes):
    nm = NAME + '_kernel'
    OOL = []
    L = [f'.globl {nm}', '.p2align 8', f'.type {nm},@function', f'{nm}:', 's_cmp_ge_u32 s2, 256', 's_cbranch_scc1 K_END']
    if DIAG == -1: L += ['s_memrealtime s[98:99]']
    for r, off in ((R_CKV, 8), (R_WK, 24), (R_X, 0), (R_WQ, 16), (R_WV, 32), (R_W3, 40), (R_WG, 56), (R_WU, 64), (R_KV, 72), (R_OUT, 80), (R_DBG, 88), (R_WS, 96)):
        L.append(f's_load_dwordx2 s[{r}:{r+1}], s[0:1], {off}')
    L += [f's_getpc_b64 s[{R_TMP}:{R_TMP+1}]', f's_mov_b32 s{R_TMP+2}, {code_bytes}', f's_mov_b32 s{R_TMP+3}, 0x20000',
          f's_lshr_b32 s{sU}, s2, 3', f's_lshl_b32 s{sV}, s{sU}, 12', f'v_lshl_add_u32 v1, v0, 4, s{sV}',
          f'buffer_load_dword v2, v1, {wsrd(R_TMP)}, 0 offen',
          f'v_lshl_add_u32 v18, s{sU}, 8, v0',
          f'v_cmp_eq_u32 vcc, 0, v0', f'v_mov_b32 v19, {BIGOFF:#x}',
          'v_lshrrev_b32 v1, 6, v0', 'v_and_b32 v0, 63, v0', 'v_readfirstlane_b32 s3, v1', 'v_cndmask_b32 v19, v19, v0, vcc']
    for r, sz in ((R_CKV, 2 * MB), (R_WK, 4 * MB), (R_X, 2 * MB), (R_WQ, 4 * MB), (R_WV, 4 * MB), (R_WG, 512 * 3584), (R_WU, 512 * 3584),
                  (R_OUT, 2 * MB), (R_DBG, 256), (R_WS, 64 * MB)):
        L += [f's_mov_b32 s{r+2}, {sz:#x}', f's_mov_b32 s{r+3}, 0x20000']
    sRB, sH1 = sT1, sT2
    L += [f's_and_b32 s{sU}, s2, 1', f's_lshl_b32 s{sCA}, s{sU}, 20', f's_lshl_b32 s{sU}, s{sU}, 2', f's_bfe_u32 s{sV}, s2, 0x20003', f's_add_u32 s{sRB}, s{sU}, s{sV}',
          f's_bfe_u32 s{sU}, s2, 0x20001', f's_lshl_b32 s{sCB}, s{sU}, 11', f's_lshl_b32 s{sU}, s{sU}, 3', f's_lshr_b32 s{sV}, s2, 5', f's_add_u32 s{sH1}, s{sU}, s{sV}']
    L += [f'v_lshl_add_u32 v20, v18, 7, s{sCA}', 'v_lshrrev_b32 v21, 4, v18', 'v_and_b32 v22, 15, v18', 'v_lshlrev_b32 v21, 13, v21',
          'v_lshl_add_u32 v21, v22, 7, v21', f'v_add_u32 v18, s{sCB}, v21', 's_waitcnt lgkmcnt(0)']
    L += stamp(0, 39)
    if TOUCH1:
        L += [f'buffer_load_dword v20, v20, {wsrd(R_CKV)}, 0 offen', f'buffer_load_dword v21, v18, {wsrd(R_WK)}, 0 offen']
    L += [f's_lshl_b32 s{sU}, s{sRB}, 2', f's_add_u32 s{sU}, s{sU}, s3', f's_lshl_b32 s{sA}, s{sU}, 16',
          f's_lshl_b32 s{sV}, s{sH1}, 20', f's_lshl_b32 s{sU}, s{sU}, 15', f's_add_u32 s{sKVO}, s{sU}, s{sV}', f's_add_u32 s{sKVO}, s{sKVO}, {WS_KV:#x}',
          f's_lshl_b32 s{sU}, s3, 18', f's_lshl_b32 s{sV}, s{sH1}, 8', f's_add_u32 s{sW1}, s{sU}, s{sV}',
          f's_lshl_b32 s{sM0W}, s3, 12', f's_mul_i32 s{sM0A}, s3, 24576', f's_add_u32 s{sM0A}, s{sM0A}, 65536',
          f's_lshl_b32 s{sF2P}, s{sH1}, 7', f's_add_u32 s{sF2P}, s{sF2P}, {WS_FLG:#x}']
    t = V_T + 4
    L += [f'v_lshrrev_b32 v{t}, 3, v0', f'v_lshlrev_b32 v{t}, 10, v{t}',
          f'v_lshrrev_b32 v{t+1}, 4, v0', f'v_and_b32 v{t+2}, 7, v0', f'v_xor_b32 v{t+1}, v{t+1}, v{t+2}', f'v_xor_b32 v{t+2}, 4, v{t+1}',
          f'v_lshl_add_u32 v{t+1}, v{t+1}, 4, v{t}', f'v_lshl_add_u32 v{t+2}, v{t+2}, 4, v{t}']
    for i in range(4):
        L.append(f'v_add_u32 v{V_AD+i}, {i * 8192 - i * 1024}, v{t + 1 + (i & 1)}')
    L += w_dma_voff(V_WD, 8192, t)
    def a_items(c):
        it = []
        for hf in range(2):
            it += [f's_add_u32 m0, s{sM0A}, {(c % 3) * 8192 + hf * 4096}', f's_add_u32 s{sT}, s{sA}, {hf * 32768 + c * 128}']
            it += [f'buffer_load_dwordx4 v{V_AD+i}, {wsrd(R_CKV)}, s{sT} offen offset:{i*1024} lds ; @A{c}' for i in range(4)]
        return it
    V_GD = 30
    def w_items(st):
        p, s4 = st // 4, st % 4
        if p in (4, 5):
            it = [f's_add_u32 m0, s{sM0W}, {s4 * 16384}', f's_add_u32 s{sT}, s{sWG}, {s4 * 128 * 3584 + (p % 2) * 64}']
            it += [f'buffer_load_dwordx4 v{V_GD+i}, {wsrd(R_WG)}, s{sT} offen offset:{i*1024} lds ; @W{st}' for i in range(2)]
            it += [f's_add_u32 m0, s{sM0W}, {s4 * 16384 + 2048}']
            it += [f'buffer_load_dwordx4 v{V_GD+i}, {wsrd(R_WU)}, s{sT} offen offset:{i*1024} lds ; @W{st}' for i in range(2)]
            return it
        r, so = (R_WK, sW1) if p < 2 else (R_WV, sW1) if p < 4 else (R_WQ, sWQ)
        it = [f's_add_u32 m0, s{sM0W}, {s4 * 16384}', f's_add_u32 s{sT}, s{so}, {s4 * 128 * 8192 + (p % 2) * 128}']
        it += [f'buffer_load_dwordx4 v{V_WD+i}, {wsrd(r)}, s{sT} offen offset:{i*1024} lds ; @W{st}' for i in range(4)]
        return it
    L += a_items(0) + w_items(0)
    L += [f'v_lshlrev_b32 v{V_L16}, 4, v0', f's_mov_b32 s{sQS}, {QSCALE:#x}']
    L += tr_addrs(V_TR, t)
    L += [f'v_and_b32 v{t}, 15, v0', f'v_lshrrev_b32 v{t+1}, 1, v{t}', f'v_lshrrev_b32 v{t+2}, 4, v0', f'v_xor_b32 v{t+1}, v{t+1}, v{t+2}',
          f'v_lshlrev_b32 v{t}, 7, v{t}', f'v_add_u32 v{t}, s{sM0A}, v{t}',
          f'v_lshl_add_u32 v{V_AR}, v{t+1}, 4, v{t}', f'v_xor_b32 v{V_AR+1}, 64, v{V_AR}']
    L += [f's_lshl_b32 s{sU}, s2, 2', f's_add_u32 s{sU}, s{sU}, s3', f's_lshl_b32 s{sXO}, s{sU}, 11',
          f's_lshr_b32 s{sU}, s2, 2', f's_lshl_b32 s{sXN}, s{sU}, 15', f's_bfe_u32 s{sU}, s2, 0x10001', f's_lshl_b32 s{sU}, s{sU}, 10',
          f's_add_u32 s{sXN}, s{sXN}, s{sU}', f's_and_b32 s{sU}, s2, 1', f's_lshl_b32 s{sU}, s{sU}, 7', f's_add_u32 s{sXN}, s{sXN}, s{sU}',
          f's_lshl_b32 s{sU}, s3, 13', f's_add_u32 s{sXN}, s{sXN}, s{sU}']
    sQA = sK
    L += [f's_and_b32 s{sU}, s2, 7', f's_lshl_b32 s{sU}, s{sU}, 2', f's_bfe_u32 s{sV}, s2, 0x20003', f's_add_u32 s{sH}, s{sU}, s{sV}',
          f's_lshr_b32 s{sJ}, s2, 5', f's_lshl_b32 s{sU}, s{sJ}, 2', f's_add_u32 s{sQB}, s{sU}, s3',
          f's_sub_u32 s{sV}, 60, s{sU}', f's_add_u32 s{sQA}, s{sV}, s3',
          f's_lshl_b32 s{sXA}, s{sQA}, 15', f's_lshl_b32 s{sXB}, s{sQB}, 15',
          f's_lshl_b32 s{sU}, s3, 18', f's_lshl_b32 s{sV}, s{sH}, 8', f's_add_u32 s{sWQ}, s{sU}, s{sV}',
          f's_min_u32 s{sV}, s{sH}, 27', f's_lshl_b32 s{sV}, s{sV}, 7', f's_mul_i32 s{sU}, s3, {32 * 3584}', f's_add_u32 s{sWG}, s{sU}, s{sV}']
    for q, hh, cc in ((sQA, sHA, sCA), (sQB, sHB, sCB)):
        L += [f's_lshr_b32 s{sU}, s{q}, 1', f's_mul_i32 s{sU}, s{sU}, {184 * 4096}', f's_and_b32 s{sV}, s{q}, 1', f's_lshl_b32 s{sV}, s{sV}, 11',
              f's_add_u32 s{sU}, s{sU}, s{sV}', f's_add_u32 s{sU}, s{sU}, {WS_A3:#x}', f's_min_u32 s{sV}, s{sH}, 27', f's_lshl_b32 s{sV}, s{sV}, 13', f's_add_u32 s{hh}, s{sU}, s{sV}',
              f's_lshl_b32 s{sV}, s{sH}, 14', f's_add_u32 s{sU}, s{sU}, s{sV}', f's_add_u32 s{cc}, s{sU}, {56 * 4096}']
    L += ['s_cmp_lt_u32 s2, 56', f's_cselect_b32 s{R_W3}, s{R_KV}, s{R_W3}', f's_cselect_b32 s{R_W3+1}, s{R_KV+1}, s{R_W3+1}',
          f's_cselect_b32 s{sU}, 0, 56', f's_mov_b32 s{sV}, {4*MB:#x}', f's_cselect_b32 s{R_W3+2}, {1792*1024:#x}, s{sV}', f's_mov_b32 s{R_W3+3}, 0x20000',
          f's_min_u32 s{sV}, s2, 183', f's_sub_u32 s{sU}, s{sV}, s{sU}', f's_lshl_b32 s{sU}, s{sU}, 15', f's_lshl_b32 s{sPS}, s3, 8', f's_add_u32 s{sPS}, s{sPS}, s{sU}',
          f's_lshl_b32 s{sV}, s{sV}, 12', f's_mul_i32 s{sU}, s3, {2 * 184 * 4096}', f's_add_u32 s{sPD}, s{sU}, s{sV}', f's_add_u32 s{sPD}, s{sPD}, {WS_W3:#x}']
    L += [f's_lshl_b32 s{sU}, s{sH}, 20', f's_add_u32 s{sU}, s{sU}, {WS_KV:#x}', f's_add_u32 s{R_KV}, s{R_WS}, s{sU}', f's_addc_u32 s{R_KV+1}, s{R_WS+1}, 0',
          f's_lshl_b32 s{sU}, s{sJ}, 16', f's_sub_u32 s{R_KV+2}, 0x100000, s{sU}', f's_mov_b32 s{R_KV+3}, 0x20000',
          's_cmp_lt_u32 s3, 2', f's_cselect_b32 s{sU}, 0xc000, 0', f's_add_u32 s{sSRC}, s{sU}, s{sM0W}', f's_add_u32 s{sM0B}, s{sM0W}, {RING}',
          f's_mov_b64 s[{sFLAG}:{sFLAG+1}], 0']
    L += ['s_cmp_eq_u32 s3, 0', f's_cselect_b32 s{R_TMP}, s{R_WG}, s{R_WU}', f's_cselect_b32 s{R_TMP+1}, s{R_WG+1}, s{R_WU+1}',
          f's_min_u32 s{sU}, s{sH}, 27', f's_lshl_b32 s{sU}, s{sU}, 7', f's_lshl_b32 s{sV}, s{sH}, 1', f's_add_u32 s{sV}, s{sV}, s3', f's_sub_u32 s{sV}, s{sV}, 2', f's_lshl_b32 s{sV}, s{sV}, 7',
          's_cmp_lt_u32 s3, 2', f's_cselect_b32 s{R_TMP}, s{R_TMP}, s{R_WQ}', f's_cselect_b32 s{R_TMP+1}, s{R_TMP+1}, s{R_WQ+1}',
          f's_cselect_b32 s{R_TMP+2}, s{R_WG+2}, s{R_WQ+2}', f's_cselect_b32 s{sU}, s{sU}, s{sV}', f's_mov_b32 s{sV}, 8192', f's_cselect_b32 s{sV}, 3584, s{sV}',
          f'v_lshl_add_u32 v29, s{sJ}, 6, v0', f'v_mul_lo_u32 v29, v29, s{sV}', f'v_add_u32 v29, s{sU}, v29']
    L += [f'v_lshrrev_b32 v{t}, 4, v0', f'v_lshlrev_b32 v{t}, 2, v{t}', f'v_and_b32 v{t+1}, 15, v0']
    for i in range(4):
        L += [f'v_add_u32 v{t+2}, {i}, v{t}', f'v_cmp_gt_u32 s[{sMASK+2*i}:{sMASK+2*i+1}], v{t+2}, v{t+1}']
    V_C2 = 3
    L += [f'v_mov_b32 v{V_C2}, 0xbdd2d3e8']
    L += [f'v_lshrrev_b32 v{t}, 2, v0', f'v_mul_u32_u24 v{t}, 3584, v{t}', f'v_lshrrev_b32 v{t+1}, 4, v0', f'v_and_b32 v{t+1}, 2, v{t+1}',
          f'v_and_b32 v{t+2}, 3, v0', f'v_xor_b32 v{t+1}, v{t+1}, v{t+2}', f'v_lshl_add_u32 v{V_GD}, v{t+1}, 4, v{t}',
          f'v_add_u32 v{V_GD+1}, {16 * 3584 - 1024}, v{V_GD}']
    L += a_items(1)
    P = Passes(['T', 'T', 'N', 'N', 'G', 'G', 'T', 'T'])
    sc = P.sc
    def barg(st):
        return 8 * (8 * (st - 1) + 5) + 7
    def a_reads(c):
        return [f'ds_read_b128 {areg(2*c + k, rt)}, v{V_AR + k} offset:{(c % 3) * 8192 + rt * 2048}' for k in range(2) for rt in range(4)]
    L += stamp(1, 39) + ['WAITVM W0', 's_barrier'] + stamp(2, 39)
    L += a_reads(0) + P.tr_reads(0) + w_items(1) + P.tr_reads(1) + [f'TOUCH {areg(1,3)}']
    ev = [(0, a_items(2), None), (1, a_items(3), None), (2, w_items(2), None), (62, w_items(3), None)]
    for c in range(1, 8):
        g0 = 32 * (c - 1)
        sc.put(g0 + 19, f'WAITVM A{c}')
        for i, r in enumerate(a_reads(c)):
            sc.put(g0 + 20 + (i // 2), r)
        if c + 3 < 8:
            ev.append((g0 + 29, a_items(c + 3), areg(2 * c + 1, 3)))
    for st in range(4, 32):
        ev.append((max(barg(st - 3) + 1, 130), w_items(st), None))
    def x_items(ss):
        it = [f's_add_u32 s{sT1}, s{sXA}, {ss * 4096}', f's_add_u32 s{sT2}, s{sXB}, {ss * 4096}']
        for k in range(2):
            for rt in range(4):
                it.append(f'buffer_load_dwordx4 {areg(2 * ss + k, rt)}, v{V_L16}, {wsrd(R_WS)}, s{sT1 if rt < 2 else sT2} offen offset:{k * 2048 + (rt % 2) * 1024}{LD}')
        return it
    def kv_items(i):
        it = [f's_add_u32 m0, s{sM0B}, {((i + 5) % 8) * 16384}']
        if i >= 0: it += [f's_add_u32 s{sT}, s{sSRC}, {i * 16384}']
        else: it += [f's_add_u32 s{sT}, s{sM0W}, {(i + 3) * 16384}']
        it += [f'buffer_load_dwordx4 v{V_L16}, {wsrd(R_KV)}, s{sT} offen offset:{k*1024}{LD} lds ; @KV{i}' for k in range(4)]
        return it
    for i in range(-3, 3):
        ev.append((7 * 256 + 8 + 24 * (i + 3), kv_items(i), None))
    ev.append((barg(31) + 1, kv_items(3), None))
    V_PK = 18
    pk = []
    for i in range(8):
        ev.append((5 * 256 + 10 + 26 * i, [f's_add_u32 m0, s{sM0A}, {i * 1024}', f's_add_u32 s{sT}, s{sPS}, {i * 4096}',
                                           f'buffer_load_dwordx4 v{V_PK + (i & 1)}, {wsrd(R_W3)}, s{sT} offen lds ; @PK'], None))
    ev.sort(key=lambda e: e[0])
    glastA = 0
    for g, it, touch in ev:
        if touch: it = [f'TOUCH {touch}'] + it
        ge = P.dma_group(it, g, vmspace=(0 if g < 60 else 1 if g < 200 else 3))
        if '@A7' in it[-1]: glastA = ge
    XR, X = 192, 200
    g = chain(sc, [f'v_lshrrev_b32 v{t}, 5, v0', f'v_and_b32 v{t+1}, 31, v0', f'v_lshlrev_b32 v{t+1}, 4, v{t+1}', f'v_lshl_add_u32 v{t+2}, v{t}, 10, v{t+1}',
                   f'v_mov_b32 v{V_SIG}, v19', f'v_mov_b32 v{V_POLL}, 0'] + ([f'v_mov_b32 v{V_PROF}, v39'] if PROF else []), glastA)
    gmove = g - 2
    g = sc.place(f'buffer_load_dwordx4 {V(XR, 4)}, v{t+2}, {wsrd(R_X)}, s{sXO} offen', g, vmspace=1) + 1
    g = sc.place(f'buffer_load_dwordx4 {V(XR+4, 4)}, v{t+2}, {wsrd(R_X)}, s{sXO} offen offset:512', g, vmspace=1) + 1
    if TOUCH1: g = sc.place(f'buffer_load_dword v18, v18, {wsrd(R_WV)}, 0 offen', g, vmspace=1) + 1
    g = chain(sc, [f's_lshl_b32 s{sFX}, s2, 7', f's_add_u32 s{sFX}, s{sFX}, {WS_FLG:#x}',
                   f'buffer_store_dword v{V_POLL}, v{V_SIG}, {wsrd(R_WS)}, s{sFX} offen sc1 ; @Z'], g)
    assert g < 256, g
    sm, s2_, tm = t + 3, t + 4, t + 2
    def reduce32(r, tmp):
        o = []
        for n in (8, 4, 2, 1):
            o += [2, f'v_add_f32_dpp v{r}, v{r}, v{r} row_ror:{n} row_mask:0xf bank_mask:0xf']
        o += [f'v_mov_b32 v{tmp}, v{r}', 2, f'v_permlane16_swap_b32 v{r}, v{tmp}', f'v_add_f32 v{r}, v{r}, v{tmp}']
        return o
    ln = []
    for i in range(8):
        ln += [f'v_lshlrev_b32 v{X+2*i}, 16, v{XR+i}', f'v_and_b32 v{X+2*i+1}, 0xffff0000, v{XR+i}']
    ln += [f'v_add_f32 v{sm}, v{X}, v{X+1}', f'v_add_f32 v{s2_}, v{X+2}, v{X+3}']
    for i in range(4, 16, 2):
        ln += [f'v_add_f32 v{sm}, v{sm}, v{X+i}', f'v_add_f32 v{s2_}, v{s2_}, v{X+i+1}']
    ln += [f'v_add_f32 v{sm}, v{sm}, v{s2_}'] + reduce32(sm, tm) + [f'v_mul_f32 v{sm}, 0x3b000000, v{sm}']
    ln += [f'v_sub_f32 v{X+i}, v{X+i}, v{sm}' for i in range(16)]
    ln += [f'v_mul_f32 v{sm}, v{X}, v{X}', f'v_mul_f32 v{s2_}, v{X+1}, v{X+1}']
    for i in range(2, 16, 2):
        ln += [f'v_fmac_f32 v{sm}, v{X+i}, v{X+i}', f'v_fmac_f32 v{s2_}, v{X+i+1}, v{X+i+1}']
    ln += [f'v_add_f32 v{sm}, v{sm}, v{s2_}'] + reduce32(sm, tm)
    ln += [f'v_mov_b32 v{s2_}, 0x3b000000', f'v_fmaak_f32 v{sm}, v{sm}, v{s2_}, 0x3727c5ac', f'v_rsq_f32 v{sm}, v{sm}']
    ln += [f'v_mul_f32 v{X+i}, v{X+i}, v{sm}' for i in range(16)]
    ln += [f'v_cvt_pk_bf16_f32 v{XR+i}, v{X+2*i}, v{X+2*i+1}' for i in range(8)]
    ln += [f's_lshl_b32 s{sU}, s3, 5', f's_add_u32 s{sU}, s{sU}, 65536', f'v_lshlrev_b32 v{tm}, 3, v{t+1}', f'v_lshl_add_u32 v{tm}, v{t}, 4, v{tm}', f'v_add_u32 v{tm}, s{sU}, v{tm}',
           f'ds_write_b128 v{tm}, {V(XR,4)}', f'ds_write_b128 v{tm}, {V(XR+4,4)} offset:4096']
    g = chain(sc, ln, 262)
    lnbar = min(st for st in range(5, 9) if barg(st) - 2 >= g)
    g = chain(sc, [f's_lshl_b32 s{sU}, s3, 11', f's_add_u32 s{sU}, s{sU}, 65536', f'v_add_u32 v{sm}, s{sU}, v{V_L16}',
                   f'v_bfe_u32 v{tm}, v0, 3, 2', f'v_and_b32 v{s2_}, 7, v0', f'v_lshlrev_b32 v{s2_}, 4, v{s2_}',
                   f'v_lshl_add_u32 v{s2_}, v{tm}, 8, v{s2_}', f'v_lshl_add_u32 v{s2_}, v{t}, 11, v{s2_}', f's_add_u32 s{sXO}, s{sXN}, 4096'], g)
    g = chain(sc, [f'ds_read_b128 {V(XR,4)}, v{sm}', f'ds_read_b128 {V(XR+4,4)}, v{sm} offset:1024', 6,
                   f'buffer_store_dwordx4 {V(XR,4)}, v{s2_}, {wsrd(R_WS)}, s{sXN} offen{ST} ; @XN',
                   f'buffer_store_dwordx4 {V(XR+4,4)}, v{s2_}, {wsrd(R_WS)}, s{sXO} offen{ST} ; @XN'], max(g, barg(lnbar) + 1))
    assert g < 470, g
    def signal(st, tag, srdr, setup):
        sc.s[barg(st) - 1].insert(0, f'WAITVM {tag}')
        return chain(sc, setup + [f'v_mov_b32 v{V_POLL}, 1', f'buffer_atomic_add v{V_POLL}, v{V_SIG}, {wsrd(srdr)}, s{sFX} offen'], barg(st) + 1)
    def poll_ool(name, vaddr, srdr, soff, expect):
        nonlocal OOL
        OOL += [f'{name}:', f's_mov_b32 s{sSPIN}, {SPIN}', f'{name}_L:',
                f'buffer_load_dword v{V_POLL}, v{vaddr}, {wsrd(srdr)}, {soff} offen sc1', f's_sub_u32 s{sSPIN}, s{sSPIN}, 1', 's_waitcnt vmcnt(0)',
                f's_cbranch_scc1 {name}_RET', f'v_cmp_gt_u32 vcc, {expect}, v{V_POLL}', f's_cbranch_vccnz {name}_L', f's_branch {name}_RET']
    def poll(name, g_issue, g_check, setup, vaddr, srdr, soff, expect):
        g = chain(sc, setup + [f'buffer_load_dword v{V_POLL}, v{vaddr}, {wsrd(srdr)}, {soff} offen sc1'], g_issue)
        assert g <= g_check
        g = sc.place(f'v_cmp_gt_u32 vcc, {expect}, v{V_POLL}', g_check)
        g = sc.place(f's_cbranch_vccnz {name}', g + 1)
        sc.s[g].append(f'{name}_RET:')
        poll_ool(name, vaddr, srdr, soff, expect)
        return g + 1
    signal(lnbar + 1, 'XN', R_DBG, [f's_and_b32 s{sFX}, s2, 3', f's_lshl_b32 s{sFX}, s{sFX}, 6'])
    chain(sc, [f'v_lshrrev_b32 v{t}, 4, v0', f'v_bfe_u32 v{t+1}, v0, 2, 2', f'v_lshl_add_u32 v{t+1}, v{t}, 3, v{t+1}', f'v_lshlrev_b32 v{t+1}, 6, v{t+1}',
               f'v_and_b32 v{t+2}, 3, v0', f'v_lshl_add_u32 v{t+1}, v{t+2}, 3, v{t+1}', f'v_and_b32 v{t}, 1, v{t}',
               f'v_lshl_add_u32 v{V_AR}, v{t}, 5, v{t+1}', f'v_xor_b32 v{V_AR+1}, 32, v{V_AR}'], 600)
    if TOUCH2: sc.place(f'buffer_load_dword v29, v29, {wsrd(R_TMP)}, 0 offen', 580)
    g = poll('S1', 740, 790, ['v_and_b32 v12, 3, v0', 'v_lshlrev_b32 v12, 6, v12'], 12, R_DBG, '0', 64)
    assert g <= 800
    for ss in range(8):
        g = max(g, 768 + 32 * (ss + 1) - 2)
        for x in x_items(ss): g = sc.place(x, g, vmspace=1) + 1
    gst = 0
    for p in range(4):
        for f in range(8):
            b = rbase(p) + 8 * f
            ops = []
            if p < 2:
                rt, p2 = f // 2, f % 2
                m, imm = (rt // 2) * 4 + rt % 2, (2 * p + p2) * 1024
                ops = [f'v_mul_f32 v{b+i}, s{sQS}, v{b+i}' for i in range(8)]
            else:
                ct, q = f // 2, f % 2
                m, imm = q * 4 + 2 + (p - 2), ct * 1024
            g0 = (p + 1) * 256 + (6 + f * 28 if p < 3 else 40 + f * 20)
            g = chain(sc, ops + cvt_pairs(b), g0)
            g = max(g, sc.place(f's_add_u32 s{sK}, s{sKVO}, {m * 4096}', max(gst + 1, g0)) + 1)
            gst = sc.place(f'buffer_store_dwordx4 {V(b,4)}, v{V_L16}, {wsrd(R_WS)}, s{sK} offen offset:{imm}{ST} ; @KVS', g, vmspace=(1 if p == 2 else 2))
    assert gst < barg(20) - 8, gst
    signal(20, 'KVS', R_WS, [f's_mov_b32 s{sFX}, s{sF2P}'])
    V_PS, V_PA, V_PB = 12, 2, 32
    chain(sc, [f'v_lshrrev_b32 v{t}, 4, v0', f'v_and_b32 v{t+1}, 15, v0', f'v_lshlrev_b32 v{t+2}, 1, v{t}', f'v_xor_b32 v{t+1}, v{t+1}, v{t+2}',
               f'v_lshlrev_b32 v{t+1}, 4, v{t+1}', f'v_lshl_add_u32 v{V_PK}, v{t}, 10, v{t+1}',
               f's_sub_u32 s{sU}, 183, s2', f's_and_b32 s{sU}, s{sU}, 0x40000000', f'v_or_b32 v{V_PK}, s{sU}, v{V_PK}', f'v_xor_b32 v{V_PK+1}, 128, v{V_PK}',
               f'v_or_b32 v{V_PS}, s{sU}, v{V_L16}',
               f's_sub_u32 s{sU}, 27, s{sH}', f's_and_b32 s{sU}, s{sU}, 0x40000000', f'v_or_b32 v28, s{sU}, v{V_L16}',
               f'v_lshrrev_b32 v{t}, 2, v0', f'v_and_b32 v{t+1}, 7, v{t}', f'v_lshlrev_b32 v{t}, 8, v{t}', f'v_lshl_add_u32 v{t}, v{t+1}, 5, v{t}',
               f'v_and_b32 v{t+1}, 3, v0', f'v_lshl_add_u32 v{t}, v{t+1}, 3, v{t}', f'v_add_u32 v29, s{sM0A}, v{t}'], 1100)
    g = 6 * 256 + 30
    g = sc.place('WAITVM PK', g) + 1
    for ct8 in range(8):
        b = V_PB + 4 * (ct8 & 1)
        g = chain(sc, [f'v_xor_b32 v{V_PA}, {ct8 << 5}, v29', f'ds_read_b64_tr_b16 {V(b,2)}, v{V_PA}', f'ds_read_b64_tr_b16 {V(b+2,2)}, v{V_PA} offset:4096',
                       f's_add_u32 s{sK}, s{sPD}, {(ct8 // 4) * 184 * 4096}', 5,
                       f'buffer_store_dwordx4 {V(b,4)}, v{V_PS}, {wsrd(R_WS)}, s{sK} offen offset:{(ct8 % 4) * 1024}{ST} ; @HS'], g)
    assert g < 7 * 256 - 52, g
    g = poll('S2', 7 * 256 - 50, 7 * 256 - 4, [f's_lshl_b32 s{sFX}, s{sH}, 7', f's_add_u32 s{sFX}, s{sFX}, {WS_FLG:#x}', 'v_mov_b32 v12, 0'], 12, R_WS, f's{sFX}', 8)
    assert g <= 7 * 256 + 8
    sc.s[barg(31) - 1].insert(0, 'WAITVM KV-2')
    for i, r in enumerate(k_reads(V_AV)):
        sc.put(2048 - 16 + i, r)
    gp = 5 * 256 + 6
    ne = 0
    for p in (4, 5):
        gp = max(gp, (p + 1) * 256 + 6)
        for rt in range(4):
            bg = rbase(p) + (rt * 2) * 8; bu = bg + 8
            last = 0
            for e in range(8):
                tm_ = V_T + ne % 8; ne += 1
                ops = [f'v_mul_f32 v{tm_}, v{bg+e}, v{bg+e}', f'v_fmaak_f32 v{tm_}, v{tm_}, v{V_C2}, 0xc0135761', f'v_mul_f32 v{tm_}, v{tm_}, v{bg+e}',
                       f'v_exp_f32 v{tm_}, v{tm_}', f'v_add_f32 v{tm_}, 1.0, v{tm_}', f'v_rcp_f32 v{tm_}, v{tm_}',
                       f'v_mul_f32 v{tm_}, v{tm_}, v{bg+e}', f'v_mul_f32 v{bu+e}, v{tm_}, v{bu+e}']
                g = gp
                for o in ops: g = sc.place(o, g) + 1
                assert g - gp < 72
                last = max(last, g)
                gp += 9
            g = last
            for c in cvt_pairs(bu): g = sc.place(c, g)
            sreg = sHA if rt < 2 else sHB
            if p == 5 and rt % 2 == 0:
                sc.place(f's_add_u32 s{sreg}, s{sreg}, 4096', g - 8, g)
            g = sc.place(f'buffer_store_dwordx4 {V(bu,4)}, v28, {wsrd(R_WS)}, s{sreg} offen offset:{(rt % 2) * 1024}{ST} ; @HS', g + 1, vmspace=1)
            assert g < (p + 2) * 256 + 220, g
    g = 7 * 256 + 34
    for f in range(8):
        b = rbase(6) + 8 * f
        for c in cvt_pairs(b): g = sc.place(c, g)
        g += 1
        for i in range(4): g = sc.place(f'v_accvgpr_write_b32 a{A_QL + 4 * f + i}, v{b + i}', g)
        g += 1
        for i in range(8): sc.place(f'v_mov_b32 v{b + i}, 0', g)
    g = 7 * 256 + 130
    g = sc.place(f'v_mov_b32 v29, 0x3f803f80', g) + 1
    for i in range(4): g = sc.place(f'v_accvgpr_write_b32 a{A_ONE + i}, v29', g)
    for i in range(16): g = sc.place(f'v_accvgpr_write_b32 a{A_L + i}, 0', g)
    sc.place(f'v_add_u32 v{V_AV}, {RING + 2 * 16384}, v{V_L16}', 7 * 256 + 130, 2024)
    chain(sc, [f's_mul_i32 s{sU}, s{sH}, {184 * 4096}', f's_add_u32 s{sU}, s{sU}, {WS_A3:#x}', f's_mul_i32 s{sV}, s3, {14 * 4096}', f's_add_u32 s{sAH}, s{sU}, s{sV}',
               f's_mul_i32 s{sWH}, s{sJ}, {184 * 4096}', f's_add_u32 s{sWH}, s{sWH}, {WS_W3:#x}', f's_lshl_b32 s{sAC}, s3, 17', f's_add_u32 s{sAC}, s{sAC}, {56 * 4096}',
               f's_add_u32 s{sWC}, s{sWH}, s{sAC}', f's_add_u32 s{sAC}, s{sAC}, s{sU}', f's_add_u32 s{sWH}, s{sWH}, s{sV}',
               f's_lshl_b32 s{sU}, s{sH}, 2', f's_add_u32 s{sU}, s{sU}, s3', f's_lshl_b32 s{sU}, s{sU}, 14', f's_lshl_b32 s{sV}, s{sJ}, 7', f's_add_u32 s{sO}, s{sU}, s{sV}',
               f's_add_u32 s{sO1}, s{sO}, 8192',
               f's_lshr_b32 s{sU}, s{sH}, 1', f's_sub_u32 s{sV}, 15, s{sU}', f's_min_u32 s{sU}, s{sU}, s{sV}', f's_lshl_b32 s{sU}, s{sU}, 2', f's_add_u32 s{sU}, s{sU}, s3',
               f's_lshl_b32 s{sU}, s{sU}, 7', f's_add_u32 s{sF4C}, s{sU}, {WS_FLG + 64 * 128:#x}',
               f's_mov_b32 s{sNINF}, {NINF:#x}'], 7 * 256 + 10)
    for p in range(8): sc.v[PGAPS[p]] += stamp(3 + p, V_PROF if PGAPS[p] > gmove else 39)
    L += sc.emit()
    ov = sc.overflow()
    L += ['s_barrier', f'v_add_u32 v{V_LB}, {RING}, v{V_L16}', f'v_add_u32 v{V_AK}, {RING + 3 * 16384}, v{V_L16}', f's_mov_b32 s{sTHR}, 0x53800000']
    L += [f'v_mov_b32 v{V_NB + i}, 0' for i in range(16)]
    def mask_ops(X):
        o = [f'v_mov_b32 v{ntile(X,1,0) + i}, s{sNINF}' for i in range(4)]
        for kq in range(2):
            o += [f'v_cndmask_b32 v{ntile(X,kq,kq) + i}, v{ntile(X,kq,kq) + i}, v{ntile(X,1,0)}, s[{sMASK+2*i}:{sMASK+2*i+1}]' for i in range(4)]
        return o
    L += [f's_cmp_lg_u32 s{sQB}, 0', 's_cbranch_scc1 K_NM0'] + mask_ops('B') + ['K_NM0:']
    for f in range(4): L += cvt_pairs(192 + 8 * f)
    L += ['s_nop 0']
    ps = Sched(qk_mfmas('A', 0, True) + qk_mfmas('B', 1))
    g = 0
    for f in range(4, 8):
        for c in cvt_pairs(192 + 8 * f): g = ps.place(c, g)
    g = 0
    for x in kv_items(4): g = ps.place(x, g) + 1
    for i, r in enumerate(k_reads(V_AK)[:4]): ps.place(r, 24 + i)
    zero = [f'v_mov_b32 v{V_OB + i}, 0' for i in range(64)]
    while zero and ps.place(zero[0], 0, force=False) is not None: zero.pop(0)
    L += ps.emit() + k_reads(V_AK)[4:] + zero
    def rowmax(X, buf):
        o = []
        m = [9, 10]; tm = [11, 12]
        for qs in range(2):
            a, b = stile(buf, 0, qs), stile(buf, 1, qs)
            o += [f'v_max3_f32 v{m[qs]}, v{a}, v{a+1}, v{a+2}', f'v_max3_f32 v{tm[qs]}, v{a+3}, v{b}, v{b+1}',
                  f'v_max3_f32 v{m[qs]}, v{m[qs]}, v{b+2}, v{b+3}', f'v_max_f32 v{m[qs]}, v{m[qs]}, v{tm[qs]}']
        for sw in ('v_permlane16_swap_b32', 'v_permlane32_swap_b32'):
            o += [f'v_mov_b32 v{tm[qs]}, v{m[qs]}' for qs in range(2)] + ['s_nop 0']
            o += [f'{sw} v{m[qs]}, v{tm[qs]}' for qs in range(2)]
            o += [f'v_max_f32 v{m[qs]}, v{m[qs]}, v{tm[qs]}' for qs in range(2)]
        for qs in range(2):
            for kvt in range(2):
                o += [f'v_sub_f32 v{stile(buf,kvt,qs)+i}, v{stile(buf,kvt,qs)+i}, v{m[qs]}' for i in range(4)]
                o += [f'v_sub_f32 v{ntile(X,kvt,qs)+i}, 0, v{m[qs]}' for i in range(4)]
        return o
    idx = L.index('s_barrier', len(L) - 200)
    L.insert(idx, 'WAITVM HS')
    L += [f's_lshl_b32 s{sFX}, s{sJ}, 7', f's_add_u32 s{sFX}, s{sFX}, {WS_FLG + 32 * 128:#x}', f'v_mov_b32 v{V_POLL}, 1',
          f'buffer_atomic_add v{V_POLL}, v{V_SIG}, {wsrd(R_WS)}, s{sFX} offen']
    L += rowmax('A', 0)
    ex, cv = sm_ops(0)
    for c in range(8):
        L += ex[2 * c:2 * c + 2]
        if c: L.append(cv[c - 1])
    L += rowmax('B', 1) + [cv[7]]
    L += [f's_mov_b32 s{sSLOT}, {5 * 16384}', f's_mov_b32 s{sM0R}, {2 * 16384}', f's_add_u32 s{sSRC}, s{sSRC}, {5 * 16384}',
          f'v_add_u32 v{V_AV}, {5 * 16384}, v{V_LB}', f'v_add_u32 v{V_AK}, {4 * 16384}, v{V_LB}',
          f's_mov_b32 s{sCNT}, s{sQB}', 'WAITVM KV0', 's_waitcnt lgkmcnt(0)']
    L = autowait(L)
    def step(qk, pv, buf, first, last, rdK, mask=None, loop=None, prevK=True):
        s_ = Sched(qk_mfmas(qk, 1 - buf) + pv_mfmas(pv, 1 - buf))
        ex, cv = sm_ops(buf)
        for i, e in enumerate(ex): s_.put(2 * i, e)
        if first:
            s_.put(0, 's_barrier')
            for i, r in enumerate(v_reads()): s_.put(1 + 2 * i, r)
            s_.put(1, f's_add_u32 m0, s{sM0B}, s{sM0R}')
            s_.put(2, f's_add_u32 s{sM0R}, s{sM0R}, 16384'); s_.put(3, f's_and_b32 s{sM0R}, s{sM0R}, 0x1ffff')
            for k in range(4):
                s_.put(5 + 8 * k, f'buffer_load_dwordx4 v{V_L16}, {wsrd(R_KV)}, s{sSRC} offen offset:{k*1024}{LD} lds')
            s_.put(30, f's_add_u32 s{sSRC}, s{sSRC}, 16384')
            s_.put(17, 's_waitcnt lgkmcnt(4)')
            s_.put(25, f's_waitcnt lgkmcnt({4 if rdK else 0})')
        if prevK: s_.put(7, f's_waitcnt lgkmcnt({3 if first else 0})')
        if rdK:
            for i, r in enumerate(k_reads(rdK)): s_.put(17 + 2 * i, r)
        for c, x in enumerate(cv): s_.put(4 * c + 3, x)
        w = []
        if last:
            s_.put(27, f's_add_u32 s{sSLOT}, s{sSLOT}, 16384'); s_.put(28, f's_and_b32 s{sSLOT}, s{sSLOT}, 0x1ffff')
            s_.put(32, f'v_mov_b32 v{V_AK}, v{V_AV}'); s_.put(32, f'v_add_u32 v{V_AV}, s{sSLOT}, v{V_LB}')
            w.append('vmcnt(16)')
        if rdK: w.append('lgkmcnt(4)')
        if w: s_.put(33, 's_waitcnt ' + ' '.join(w))
        if mask:
            s_.put(19, f's_cmp_eq_u32 s{sCNT}, 1'); s_.put(20, f's_cbranch_scc1 {mask}'); s_.s[20].append(f'{mask}_RET:')
        if loop:
            s_.put(31, f's_sub_u32 s{sCNT}, s{sCNT}, 1'); s_.put(32, f's_cmp_lg_u32 s{sCNT}, 0')
            s_.s[33].append(f's_cbranch_scc1 {loop}')
        return s_.emit()
    def epilogue(X, sC, extra=()):
        o = []
        extra = list(extra)
        r = [9, 10]
        for qs in range(2): o.append(f'v_accvgpr_read_b32 v{r[qs]}, a{lacc(X, qs)}')
        o += [f'v_add_f32 v11, v{r[0]}, v{r[1]}', f'v_cmp_ngt_f32 vcc, s{sTHR}, v11']
        o += [f'v_rcp_f32 v{r[qs]}, v{r[qs]}' for qs in range(2)]
        o += [f's_or_b64 s[{sFLAG}:{sFLAG+1}], s[{sFLAG}:{sFLAG+1}], vcc', 's_nop 0']
        for p in range(4):
            o.append(f's_add_u32 s{sT}, s{sC}, {p * 4096}')
            for qs in range(2):
                b = otile(X, 2 * p, qs)
                o += [f'v_mul_f32 v{b+i}, v{b+i}, v{r[qs]}' for i in range(8)] + cvt_pairs(b)
                o.append(f'buffer_store_dwordx4 {V(b,4)}, v{V_L16}, {wsrd(R_WS)}, s{sT} offen offset:{qs * 1024}{ST} ; @CS')
        return o
    L += stamp(11)
    L += [f's_cmp_eq_u32 s{sCNT}, 0', 's_cbranch_scc1 K_TB', '.p2align 3', 'K_DUAL:']
    L += step('A', 'A', 1, True, False, None, mask='K_MB')
    L += step('B', 'B', 0, False, True, V_AK, loop='K_DUAL', prevK=False)
    L += ['K_TB:']
    L += step('A', 'A', 1, True, False, V_AK)
    L += step('A', 'B', 0, False, True, V_AV)
    L += [f's_lshl_b32 s{sU}, s{sJ}, 2', f's_sub_u32 s{sCNT}, 29, s{sU}']
    L += stamp(12) + epilogue('B', sCB)
    L += ['.p2align 3', 'K_SINGLE:']
    L += step('A', 'A', 1, True, True, V_AV, mask='K_MA')
    L += step('A', 'A', 0, True, True, V_AV, loop='K_SINGLE')
    OOL += ['K_MB:'] + mask_ops('B') + ['s_branch K_MB_RET', 'K_MA:'] + mask_ops('A') + ['s_branch K_MA_RET']
    L += stamp(13)
    L += ['s_barrier'] + v_reads()
    L += ['v_and_b32 v12, 7, v0', 'v_lshlrev_b32 v12, 7, v12', f's_mov_b32 s{sFX}, {WS_FLG + 32 * 128:#x}',
          f'buffer_load_dword v{V_POLL}, v12, {wsrd(R_WS)}, s{sFX} offen sc1']
    ex, cv = sm_ops(1)
    L += ex[0:4] + cv[0:2]
    f1 = Sched(pv_mfmas('A', 0))
    f1.put(1, 's_waitcnt lgkmcnt(4)'); f1.put(9, 's_waitcnt lgkmcnt(0)')
    g = 0
    for c in range(2, 8):
        f1.put(g, ex[2 * c]); f1.put(g + 1, ex[2 * c + 1]); f1.put(g + 2, cv[c]); g += 3
    f1.put(12, f's_add_u32 s{sSLOT}, s{sSLOT}, 16384'); f1.put(13, f's_and_b32 s{sSLOT}, s{sSLOT}, 0x1ffff')
    f1.put(14, f'v_add_u32 v{V_AV}, s{sSLOT}, v{V_LB}')
    f1.put(15, 's_waitcnt vmcnt(13)'); f1.put(16, 's_barrier')
    L += f1.emit() + v_reads(A_K)
    L += ['s_waitcnt vmcnt(0)', f'v_cmp_gt_u32 vcc, 32, v{V_POLL}', 's_cbranch_vccnz S3', 'S3_RET:']
    poll_ool('S3', 12, R_WS, f's{sFX}', 32)
    NSS = 23
    V_AC3, V_XR, V_OA_ = 64, 24, 16
    def buf(ss): return (128 + 64 * ss) % 256
    def af(ss, k, rt): return A(buf(ss) + (k * 4 + rt) * 4, 4)
    def wf(ss, k, ct): return A(buf(ss) + 32 + (k * 4 + ct) * 4, 4)
    def ld_items(ss, which='WA'):
        it = []
        for k in range(2):
            ks = 2 * ss + k if ss < 7 else 2 * (ss - 7) + k
            if 'W' in which:
                it += [f's_add_u32 s{sT2}, s{sWH if ss < 7 else sWC}, {ks * 4096}']
                it += [f'buffer_load_dwordx4 {wf(ss, k, i)}, v{V_L16}, {wsrd(R_WS)}, s{sT2} offen offset:{i*1024}{LD}' for i in range(4)]
            if 'A' in which:
                it += [f's_add_u32 s{sT1}, s{sAH if ss < 7 else sAC}, {ks * 4096}']
                it += [f'buffer_load_dwordx4 {af(ss, k, i)}, v{V_L16}, {wsrd(R_WS)}, s{sT1} offen offset:{i*1024}{LD}' for i in range(4)]
        return it
    T = []
    f2 = Sched(pv_mfmas('A', 1, A_K))
    for dt in range(8): f2.put(1 + 2 * dt, f's_waitcnt lgkmcnt({7 - dt})')
    g = 0
    for x in ld_items(0):
        if kind_of(x) == 's': f2.m[g].append(x)
        else:
            f2.m[g].append(x); g += 1
    T += f2.emit()
    T += [f's_sub_u32 s{sCNT}, 3, s3', 'K_XB:', f's_cmp_eq_u32 s{sCNT}, 0', 's_cbranch_scc1 K_XBD',
          's_barrier', f's_sub_u32 s{sCNT}, s{sCNT}, 1', 's_branch K_XB', 'K_XBD:']
    T += stamp(14) + epilogue('A', sCA) + stamp(15)
    T += ld_items(1) + ld_items(2)[:10]
    mf = []
    for ss in range(NSS):
        for ct in range(4):
            for rt in range(4):
                acc = V(V_AC3 + (rt * 4 + ct) * 4, 4)
                for k in range(2):
                    mf.append(mfma(acc, wf(ss, k, ct), af(ss, k, rt), '0' if (ss == 0 and k == 0) else acc))
    sc = Sched(mf)
    sc.put(30, 'WAITVM CS'); sc.put(31, 's_barrier')
    chain(sc, [f's_lshr_b32 s{sU}, s{sH}, 3', f's_lshl_b32 s{sV}, s{sJ}, 2', f's_add_u32 s{sU}, s{sU}, s{sV}', f's_lshl_b32 s{sU}, s{sU}, 7',
               f's_add_u32 s{sFX}, s{sU}, {WS_FLG + 64 * 128:#x}', f'v_mov_b32 v{V_POLL}, 1', 'v_mov_b32 v12, 0'], 16)
    sc.put(32, f'buffer_atomic_add v{V_POLL}, v{V_SIG}, {wsrd(R_WS)}, s{sFX} offen')
    pend = ld_items(2)[10:]
    DEP = 3
    for ss in range(NSS):
        g0 = 32 * ss
        n = ss + DEP
        if n == 7: it = ld_items(7, 'W')
        elif n == 8: it = ld_items(8, 'W')
        elif n == 9: it = ld_items(7, 'A') + ld_items(8, 'A')
        elif n == 10: it = ld_items(9) + ld_items(10)
        elif n < NSS: it = ld_items(n)
        else: it = []
        it = pend + it; pend = []
        g = g0 + (1 if ss == 1 else 0)
        if n == 8:
            sc.put(g0 + 18, f'buffer_load_dword v{V_POLL}, v12, {wsrd(R_WS)}, s{sF4C} offen sc1')
        if n == 9:
            sc.put(g0, f'v_cmp_gt_u32 vcc, 8, v{V_POLL}'); sc.put(g0 + 1, 's_cbranch_vccnz S4'); sc.s[g0 + 1].append('S4_RET:')
            poll_ool('S4', 12, R_WS, f's{sF4C}', 8)
            g = g0 + 2
        nm_ = sum(1 for x in it if kind_of(x) == 'm')
        k = 0
        for x in it:
            gg = g + (k * (g0 + 30 - g)) // max(nm_, 16)
            sc.m[gg].append(x)
            if kind_of(x) == 'm': k += 1
    g0 = 32 * 20
    t = 17
    chain(sc, [f'v_lshrrev_b32 v{t}, 3, v0', f'v_and_b32 v{t+1}, 7, v0', f'v_lshlrev_b32 v{t+1}, 4, v{t+1}', f'v_lshl_add_u32 v{V_OA_}, v{t}, 10, v{t+1}',
               f'buffer_load_dwordx4 {V(V_XR,4)}, v{V_OA_}, {wsrd(R_X)}, s{sO} offen', f'buffer_load_dwordx4 {V(V_XR+4,4)}, v{V_OA_}, {wsrd(R_X)}, s{sO1} offen',
               f's_mul_i32 s{sU}, s3, 40960', f's_mul_i32 s{sV}, s3, 4608',
               f'v_lshrrev_b32 v{t}, 4, v0', f'v_mul_u32_u24 v{t}, 288, v{t}', f'v_and_b32 v{t+1}, 15, v0', f'v_lshl_add_u32 v{t}, v{t+1}, 4, v{t}',
               f'v_add_u32 v{t}, s{sU}, v{t}',
               f'v_and_b32 v{t+1}, 7, v0', f'v_mul_u32_u24 v{t+1}, 576, v{t+1}', f'v_lshrrev_b32 v{t+2}, 3, v0', f'v_lshl_add_u32 v{t+1}, v{t+2}, 4, v{t+1}',
               f'v_add_u32 v{t+1}, s{sV}, v{t+1}', f'v_add_u32 v{t+2}, 81920, v{t+1}'], g0)
    for i, ss in enumerate((0, 3, 5, 7, 12, 17, 22)): sc.v[32 * ss + 31] += stamp(16 + i)
    T += sc.emit()
    T += ['s_nop 4']
    order = [(rt, ct) for ct in range(4) for rt in range(4)]
    T += [f'ds_write_b128 v{t}, {V(V_AC3 + (rt * 4 + ct) * 4, 4)} offset:{(rt * 4 + ct) * 1152}' for rt, ct in order]
    X = 32
    for i in range(8):
        T += [f'v_lshlrev_b32 v{X+2*i}, 16, v{V_XR+i}', f'v_and_b32 v{X+2*i+1}, 0xffff0000, v{V_XR+i}']
    T += ['s_waitcnt lgkmcnt(0)', 's_barrier']
    for s_ in range(2):
        for src in range(4):
            for gg in range(2):
                T.append(f'ds_read_b128 {V(128 + ((s_ * 4 + src) * 2 + gg) * 4, 4)}, v{t + 1 + src // 2} offset:{(src % 2) * 40960 + gg * 288 + s_ * 128}')
    for s_ in range(2):
        b = 128 + s_ * 32
        T += [f'v_add_f32 v{b+i}, v{b+i}, v{b+8+i}' for i in range(8)]
        T += [f'v_add_f32 v{b+16+i}, v{b+16+i}, v{b+24+i}' for i in range(8)]
        T += [f'v_add_f32 v{b+i}, v{b+i}, v{b+16+i}' for i in range(8)]
        T += [f'v_add_f32 v{b+i}, v{b+i}, v{X+8*s_+i}' for i in range(8)]
        T += cvt_pairs(b)
        T += [f'buffer_store_dwordx4 {V(b,4)}, v{V_OA_}, {wsrd(R_OUT)}, s{sO+s_} offen']
    if PROF:
        T += stamp(23) + ['s_waitcnt vmcnt(0)'] + stamp(24) + [f's_add_u32 s{R_TMP}, s{R_WS}, {WS_PROF:#x}', f's_addc_u32 s{R_TMP+1}, s{R_WS+1}, 0', f's_mov_b32 s{R_TMP+2}, 0x40000',
             f's_lshl_b32 s{sU}, s2, 2', f's_add_u32 s{sU}, s{sU}, s3', f's_lshl_b32 s{sU}, s{sU}, 8', 'v_lshlrev_b32 v0, 2, v0',
             f'buffer_store_dword v{V_PROF}, v0, {wsrd(R_TMP)}, s{sU} offen']
    if DIAG is not None:
        T += stamp(23) + ['K_DG:', 's_memrealtime s[100:101]', 's_waitcnt lgkmcnt(0)', 's_sub_u32 s100, s100, s98', 's_cmp_lt_u32 s100, 12000', 's_cbranch_scc1 K_DG']
    L += autowait(T)
    L += ['K_END:', 's_endpgm'] + OOL + ['K_LAST:', 's_endpgm']
    return L, ov

def build(lines):
    hdr = open('cdna_kernels/' + NAME + '.s.ref').read().split('; Override launch')[0]
    out = hdr + f'; @launch grid=(256,1,1) block=(256,1,1) lds={LDS_SZ}\n'
    out += '.amdgcn_target "amdgcn-amd-amdhsa--gfx950"\n.text\n' + fmt(lines) + '\n'
    out += '.section .rodata,"a"\n.p2align 6\n' + kdesc(NAME + '_kernel') + '\n'
    return out

if __name__ == '__main__':
    path = sys.argv[1]
    for a in sys.argv[2:]:
        k, v = a.split('=')
        globals()[k] = eval(v)
    cb = 4096
    for it in range(2):
        lines, ov = gen_fused(cb)
        open(path, 'w').write(build(lines))
        sym = G.sizes(path)
        cb = (sym['K_LAST'] - sym[NAME + '_kernel'] - 128) & ~63
    print('overflow', ov, 'lines', len(lines), 'bytes', cb, file=sys.stderr)
```

```python
import re, math
import numpy as np

U32 = np.uint32
LANES = np.arange(64, dtype=np.int64)

class EmuError(Exception):
    pass

def bf16_round(f):
    u = np.ascontiguousarray(f, dtype=np.float32).view(np.uint32)
    r = ((u.astype(np.uint64) + 0x7fff + ((u >> 16) & 1)) >> 16).astype(np.uint32) & 0xffff
    nan = np.isnan(f)
    if nan.any():
        r = np.where(nan, 0x7fc0, r)
    return r.astype(np.uint32)

def f2u(x):
    return int(np.float32(x).view(np.uint32))

class Mem:
    def __init__(self):
        self.bufs = []
        self.next = 0x100000000
        self.frozen = []
        self.log = []
        self.written = {}
        self.region = None
        self.sigof = None
    def add(self, arr, name):
        a = np.ascontiguousarray(arr).view(np.uint8).reshape(-1)
        base = self.next
        self.bufs.append((base, a, name))
        self.next += (len(a) + 0xfffff + 0x200000) & ~0xfffff
        return base
    def find(self, addr):
        for base, a, name in self.bufs:
            if base <= addr < base + len(a):
                return base, a, name
        raise EmuError('bad base address %x' % addr)

OPRE = re.compile(r'^(-?)(abs\()?([sva])(?:(\d+)|\[(\d+):(\d+)\])\)?$')

class Op:
    __slots__ = ('k', 'i', 'n', 'neg', 'abs', 'val')
    def __init__(self, t):
        self.neg = self.abs = False
        self.n = 1
        t = t.strip()
        if t.startswith('|') or t.startswith('-|'):
            raise EmuError('use abs()')
        m = OPRE.match(t)
        if m:
            self.neg = bool(m.group(1)); self.abs = bool(m.group(2))
            self.k = m.group(3)
            if m.group(4) is not None:
                self.i = int(m.group(4))
            else:
                self.i = int(m.group(5)); self.n = int(m.group(6)) - self.i + 1
            if self.k == 'a':
                self.k = 'v'; self.i += 256
        elif t in ('vcc', 'exec'):
            self.k = 's'; self.i = 106 if t == 'vcc' else 126; self.n = 2
        elif t in ('vcc_lo', 'vcc_hi', 'exec_lo', 'exec_hi'):
            self.k = 's'; self.i = (106 if t[0] == 'v' else 126) + (1 if t.endswith('hi') else 0)
        elif t == 'm0':
            self.k = 's'; self.i = 124
        elif t == 'off':
            self.k = 'off'
        else:
            self.k = 'c'
            try:
                self.val = int(t, 0) & 0xffffffffffffffff
            except ValueError:
                try:
                    self.val = f2u(float(t))
                except ValueError:
                    self.k = 'l'; self.val = t
    def regs(self):
        return range(self.i, self.i + self.n)

class Ins:
    __slots__ = ('mn', 'ops', 'mods', 'text', 'line', 'fn', 'cls', 'vr', 'vw', 'sr', 'sw', 'size')

TRANS = ('v_exp_f32', 'v_log_f32', 'v_rcp_f32', 'v_rsq_f32', 'v_sqrt_f32')

def parse(text):
    ins = []; labels = {}
    for ln, raw in enumerate(text.split('\n'), 1):
        s = raw.split(';')[0].strip()
        if not s or s.startswith('.'):
            if s.startswith('.section'):
                break
            continue
        if s.endswith(':'):
            labels[s[:-1]] = len(ins); continue
        p = s.split(None, 1)
        I = Ins(); I.mn = p[0]; I.text = s; I.line = ln
        for suf in ('_e32', '_e64', '_dpp'):
            if I.mn.endswith(suf): I.mn = I.mn[:-len(suf)]
        I.ops = []; I.mods = {}
        if len(p) > 1:
            if I.mn == 's_waitcnt':
                for k, v in re.findall(r'(\w+)\((\d+)\)', p[1]): I.mods[k] = int(v)
            elif I.mn in ('buffer_inv', 'buffer_wbl2', 's_getreg_b32'):
                if I.mn == 's_getreg_b32':
                    I.ops = [Op(p[1].split(',')[0])]
            else:
                parts = p[1].split(',')
                last = parts[-1].split()
                parts[-1] = last[0]
                for m in last[1:]:
                    if ':' in m:
                        k, v = m.split(':', 1); I.mods[k] = int(v, 0)
                    else:
                        I.mods[m] = True
                I.ops = [Op(x) for x in parts]
        ins.append(I)
    return ins, labels

class WG:
    def __init__(self, prog, mem, kernarg, wgid, entry, nwaves=4, lds=163840, check=True):
        self.ins, self.labels = prog
        self.mem = mem; self.lds = np.full(lds, 0xcd, np.uint8); self.ldsz = lds
        ng = lds // 8
        self.w_wave = np.full(ng, -1, np.int32)
        self.w_ep = np.full(ng, -1, np.int64)
        self.r_ep = np.full((nwaves, ng), -1, np.int64)
        self.r_cnt = np.zeros((nwaves, ng), np.int32)
        self.epoch = 0
        self.check = check
        self.waves = [Wave(self, w, kernarg, wgid, self.labels[entry]) for w in range(nwaves)]
        self.rets = {v: k for k, v in self.labels.items() if k.startswith('S') and k.endswith('_RET')}
        self.stores = []; self.signalled = set()
    def run(self, maxsteps=10**8):
        while True:
            alive = [w for w in self.waves if not w.done]
            if not alive: break
            for w in alive:
                w.run(maxsteps)
            self.epoch += 1
        n = [w.nbar for w in self.waves]
        if len(set(n)) != 1:
            raise EmuError('barrier count mismatch %s' % n)

BIG = 1 << 60

class Wave:
    def __init__(self, wg, wid, kernarg, wgid, pc):
        self.wg = wg; self.wid = wid; self.pc = pc
        self.s = [0xdeadbeef] * 128
        self.s[0] = kernarg & 0xffffffff; self.s[1] = kernarg >> 32; self.s[2] = wgid
        self.s[126] = self.s[127] = 0xffffffff
        self.scc = 0
        self.v = np.full((512, 64), 0x7fc0dead, np.uint32)
        self.v[0] = LANES + 64 * wid
        self.vinit = np.zeros(512, bool); self.vinit[0] = True
        self.done = False; self.nbar = 0
        self.vmq = []; self.lgq = []
        self.vpend = np.zeros(512, np.int32); self.spend = set()
        self.t = 0
        NEG = -1000
        self.t_valu_w = np.full(512, NEG, np.int64); self.t_trans_w = np.full(512, NEG, np.int64)
        self.t_mfma_w = np.full(512, NEG, np.int64); self.mfma_d = np.full(512, -1, np.int64)
        self.t_mfma_c = np.full(512, NEG, np.int64); self.t_store_r = np.full(512, NEG, np.int64)
        self.t_s_valu = [NEG] * 128; self.t_m0 = NEG
        self.count = {}; self.nins = 0; self.passed = set()
    def err(self, I, msg):
        raise EmuError('wave %d line %d [%s]: %s' % (self.wid, I.line, I.text, msg))
    def exec_mask(self):
        e = self.s[126] | (self.s[127] << 32)
        if e == 0xffffffffffffffff: return None
        return ((e >> LANES.astype(object)) & 1).astype(bool)
    def sget(self, I, o):
        if o.k == 'c': return o.val & 0xffffffff
        if o.i in self.spend: self.err(I, 'pending sgpr s%d' % o.i)
        return self.s[o.i]
    def sget64(self, I, o):
        if o.k == 'c':
            return o.val
        if o.i in self.spend or o.i + 1 in self.spend: self.err(I, 'pending sgpr')
        return self.s[o.i] | (self.s[o.i + 1] << 32)
    def sset(self, I, o, v):
        if o.i in self.spend: self.err(I, 'write pending sgpr')
        self.s[o.i] = v & 0xffffffff
        if o.i == 124: self.t_m0 = self.t
    def sset64(self, I, o, v):
        self.s[o.i] = v & 0xffffffff; self.s[o.i + 1] = (v >> 32) & 0xffffffff
    def chk_vread(self, I, o, kind):
        sl = slice(o.i, o.i + o.n)
        if self.vpend[sl].any(): self.err(I, 'read of pending vgpr %d' % o.i)
        if not self.vinit[sl].all(): self.err(I, 'read of uninitialised vgpr %d' % o.i)
        t = self.t
        d = t - self.t_mfma_w[sl].max() - 1
        if kind == 'mfma_c':
            if d < 6 and not (self.mfma_d[sl] == o.i).all(): self.err(I, 'mfma D->C overlap hazard %d' % d)
        elif d < 8: self.err(I, 'mfma D->read hazard (%d states)' % d)
        d = t - self.t_valu_w[sl].max() - 1
        if kind in ('mfma_ab', 'mfma_c', 'perm') and d < 2: self.err(I, 'valu->%s hazard (%d)' % (kind, d))
        if kind == 'rl' and d < 1: self.err(I, 'valu->readlane hazard')
        if kind in ('valu', 'perm', 'rl', 'mem') and t - self.t_trans_w[sl].max() - 1 < 1: self.err(I, 'trans->use hazard')
    def chk_vwrite(self, I, o, kind):
        sl = slice(o.i, o.i + o.n)
        if self.vpend[sl].any(): self.err(I, 'write of pending vgpr %d' % o.i)
        t = self.t
        if kind != 'mfma':
            d = t - self.t_mfma_w[sl].max() - 1
            if d < 8: self.err(I, 'mfma D->write hazard (%d)' % d)
            if t - self.t_mfma_c[sl].max() - 1 < 3: self.err(I, 'mfma C WAR hazard')
        if t - self.t_store_r[sl].max() - 1 < 2: self.err(I, 'store data WAR hazard')
        self.vinit[sl] = True
        if kind in ('valu', 'trans'): self.t_valu_w[sl] = t
        if kind == 'trans': self.t_trans_w[sl] = t
    def vsrc(self, I, o, kind='valu'):
        if o.k == 'v':
            if o.i >= 256 and kind in ('valu', 'trans') and not I.mn.startswith('v_accvgpr'): self.err(I, 'agpr in valu')
            self.chk_vread(I, o, kind)
            return self.v[o.i]
        if o.k == 's' and self.t - self.t_s_valu[o.i] - 1 < 2: self.err(I, 'valu sgpr write -> valu read hazard')
        return np.full(64, self.sget(I, o), np.uint32)
    def fsrc(self, I, o, kind='valu'):
        x = self.vsrc(I, o, kind).view(np.float32)
        if o.abs: x = np.abs(x)
        if o.neg: x = -x
        return x
    def vdst(self, I, o, val, kind='valu'):
        self.chk_vwrite(I, o, kind)
        val = np.asarray(val)
        if val.dtype == np.float32: val = val.view(np.uint32)
        elif val.dtype != np.uint32: val = (val & 0xffffffff).astype(np.uint32)
        m = self.exec_mask()
        if m is None: self.v[o.i] = val
        else: self.v[o.i] = np.where(m, val, self.v[o.i])
    def set_mask(self, I, o, c):
        m = self.exec_mask()
        if m is not None: c = c & m
        val = 0
        for b in np.nonzero(c)[0]: val |= 1 << int(b)
        self.sset64(I, o, val)
        self.t_s_valu[o.i] = self.t_s_valu[o.i + 1] = self.t
    def get_mask(self, I, o):
        if self.t - max(self.t_s_valu[o.i], self.t_s_valu[o.i + 1]) - 1 < 2: self.err(I, 'valu mask write -> read hazard')
        e = self.sget64(I, o)
        return np.array([(e >> i) & 1 for i in range(64)], bool)
    def lds_gran(self, I, addr, nb, m):
        if m is not None: addr = addr[m]
        if len(addr) and (addr.max() + nb > self.wg.ldsz): self.err(I, 'LDS OOB %d' % addr.max())
        g = addr // 8
        if nb > 8: g = np.concatenate([g + k for k in range(nb // 8)])
        return np.unique(g)
    def lds_read_chk(self, I, g):
        wg = self.wg
        if (wg.w_wave[g] < 0).any(): self.err(I, 'LDS read of never written data at %d' % (g[wg.w_wave[g] < 0][0] * 8))
        bad = (wg.w_ep[g] == BIG) | ((wg.w_wave[g] != self.wid) & (wg.w_ep[g] >= wg.epoch))
        if bad.any(): self.err(I, 'LDS RAW hazard at %d (writer wave %d, ep %d, now %d)' % (g[bad][0] * 8, wg.w_wave[g][bad][0], wg.w_ep[g][bad][0], wg.epoch))
        wg.r_cnt[self.wid, g] += 1
        def done():
            wg.r_cnt[self.wid, g] -= 1; wg.r_ep[self.wid, g] = wg.epoch
        return done
    def lds_write_chk(self, I, g, dma):
        wg = self.wg
        for y in range(len(wg.waves)):
            if y == self.wid and not dma: continue
            if wg.r_cnt[y, g].any(): self.err(I, 'LDS WAR hazard: read in flight by wave %d at %d' % (y, g[wg.r_cnt[y, g] > 0][0] * 8))
            if y != self.wid and (wg.r_ep[y, g] >= wg.epoch).any(): self.err(I, 'LDS WAR hazard vs wave %d at %d' % (y, g[wg.r_ep[y, g] >= wg.epoch][0] * 8))
        bad = (wg.w_ep[g] == BIG) | ((wg.w_wave[g] != self.wid) & (wg.w_wave[g] >= 0) & (wg.w_ep[g] >= wg.epoch))
        if bad.any(): self.err(I, 'LDS WAW hazard at %d' % (g[bad][0] * 8))
        wg.w_wave[g] = self.wid
        if dma:
            wg.w_ep[g] = BIG
        else:
            wg.w_ep[g] = BIG - 1
        def done():
            wg.w_ep[g] = wg.epoch
        return done
    def bank_conf(self, I, addr, kind):
        if kind == 'b128':
            groups = [[0,1,2,3,12,13,14,15,20,21,22,23,24,25,26,27],[4,5,6,7,8,9,10,11,16,17,18,19,28,29,30,31]]
            groups += [[x + 32 for x in g] for g in groups]; nd = 4
        else:
            groups = [list(range(32)), list(range(32, 64))]; nd = 2
        ex = 0
        for g in groups:
            a = np.unique(addr[g] // 4)
            b = np.concatenate([(a + k) % 64 for k in range(nd)])
            ex += np.bincount(b).max() - 1
        if ex:
            k = 'bankconf:' + str(I.line)
            self.count[k] = self.count.get(k, 0) + ex
    def baddr(self, I, vo, srd, so):
        for r in list(srd.regs()) + ([so.i] if so.k == 's' else []):
            if self.t - self.t_s_valu[r] - 1 < 5: self.err(I, 'valu sgpr -> vmem hazard')
            if r in self.spend: self.err(I, 'pending srd')
        base = self.s[srd.i] | ((self.s[srd.i + 1] & 0xffff) << 32)
        if self.s[srd.i + 3] != 0x20000: self.err(I, 'bad srd word3')
        off = np.full(64, I.mods.get('offset', 0) + self.sget(I, so), np.int64)
        if vo.k == 'v':
            self.chk_vread(I, vo, 'mem')
            off = off + self.v[vo.i].astype(np.int64)
        return base, off, self.s[srd.i + 2]
    def gather(self, I, base, off, nrec, nb):
        if base == 0x7777000000: return np.zeros((64, nb // 4), np.uint32)
        b0, a, name = self.wg.mem.find(base)
        if base - b0 + nrec > len(a): self.err(I, 'SRD range exceeds buffer %s' % name)
        ok = off + nb <= nrec
        if self.wg.mem.region and ok.any():
            r = self.wg.mem.region(name, base - b0 + int(off[ok].min()))
            if r == 'S5': self.wg.mem.log.append(('xload', name, base - b0 + int(off[ok].min()), 0, 0, self.wid, I.line))
            if r == 'S6': r = 'S3'
            if r and r not in self.passed: self.err(I, 'load before sync %s' % r)
            if r and 'sc1' not in I.mods: self.err(I, 'hand-off load without sc1')
        idx = (base - b0 + np.where(ok, off, 0))[:, None] + np.arange(nb)[None, :]
        d = a[idx]
        if not ok.all():
            d[~ok] = 0
            self.count['oob_load'] = self.count.get('oob_load', 0) + 1
        return np.ascontiguousarray(d).view(np.uint32)
    def retire(self, q, n):
        while len(q) > n:
            for f in q.pop(0): f()
    def pend(self, o):
        sl = slice(o.i, o.i + o.n)
        self.vpend[sl] += 1
        def done(): self.vpend[sl] -= 1
        return done
    def run(self, maxsteps):
        ins = self.wg.ins
        while True:
            if self.pc in self.wg.rets: self.passed.add(self.wg.rets[self.pc][:-4])
            I = ins[self.pc]; self.pc += 1
            self.nins += 1
            if self.nins > maxsteps: self.err(I, 'too many steps')
            r = self.step(I)
            self.t += 1
            if r: return
    def step(self, I):
        mn = I.mn; o = I.ops
        c = mn[0]
        if c == 'v':
            if mn == 'v_mfma_f32_16x16x32_bf16':
                self.chk_vread(I, o[1], 'mfma_ab'); self.chk_vread(I, o[2], 'mfma_ab')
                def frag(x):
                    r = self.v[x.i:x.i + 4]
                    lo = (r << 16).view(np.float32); hi = (r & 0xffff0000).view(np.float32)
                    f = np.stack([lo, hi], 1).reshape(8, 4, 16)
                    return f.transpose(2, 1, 0).reshape(16, 32)
                A = frag(o[1]); B = frag(o[2])
                with np.errstate(all='ignore'):
                    D = A @ B.T
                    D = D.reshape(4, 4, 16).transpose(1, 0, 2).reshape(4, 64)
                    if o[3].k == 'v':
                        if (o[3].i >= 256) != (o[0].i >= 256): self.err(I, 'C/D class mismatch')
                        self.chk_vread(I, o[3], 'mfma_c')
                        D = D + self.v[o[3].i:o[3].i + 4].view(np.float32)
                        self.t_mfma_c[o[3].i:o[3].i + 4] = self.t
                    elif o[3].val != 0: self.err(I, 'const C')
                self.chk_vwrite(I, o[0], 'mfma')
                if self.exec_mask() is not None: self.err(I, 'mfma under partial exec')
                self.v[o[0].i:o[0].i + 4] = D.astype(np.float32).view(np.uint32)
                self.t_mfma_w[o[0].i:o[0].i + 4] = self.t; self.mfma_d[o[0].i:o[0].i + 4] = o[0].i
                self.count['mfma'] = self.count.get('mfma', 0) + 1
                return
            return self.valu(I)
        if c == 's': return self.salu(I)
        if c == 'd': return self.ds(I)
        if c == 'b': return self.vmem(I)
        self.err(I, 'unknown')
    def valu(self, I):
        mn = I.mn; o = I.ops
        F = self.fsrc; V = self.vsrc
        with np.errstate(all='ignore'):
            if mn in TRANS:
                x = F(I, o[1], 'trans')
                r = {'v_exp_f32': np.exp2, 'v_log_f32': np.log2, 'v_rcp_f32': lambda x: np.float32(1) / x,
                     'v_rsq_f32': lambda x: np.float32(1) / np.sqrt(x), 'v_sqrt_f32': np.sqrt}[mn](x)
                return self.vdst(I, o[0], r.astype(np.float32), 'trans')
            dpp = [k for k in I.mods if k.startswith(('row_ror', 'row_shr', 'quad_perm', 'row_half_mirror', 'row_mirror'))]
            if dpp:
                self.chk_vread(I, o[1], 'perm')
                src = self.v[o[1].i]
                k = dpp[0]
                if k == 'row_ror':
                    n = I.mods[k]; idx = (LANES & ~15) | ((LANES - n) & 15)
                elif k == 'row_mirror': idx = (LANES & ~15) | (15 - (LANES & 15))
                elif k == 'row_half_mirror': idx = (LANES & ~7) | (7 - (LANES & 7))
                else: self.err(I, 'dpp')
                a = src[idx].view(np.float32)
                if mn == 'v_mov_b32': return self.vdst(I, o[0], a.copy())
                b = F(I, o[2])
                r = {'v_add_f32': np.add, 'v_max_f32': np.fmax}[mn](a, b)
                return self.vdst(I, o[0], r)
            if mn == 'v_cvt_pk_bf16_f32':
                return self.vdst(I, o[0], bf16_round(F(I, o[1])) | (bf16_round(F(I, o[2])) << 16))
            if mn in ('v_mov_b32', 'v_accvgpr_write_b32', 'v_accvgpr_read_b32', 'v_accvgpr_mov_b32'):
                return self.vdst(I, o[0], V(I, o[1]).copy())
            f2 = {'v_add_f32': np.add, 'v_sub_f32': np.subtract, 'v_mul_f32': np.multiply, 'v_max_f32': np.fmax, 'v_min_f32': np.fmin,
                  'v_subrev_f32': lambda a, b: b - a}
            if mn in f2: return self.vdst(I, o[0], f2[mn](F(I, o[1]), F(I, o[2])))
            if mn == 'v_fma_f32':
                return self.vdst(I, o[0], (F(I, o[1]).astype(np.float64) * F(I, o[2]) + F(I, o[3])).astype(np.float32))
            if mn == 'v_fmac_f32':
                return self.vdst(I, o[0], (F(I, o[1]).astype(np.float64) * F(I, o[2]) + F(I, o[0])).astype(np.float32))
            if mn == 'v_fmaak_f32':
                return self.vdst(I, o[0], (F(I, o[1]).astype(np.float64) * F(I, o[2]) + F(I, o[3])).astype(np.float32))
            if mn == 'v_max3_f32': return self.vdst(I, o[0], np.fmax(np.fmax(F(I, o[1]), F(I, o[2])), F(I, o[3])))
            L = lambda x: V(I, x).astype(np.int64)
            i2 = {'v_add_u32': lambda a, b: a + b, 'v_sub_u32': lambda a, b: a - b, 'v_subrev_u32': lambda a, b: b - a,
                  'v_and_b32': lambda a, b: a & b, 'v_or_b32': lambda a, b: a | b, 'v_xor_b32': lambda a, b: a ^ b,
                  'v_lshlrev_b32': lambda a, b: b << (a & 31), 'v_lshrrev_b32': lambda a, b: b >> (a & 31),
                  'v_mul_u32_u24': lambda a, b: (a & 0xffffff) * (b & 0xffffff), 'v_mul_lo_u32': lambda a, b: (a * b),
                  'v_min_u32': np.minimum, 'v_max_u32': np.maximum}
            if mn in i2: return self.vdst(I, o[0], i2[mn](L(o[1]), L(o[2])))
            i3 = {'v_lshl_add_u32': lambda a, b, c: (a << (b & 31)) + c, 'v_lshl_or_b32': lambda a, b, c: (a << (b & 31)) | c,
                  'v_add_lshl_u32': lambda a, b, c: (a + b) << (c & 31), 'v_and_or_b32': lambda a, b, c: (a & b) | c,
                  'v_mad_u32_u24': lambda a, b, c: (a & 0xffffff) * (b & 0xffffff) + c, 'v_add3_u32': lambda a, b, c: a + b + c,
                  'v_bfe_u32': lambda a, b, c: (a >> (b & 31)) & ((1 << (c & 31)) - 1), 'v_or3_b32': lambda a, b, c: a | b | c,
                  'v_xad_u32': lambda a, b, c: (a ^ b) + c,
                  'v_max3_u32': lambda a, b, c: np.maximum(np.maximum(a, b), c)}
            if mn in i3: return self.vdst(I, o[0], i3[mn](L(o[1]), L(o[2]), L(o[3])))
            if mn.startswith('v_cmp_'):
                _, _, op, ty = mn.split('_')
                if ty == 'f32': a, b = F(I, o[1]), F(I, o[2])
                elif ty == 'u32': a, b = L(o[1]), L(o[2])
                else: a, b = V(I, o[1]).view(np.int32), V(I, o[2]).view(np.int32)
                neg = False
                if ty == 'f32' and op in ('nlt', 'nle', 'ngt', 'nge', 'neq'): neg = True; op = op[1:]
                r = {'lt': a < b, 'le': a <= b, 'gt': a > b, 'ge': a >= b, 'eq': a == b, 'ne': a != b}[op]
                if neg: r = ~r
                return self.set_mask(I, o[0], r)
            if mn == 'v_cndmask_b32':
                m = self.get_mask(I, o[3])
                return self.vdst(I, o[0], np.where(m, V(I, o[2]), V(I, o[1])))
            if mn == 'v_readfirstlane_b32':
                self.chk_vread(I, o[1], 'rl')
                m = self.exec_mask()
                l = 0 if m is None or not m.any() else int(np.argmax(m))
                self.sset(I, o[0], int(self.v[o[1].i][l])); self.t_s_valu[o[0].i] = self.t
                return
            if mn in ('v_permlane32_swap_b32', 'v_permlane16_swap_b32'):
                self.chk_vread(I, o[0], 'perm'); self.chk_vread(I, o[1], 'perm')
                a = self.v[o[0].i].copy(); b = self.v[o[1].i].copy()
                if mn == 'v_permlane32_swap_b32':
                    t = a[32:].copy(); a[32:] = b[:32]; b[:32] = t
                else:
                    for r in (0, 32):
                        t = a[r + 16:r + 32].copy(); a[r + 16:r + 32] = b[r:r + 16]; b[r:r + 16] = t
                self.vdst(I, o[0], a); self.vdst(I, o[1], b)
                return
            if mn == 'v_nop': return
        self.err(I, 'unknown valu')
    def salu(self, I):
        mn = I.mn; o = I.ops; S = lambda x: self.sget(I, x)
        if mn == 's_waitcnt':
            if 'vmcnt' in I.mods: self.retire(self.vmq, I.mods['vmcnt'])
            if 'lgkmcnt' in I.mods:
                n = I.mods['lgkmcnt']
                if n > 15: self.err(I, 'lgkmcnt range')
                if self.spend and n != 0: self.err(I, 'counted lgkm with smem pending')
                self.retire(self.lgq, n)
                if n == 0: self.spend = set()
            if I.mods.get('vmcnt', 0) > 63: self.err(I, 'vmcnt range')
            return
        if mn == 's_nop': self.t += o[0].val; return
        if mn == 's_barrier': self.nbar += 1; return True
        if mn == 's_endpgm':
            self.retire(self.vmq, 0); self.retire(self.lgq, 0); self.done = True; return True
        if mn in ('s_setprio', 's_sleep'):
            return
        if mn == 's_branch': self.pc = self.wg.labels[o[0].val]; return
        if mn.startswith('s_cbranch_'):
            k = mn[10:]
            vcc = self.s[106] | self.s[107]; ex = self.s[126] | self.s[127]
            t = {'scc0': not self.scc, 'scc1': self.scc, 'vccz': vcc == 0, 'vccnz': vcc != 0, 'execz': ex == 0, 'execnz': ex != 0}[k]
            if t: self.pc = self.wg.labels[o[0].val]
            return
        if mn.startswith('s_load_dword'):
            addr = self.sget64(I, o[1]) + o[2].val
            b0, a, _ = self.wg.mem.find(addr)
            d = a[addr - b0: addr - b0 + 4 * o[0].n].view(np.uint32)
            for k in range(o[0].n):
                self.s[o[0].i + k] = int(d[k]); self.spend.add(o[0].i + k)
            return
        if mn == 's_getpc_b64': return self.sset64(I, o[0], 0x7777000000)
        if mn in ('s_memtime', 's_memrealtime'): return self.sset64(I, o[0], 1)
        if mn == 's_getreg_b32': return self.sset(I, o[0], 0)
        if mn in ('s_mov_b32', 's_movk_i32'): return self.sset(I, o[0], S(o[1]))
        if mn == 's_mov_b64': return self.sset64(I, o[0], self.sget64(I, o[1]))
        if mn.startswith('s_cmp_'):
            _, _, op, ty = mn.split('_')
            if ty == 'u64': a, b = self.sget64(I, o[0]), self.sget64(I, o[1])
            else: a, b = S(o[0]), S(o[1])
            if ty == 'i32':
                a -= (a >> 31) << 32; b -= (b >> 31) << 32
            self.scc = int({'eq': a == b, 'lg': a != b, 'lt': a < b, 'le': a <= b, 'gt': a > b, 'ge': a >= b}[op]); return
        if mn == 's_bitcmp1_b32': self.scc = (S(o[0]) >> (S(o[1]) & 31)) & 1; return
        if mn == 's_cselect_b32': return self.sset(I, o[0], S(o[1]) if self.scc else S(o[2]))
        if mn == 's_and_saveexec_b64':
            e = self.s[126] | (self.s[127] << 32); m = self.sget64(I, o[1])
            self.sset64(I, o[0], e); e &= m
            self.s[126] = e & 0xffffffff; self.s[127] = e >> 32; self.scc = int(e != 0); return
        if mn in ('s_or_b64', 's_and_b64'):
            a, b = self.sget64(I, o[1]), self.sget64(I, o[2])
            r = a | b if mn == 's_or_b64' else a & b
            self.sset64(I, o[0], r); self.scc = int(r != 0); return
        a, b = S(o[1]), S(o[2])
        if mn == 's_add_u32': r = a + b; self.scc = r >> 32
        elif mn == 's_addc_u32': r = a + b + self.scc; self.scc = r >> 32
        elif mn == 's_sub_u32': r = a - b; self.scc = int(r < 0)
        elif mn == 's_mul_i32': r = a * b
        elif mn == 's_mul_hi_u32': r = (a * b) >> 32
        elif mn == 's_min_u32': r = min(a, b); self.scc = int(a < b)
        elif mn == 's_max_u32': r = max(a, b); self.scc = int(a > b)
        else:
            r = {'s_lshl_b32': a << (b & 31), 's_lshr_b32': a >> (b & 31), 's_and_b32': a & b, 's_or_b32': a | b, 's_xor_b32': a ^ b,
                 's_bfe_u32': (a >> (b & 31)) & ((1 << ((b >> 16) & 127)) - 1)}.get(mn)
            if r is None: self.err(I, 'unknown salu')
            self.scc = int((r & 0xffffffff) != 0)
        self.sset(I, o[0], r)
    def ds(self, I):
        mn = I.mn; o = I.ops; lds = self.wg.lds
        m = self.exec_mask()
        if mn.startswith('ds_read'):
            nb = {'ds_read_b128': 16, 'ds_read_b64': 8, 'ds_read_b64_tr_b16': 8, 'ds_read_b32': 4}[mn]
            self.chk_vread(I, o[1], 'mem')
            addr = self.v[o[1].i].astype(np.int64) + I.mods.get('offset', 0)
            if I.mods.get('offset', 0) > 65535: self.err(I, 'ds offset')
            if (addr % nb).any(): self.err(I, 'unaligned ds')
            g = self.lds_gran(I, addr, nb, m)
            d1 = self.lds_read_chk(I, g)
            if m is not None:
                if mn.endswith('tr_b16'): self.err(I, 'tr under mask')
                addr = np.where(m, addr, 0)
            elif nb >= 8: self.bank_conf(I, addr, 'b128' if nb == 16 else 'b64')
            d = np.ascontiguousarray(lds[addr[:, None] + np.arange(nb)[None, :]])
            if mn.endswith('tr_b16'):
                h = d.view(np.uint16).reshape(4, 4, 16)
                d = np.ascontiguousarray(h.transpose(0, 2, 1)).reshape(64, 4)
            d = d.view(np.uint32).reshape(64, nb // 4)
            self.chk_vwrite(I, o[0], 'load')
            for k in range(nb // 4):
                self.v[o[0].i + k] = d[:, k] if m is None else np.where(m, d[:, k], self.v[o[0].i + k])
            self.lgq.append([d1, self.pend(o[0])])
        elif mn.startswith('ds_write'):
            nb = {'ds_write_b128': 16, 'ds_write_b64': 8, 'ds_write_b32': 4}[mn]
            self.chk_vread(I, o[0], 'mem'); self.chk_vread(I, o[1], 'mem')
            addr = self.v[o[0].i].astype(np.int64) + I.mods.get('offset', 0)
            g = self.lds_gran(I, addr, nb, m)
            d1 = self.lds_write_chk(I, g, False)
            d = np.ascontiguousarray(self.v[o[1].i:o[1].i + nb // 4].T).view(np.uint8)
            sel = slice(None) if m is None else m
            lds[addr[sel][:, None] + np.arange(nb)[None, :]] = d[sel]
            self.lgq.append([d1])
        else: self.err(I, 'unknown ds')
        if len(self.lgq) > 15: self.count['lgkm_overflow'] = self.count.get('lgkm_overflow', 0) + 1
    def vmem(self, I):
        mn = I.mn; o = I.ops
        m = self.exec_mask()
        if I.mods.get('offset', 0) > 4095: self.err(I, 'buffer offset')
        if mn in ('buffer_inv', 'buffer_wbl2'):
            self.vmq.append([]); return
        nb = 4 * {'dword': 1, 'dwordx2': 2, 'dwordx4': 4, 'add': 1}[mn.split('_')[-1]]
        if mn.startswith('buffer_load'):
            if 'lds' in I.mods:
                if self.t - self.t_m0 - 1 < 1: self.err(I, 'm0 -> lds dma hazard')
                if m is not None: self.err(I, 'dma under mask')
                base, off, nrec = self.baddr(I, o[0], o[1], o[2])
                d = self.gather(I, base, off, nrec, nb)
                la = (self.s[124] & 0x3fffc) + I.mods.get('offset', 0) + LANES * nb
                g = self.lds_gran(I, la, nb, None)
                d1 = self.lds_write_chk(I, g, True)
                self.wg.lds[la[0]:la[0] + 64 * nb] = d.view(np.uint8).reshape(-1)
                self.vmq.append([d1])
            else:
                base, off, nrec = self.baddr(I, o[1], o[2], o[3])
                if m is not None: off = np.where(m, off, 0)
                d = self.gather(I, base, off, nrec, nb)
                self.chk_vwrite(I, o[0], 'load')
                for k in range(nb // 4):
                    self.v[o[0].i + k] = d[:, k] if m is None else np.where(m, d[:, k], self.v[o[0].i + k])
                self.vmq.append([self.pend(o[0])])
        else:
            base, off, nrec = self.baddr(I, o[1], o[2], o[3])
            self.chk_vread(I, o[0], 'mem')
            b0, a, name = self.wg.mem.find(base)
            if base - b0 + nrec > len(a): self.err(I, 'SRD range exceeds buffer %s' % name)
            ok = off + nb <= nrec
            if m is not None: ok = ok & m
            elif not ok.all() and nrec and (off[~ok] < 0x40000000).any(): self.err(I, 'OOB store')
            mem = self.wg.mem; cbs = []
            if ok.any():
                lo_ = base - b0 + off[ok].min()
                rec = None; skip = False
                if mem.region:
                    if mn.startswith('buffer_store'):
                        r = mem.region(name, int(lo_))
                        if name == 'dbg':
                            for q in self.wg.stores:
                                if q[0] == 'S0' and q[1] is None: self.err(I, 'init flag before clearing completes')
                        if r:
                            if r == 'S5':
                                if (self.v[o[0].i] == 0xffffffff).all():
                                    r = 'S4'; skip = True
                                    mem.log.append(('sentinel', name, int(lo_), int(ok.sum()), 0, self.wid, I.line))
                                elif 'S7' not in self.passed: self.err(I, 'exchange data before S7')
                            if r == 'S6': r = 'S6w%d' % self.wid
                            if r in self.wg.signalled: self.err(I, 'store after signal %s' % r)
                            if 'sc1' not in I.mods: self.err(I, 'hand-off store without sc1')
                            rec = [r, None]; self.wg.stores.append(rec)
                    else:
                        r = mem.sigof(name, int(lo_))
                        if 'S0' not in self.passed: self.err(I, 'signal before flags are known cleared')
                        if r == 'S6': r = 'S6w%d' % self.wid
                        for q in self.wg.stores:
                            if q[0] == r and (q[1] is None or (q[1] >= self.wg.epoch and r[:2] != 'S6')): self.err(I, 'signal %s before stores complete' % r)
                        self.wg.signalled.add(r)
                if rec:
                    def fin(rec=rec): rec[1] = self.wg.epoch
                    cbs.append(fin)
                if skip:
                    self.vmq.append(cbs); return
                if any(n == name and l <= lo_ < h for n, l, h in mem.frozen):
                    mem.log.append((mn, name, int(lo_), int(ok.sum()), int(self.v[o[0].i][np.argmax(ok)]), self.wid, I.line))
                    self.vmq.append(cbs); return
                if name in mem.written:
                    mem.written[name][((base - b0 + off[ok]) // 2)[:, None] + np.arange(nb // 2)[None, :]] = True
            if mn.startswith('buffer_store'):
                d = np.ascontiguousarray(self.v[o[0].i:o[0].i + nb // 4].T).view(np.uint8)
                a[(base - b0 + off[ok])[:, None] + np.arange(nb)[None, :]] = d[ok]
                if nb > 8: self.t_store_r[o[0].i:o[0].i + o[0].n] = self.t
            else:
                w = a.view(np.uint32)
                for l in np.nonzero(ok)[0]:
                    w[(base - b0 + off[l]) // 4] += self.v[o[0].i][l]
            self.vmq.append(cbs)
        if len(self.vmq) > 63: self.count['vm_overflow'] = self.count.get('vm_overflow', 0) + 1
```

```python
import sys
from asmlib import *
import gen as G
from gen import (NAME, MB, V_L16, V_TR, V_WD, V_AD, V_AR, V_T, V_WB, V_ACC, V_R, QSCALE, w_dma_voff, tr_addrs, areg, rbase,
                 Passes, cvt_pairs, V_AV, V_AK, V_LB, V_E, V_NB, V_P, V_NA, V_OB, V_OA, A_QL, A_K, A_V, A_ONE, A_L, RING, NINF,
                 qfrag, stile, otile, ntile, lacc, qk_mfmas, pv_mfmas, sm_ops, k_reads, v_reads)

WS_XN, WS_KV, WS_A3, WS_FLG, WS_W3, WS_X, WS_PROF = 0, 2 * MB, 34 * MB, 57 * MB, 58 * MB, 64 * MB, 80 * MB
LDS_SZ = 163840
ST = ' sc1'
LD = ' sc1'
PROF = False
ROT1 = 1
ROT2 = 1
ALEAD = 3
LNAT = 30
W4AT = 94
SIGD = 90
PKAT = (1905, 8)
XLATE = 0
TOUCHG = 0
RING8 = 1
KVSP = 16
ALN = 5
EPD = 0
S4P = 5
S4S = 1
WA = (265, 43)
WB = (1105, 60)
XSP = 4.6
KVAT = [(262, 28), (518, 28), (1125, 14), (1280, 24)]
BIGOFF = 0x7fffff00
SPIN = 1 << 16
PGAPS = [256 * p + 255 for p in range(8)]

R_X, R_CKV, R_WQ, R_WK, R_WV, R_W3, R_WG, R_WU, R_OUT, R_DBG, R_WS, R_KV, R_TMP = 4, 8, 12, 16, 20, 24, 28, 32, 36, 40, 44, 48, 52
sT, sT1, sT2, sU, sV, sK = 56, 57, 58, 59, 60, 61
sM0W, sJ, sH = 62, 63, 64
sA, sW1, sM0A, sKVO, sXO, sXN, sQS, sF2P = 65, 66, 67, 68, 69, 70, 71, 72
sDH, sDC, sKQ, sXS, sO, sXI, sF4C, sM0O = 65, 66, 67, 68, 69, 70, 71, 72
sXA, sXB, sWQ, sWG, sHA, sHB, sPS, sPD = 73, 74, 75, 76, 77, 78, 79, 80
sSLOT, sM0R, sCNT, sNINF, sTHR = 73, 74, 75, 76, 77
sCA, sCB, sSRC, sM0B, sQB, sFLAG, sMASK, sFX, sSPIN = 81, 82, 83, 84, 85, 86, 88, 96, 97
sROT, sROT2 = 0, 1
sM0P = sXO
V_SIG, V_POLL, V_PROF = 14, 13, 15

DIAG = None
def stamp(k, vp=V_PROF, fine=False):
    if len(PGAPS) > 8 and k > 2 and not fine:
        if k != 24: return []
        k = 3 + len(PGAPS)
    if DIAG == k: return ['s_memrealtime s[98:99]', 's_waitcnt lgkmcnt(0)']
    if not PROF: return []
    o = [f'v_mov_b32 v{vp}, 0'] if k == 0 else []
    return o + ['s_memrealtime s[98:99]', 's_memtime s[100:101]', 's_waitcnt lgkmcnt(0)', f'v_writelane_b32 v{vp}, s98, {2*k}', f'v_writelane_b32 v{vp}, s100, {2*k+1}']

def chain(sc, ops, g, hi=None):
    prev = None
    for o in ops:
        if isinstance(o, int):
            g += o; continue
        k = kind_of(o)
        if prev is not None and not (k == 'v' and prev == 'v'): g += 1
        g = sc.place(o, g, hi)
        prev = k
    return g + 1

def wsrd(r):
    return S(r, 4)

def gen_fused(code_bytes):
    nm = NAME + '_kernel'
    OOL = []
    L = [f'.globl {nm}', '.p2align 8', f'.type {nm},@function', f'{nm}:', 's_cmp_ge_u32 s2, 256', 's_cbranch_scc1 K_END']
    if DIAG == -1: L += ['s_memrealtime s[98:99]']
    for r, off in ((R_CKV, 8), (R_WK, 24), (R_X, 0), (R_WQ, 16), (R_WV, 32), (R_W3, 40), (R_WG, 56), (R_WU, 64), (R_KV, 72), (R_OUT, 80), (R_DBG, 88), (R_WS, 96)):
        L.append(f's_load_dwordx2 s[{r}:{r+1}], s[0:1], {off}')
    L += [f's_getpc_b64 s[{R_TMP}:{R_TMP+1}]', f's_mov_b32 s{R_TMP+2}, {code_bytes}', f's_mov_b32 s{R_TMP+3}, 0x20000',
          f's_lshr_b32 s{sU}, s2, 3', f's_lshl_b32 s{sV}, s{sU}, 12', f'v_lshl_add_u32 v1, v0, 4, s{sV}',
          f'buffer_load_dword v2, v1, {wsrd(R_TMP)}, 0 offen',
          f'v_lshl_add_u32 v18, s2, 8, v0',
          f'v_cmp_eq_u32 vcc, 0, v0', f'v_mov_b32 v19, {BIGOFF:#x}',
          'v_lshrrev_b32 v1, 6, v0', 'v_and_b32 v0, 63, v0', 'v_readfirstlane_b32 s3, v1', 'v_cndmask_b32 v19, v19, v0, vcc']
    for r, sz in ((R_CKV, 2 * MB), (R_WK, 4 * MB), (R_X, 2 * MB), (R_WQ, 4 * MB), (R_WV, 4 * MB), (R_WG, 512 * 3584), (R_WU, 512 * 3584),
                  (R_OUT, 2 * MB), (R_DBG, 256), (R_WS, 80 * MB)):
        L += [f's_mov_b32 s{r+2}, {sz:#x}', f's_mov_b32 s{r+3}, 0x20000']
    sRB, sH1 = sT1, sT2
    L += [f's_and_b32 s{sU}, s2, 1', f's_lshl_b32 s{sU}, s{sU}, 2', f's_bfe_u32 s{sV}, s2, 0x20003', f's_add_u32 s{sRB}, s{sU}, s{sV}',
          f's_bfe_u32 s{sU}, s2, 0x20001', f's_add_u32 s{sCA}, s{sU}, s{sV}', f's_lshl_b32 s{sU}, s{sU}, 3', f's_lshr_b32 s{sV}, s2, 5', f's_add_u32 s{sH1}, s{sU}, s{sV}']
    L += [f's_lshl_b32 s{sU}, s{sRB}, 2', f's_add_u32 s{sU}, s{sU}, s3', f's_lshl_b32 s{sA}, s{sU}, 16',
          f's_lshl_b32 s{sV}, s{sH1}, 20', f's_lshl_b32 s{sU}, s{sU}, 15', f's_add_u32 s{sKVO}, s{sU}, s{sV}', f's_add_u32 s{sKVO}, s{sKVO}, {WS_KV:#x}',
          f's_lshl_b32 s{sU}, s3, 18', f's_lshl_b32 s{sV}, s{sH1}, 8', f's_add_u32 s{sW1}, s{sU}, s{sV}',
          f's_lshl_b32 s{sM0W}, s3, 12', f's_lshl_b32 s{sM0A}, s3, 14', f's_add_u32 s{sM0A}, s{sM0A}, 65536',
          f's_lshl_b32 s{sF2P}, s{sH1}, 7', f's_add_u32 s{sF2P}, s{sF2P}, {WS_FLG:#x}']
    t = V_T + 4
    L += [f'v_lshrrev_b32 v{t}, 3, v0', f'v_lshlrev_b32 v{t}, 10, v{t}',
          f'v_lshrrev_b32 v{t+1}, 4, v0', f'v_and_b32 v{t+2}, 7, v0', f'v_xor_b32 v{t+1}, v{t+1}, v{t+2}', f'v_xor_b32 v{t+2}, 4, v{t+1}',
          f'v_lshl_add_u32 v{t+1}, v{t+1}, 4, v{t}', f'v_lshl_add_u32 v{t+2}, v{t+2}, 4, v{t}']
    for i in range(4):
        L.append(f'v_add_u32 v{V_AD+i}, {i * 8192 - i * 1024}, v{t + 1 + (i & 1)}')
    L += w_dma_voff(V_WD, 8192, t)
    L += ['s_waitcnt lgkmcnt(0)', f's_mov_b32 s{sROT}, s{sCA}' if ROT1 else f's_mov_b32 s{sROT}, 0'] + stamp(0, 39)
    def rot_off(dst, rot, i, mul, base, add):
        o = [f's_add_u32 s{dst}, s{rot}, {i}', f's_and_b32 s{dst}, s{dst}, 3', f's_mul_i32 s{dst}, s{dst}, {mul}', f's_add_u32 s{dst}, s{dst}, s{base}']
        return o + ([f's_add_u32 s{dst}, s{dst}, {add}'] if add else [])
    def a_items(c):
        it = []
        for hf in range(2):
            it += rot_off(sT, sROT, c // 2, 256, sA, (c % 2) * 128) if hf == 0 else [f's_add_u32 s{sT}, s{sT}, 32768']
            it += [f's_add_u32 m0, s{sM0A}, {(c % 2) * 8192 + hf * 4096}', 's_nop 0']
            it += [f'buffer_load_dwordx4 v{V_AD+i}, {wsrd(R_CKV)}, s{sT} offen offset:{i*1024} lds ; @A{c}' for i in range(4)]
        return it
    V_GD = 30
    def half(p):
        return 65536 if (RING8 and p >= 2 and p % 2 == 0) else 0
    def w_items(st):
        p, s4 = st // 4, st % 4
        lo = half(p) + s4 * 16384
        if p in (4, 5):
            it = [f's_add_u32 m0, s{sM0W}, {lo}'] + rot_off(sT, sROT2, s4, 128 * 3584, sWG, (p % 2) * 64)
            it += [f'buffer_load_dwordx4 v{V_GD+i}, {wsrd(R_WG)}, s{sT} offen offset:{i*1024} lds ; @W{st}' for i in range(2)]
            it += [f's_add_u32 m0, s{sM0W}, {lo + 2048}']
            it += [f'buffer_load_dwordx4 v{V_GD+i}, {wsrd(R_WU)}, s{sT} offen offset:{i*1024} lds ; @W{st}' for i in range(2)]
            return it
        r, so = (R_WK, sW1) if p < 2 else (R_WV, sW1) if p < 4 else (R_WQ, sWQ)
        it = [f's_add_u32 m0, s{sM0W}, {lo}'] + rot_off(sT, sROT if p < 4 else sROT2, s4, 128 * 8192, so, (p % 2) * 128)
        it += [f'buffer_load_dwordx4 v{V_WD+i}, {wsrd(r)}, s{sT} offen offset:{i*1024} lds ; @W{st}' for i in range(4)]
        return it
    L += a_items(0) + w_items(0)
    L += [f'v_lshlrev_b32 v{V_L16}, 4, v0', f's_mov_b32 s{sQS}, {QSCALE:#x}']
    L += tr_addrs(V_TR, t)
    L += [f'v_and_b32 v{t}, 15, v0', f'v_lshrrev_b32 v{t+1}, 1, v{t}', f'v_lshrrev_b32 v{t+2}, 4, v0', f'v_xor_b32 v{t+1}, v{t+1}, v{t+2}',
          f'v_lshlrev_b32 v{t}, 7, v{t}', f'v_add_u32 v{t}, s{sM0A}, v{t}',
          f'v_lshl_add_u32 v{V_AR}, v{t+1}, 4, v{t}', f'v_xor_b32 v{V_AR+1}, 64, v{V_AR}']
    L += [f's_lshl_b32 s{sU}, s2, 2', f's_add_u32 s{sU}, s{sU}, s3', f's_lshl_b32 s{sXO}, s{sU}, 11',
          f's_lshr_b32 s{sU}, s2, 2', f's_lshl_b32 s{sXN}, s{sU}, 15', f's_bfe_u32 s{sU}, s2, 0x10001', f's_lshl_b32 s{sU}, s{sU}, 10',
          f's_add_u32 s{sXN}, s{sXN}, s{sU}', f's_and_b32 s{sU}, s2, 1', f's_lshl_b32 s{sU}, s{sU}, 7', f's_add_u32 s{sXN}, s{sXN}, s{sU}',
          f's_lshl_b32 s{sU}, s3, 13', f's_add_u32 s{sXN}, s{sXN}, s{sU}']
    sQA = sK
    L += [f's_and_b32 s{sU}, s2, 7', f's_lshl_b32 s{sU}, s{sU}, 2', f's_bfe_u32 s{sV}, s2, 0x20003', f's_add_u32 s{sH}, s{sU}, s{sV}',
          f's_lshr_b32 s{sJ}, s2, 5', f's_lshl_b32 s{sU}, s{sJ}, 2', f's_add_u32 s{sQB}, s{sU}, s3',
          f's_sub_u32 s{sV}, 60, s{sU}', f's_add_u32 s{sQA}, s{sV}, s3',
          f's_lshl_b32 s{sXA}, s{sQA}, 15', f's_lshl_b32 s{sXB}, s{sQB}, 15',
          f's_lshl_b32 s{sU}, s3, 18', f's_lshl_b32 s{sV}, s{sH}, 8', f's_add_u32 s{sWQ}, s{sU}, s{sV}',
          f's_min_u32 s{sV}, s{sH}, 27', f's_lshl_b32 s{sV}, s{sV}, 7', f's_mul_i32 s{sU}, s3, {32 * 3584}', f's_add_u32 s{sWG}, s{sU}, s{sV}']
    for q, hh, cc in ((sQA, sHA, sCA), (sQB, sHB, sCB)):
        L += [f's_lshr_b32 s{sU}, s{q}, 1', f's_mul_i32 s{sU}, s{sU}, {184 * 4096}', f's_and_b32 s{sV}, s{q}, 1', f's_lshl_b32 s{sV}, s{sV}, 11',
              f's_add_u32 s{sU}, s{sU}, s{sV}', f's_add_u32 s{sU}, s{sU}, {WS_A3:#x}', f's_min_u32 s{sV}, s{sH}, 27', f's_lshl_b32 s{sV}, s{sV}, 13', f's_add_u32 s{hh}, s{sU}, s{sV}',
              f's_lshl_b32 s{sV}, s{sH}, 14', f's_add_u32 s{sU}, s{sU}, s{sV}', f's_add_u32 s{cc}, s{sU}, {56 * 4096}']
    L += ['s_cmp_lt_u32 s2, 56', f's_cselect_b32 s{R_W3}, s{R_KV}, s{R_W3}', f's_cselect_b32 s{R_W3+1}, s{R_KV+1}, s{R_W3+1}',
          f's_cselect_b32 s{sU}, 0, 56', f's_mov_b32 s{sV}, {4*MB:#x}', f's_cselect_b32 s{R_W3+2}, {1792*1024:#x}, s{sV}', f's_mov_b32 s{R_W3+3}, 0x20000',
          f's_min_u32 s{sV}, s2, 183', f's_sub_u32 s{sU}, s{sV}, s{sU}', f's_lshl_b32 s{sU}, s{sU}, 15', f's_lshl_b32 s{sPS}, s3, 8', f's_add_u32 s{sPS}, s{sPS}, s{sU}',
          f's_lshl_b32 s{sV}, s{sV}, 12', f's_mul_i32 s{sU}, s3, {2 * 184 * 4096}', f's_add_u32 s{sPD}, s{sU}, s{sV}', f's_add_u32 s{sPD}, s{sPD}, {WS_W3:#x}']
    L += [f's_lshl_b32 s{sU}, s{sH}, 20', f's_add_u32 s{sU}, s{sU}, {WS_KV:#x}', f's_add_u32 s{R_KV}, s{R_WS}, s{sU}', f's_addc_u32 s{R_KV+1}, s{R_WS+1}, 0',
          f's_lshl_b32 s{sU}, s{sJ}, 16', f's_sub_u32 s{R_KV+2}, 0x100000, s{sU}', f's_mov_b32 s{R_KV+3}, 0x20000',
          's_cmp_lt_u32 s3, 2', f's_cselect_b32 s{sU}, 0xc000, 0', f's_add_u32 s{sSRC}, s{sU}, s{sM0W}', f's_add_u32 s{sM0B}, s{sM0W}, {RING}',
          f's_mov_b64 s[{sFLAG}:{sFLAG+1}], 0']
    if TOUCHG:
        L += ['s_bitcmp1_b32 s3, 0', f's_cselect_b32 s{R_TMP}, s{R_WU}, s{R_WG}', f's_cselect_b32 s{R_TMP+1}, s{R_WU+1}, s{R_WG+1}', f's_mov_b32 s{R_TMP+2}, s{R_WG+2}',
              f's_lshl_b32 s{sU}, s{sJ}, 1', f's_lshr_b32 s{sV}, s3, 1', f's_add_u32 s{sU}, s{sU}, s{sV}', f's_mul_i32 s{sU}, s{sU}, {32 * 3584}',
              f's_min_u32 s{sV}, s{sH}, 27', f's_lshl_b32 s{sV}, s{sV}, 7', f's_add_u32 s{sFX}, s{sU}, s{sV}']
    L += [f's_mov_b32 s{sROT2}, s{sJ}' if ROT2 else f's_mov_b32 s{sROT2}, 0',
          'v_cmp_gt_u32 vcc, 64, v18', 'v_lshlrev_b32 v20, 7, v0', f'v_mov_b32 v21, {BIGOFF:#x}', 'v_cndmask_b32 v20, v21, v20, vcc',
          'v_cmp_eq_u32 vcc, 0, v18', 'v_mov_b32 v22, 0', 'v_mov_b32 v23, 1', 'v_cndmask_b32 v21, v21, v22, vcc',
          'v_lshrrev_b32 v18, 1, v0', 'v_mul_u32_u24 v18, 3584, v18', f'v_add_u32 v18, s{sFX}, v18',
          f's_mov_b32 s{sFX}, {WS_FLG:#x}', f's_mov_b32 s{sSPIN}, {WS_FLG + 8192:#x}']
    L += [f'v_lshrrev_b32 v{t}, 4, v0', f'v_lshlrev_b32 v{t}, 2, v{t}', f'v_and_b32 v{t+1}, 15, v0']
    for i in range(4):
        L += [f'v_add_u32 v{t+2}, {i}, v{t}', f'v_cmp_gt_u32 s[{sMASK+2*i}:{sMASK+2*i+1}], v{t+2}, v{t+1}']
    V_C2 = 3
    L += [f'v_mov_b32 v{V_C2}, 0xbdd2d3e8']
    L += [f'v_lshrrev_b32 v{t}, 2, v0', f'v_mul_u32_u24 v{t}, 3584, v{t}', f'v_lshrrev_b32 v{t+1}, 4, v0', f'v_and_b32 v{t+1}, 2, v{t+1}',
          f'v_and_b32 v{t+2}, 3, v0', f'v_xor_b32 v{t+1}, v{t+1}, v{t+2}', f'v_lshl_add_u32 v{V_GD}, v{t+1}, 4, v{t}',
          f'v_add_u32 v{V_GD+1}, {16 * 3584 - 1024}, v{V_GD}']
    L += a_items(1)
    XR, X = 192, 200
    L += [f'v_lshrrev_b32 v{t}, 5, v0', f'v_and_b32 v{t+1}, 31, v0', f'v_lshlrev_b32 v{t+1}, 4, v{t+1}', f'v_lshl_add_u32 v{t+2}, v{t}, 10, v{t+1}',
          ]
    xld = [f'buffer_load_dwordx4 {V(XR, 4)}, v{t+2}, {wsrd(R_X)}, s{sXO} offen', f'buffer_load_dwordx4 {V(XR+4, 4)}, v{t+2}, {wsrd(R_X)}, s{sXO} offen offset:512']
    if not XLATE: L += xld
    L += [f'buffer_store_dword v22, v20, {wsrd(R_WS)}, s{sFX} offen sc1 ; @Z', f'buffer_store_dword v22, v20, {wsrd(R_WS)}, s{sSPIN} offen sc1 ; @Z']
    P = Passes(['T', 'T', 'N', 'N', 'G', 'G', 'T', 'T'])
    sc = P.sc
    def barg(st):
        return 8 * (8 * (st - 1) + 5) + 7
    def a_reads(c):
        return [f'ds_read_b128 {areg(2*c + k, rt)}, v{V_AR + k} offset:{(c % 2) * 8192 + rt * 2048}' for k in range(2) for rt in range(4)]
    L += stamp(1, 39) + ['WAITVM W0', 's_barrier'] + stamp(2, 39)
    L += a_reads(0) + P.tr_reads(0) + P.tr_reads(1)
    ev = []
    for c in range(1, 8):
        g0 = 32 * (c - 1)
        sc.put(g0 + 19, f'WAITVM A{c}')
        for i, r in enumerate(a_reads(c)):
            sc.put(g0 + 20 + (i // 2), r)
    for c in range(2, 8):
        g0 = max(0, 32 * (c - 2) - ALEAD)
        if c % 2 == 0: ev.append((g0, w_items(c // 2), None))
        ev.append((g0 + 0.5, a_items(c), areg(2 * (c - 2) + 1, 3)))
    for st in range(4, 32):
        early = barg(st - 3 if (st < 8 or not RING8) else 4 if st < 12 else st - 7) + 1
        want = W4AT if st == 4 else 161 + st * 0.01 if (st < 8 or not RING8) else WA[0] + WA[1] * (st - 8) if st < 20 else WB[0] + WB[1] * (st - 20)
        assert want < barg(st) - 60 or st < 8, st
        ev.append((max(early, want), w_items(st) + (xld if st == 4 and XLATE else []), None))
    if RING8:
        for p in (2, 3, 7):
            for ct in range(4): sc.place(f'v_xor_b32 v{V_TR+ct}, 0x10000, v{V_TR+ct}', 256 * p - 44 + 8 * ct, 256 * p - 17 + 8 * ct)
        for ct in range(4): sc.place(f'v_xor_b32 v{V_TR+ct}, 0x10000, v{V_TR+ct}', 1100, 1400)
        for ct in range(2): sc.place(f'v_xor_b32 v{V_AR+ct}, 0x10000, v{V_AR+ct}', 256 * 5 - 28 + 8 * ct, 256 * 5 - 17 + 8 * ct)
    def x_items(ss):
        if ss % 2 == 0:
            it = rot_off(sT2, sROT2, ss // 2, 8192, sXA, 0)[:3] + [f's_add_u32 s{sT1}, s{sT2}, s{sXA}', f's_add_u32 s{sT2}, s{sT2}, s{sXB}']
        else:
            it = [f's_add_u32 s{sT1}, s{sT1}, 4096', f's_add_u32 s{sT2}, s{sT2}, 4096']
        for k in range(2):
            for rt in range(4):
                it.append(f'buffer_load_dwordx4 {areg(2 * ss + k, rt)}, v{V_L16}, {wsrd(R_WS)}, s{sT1 if rt < 2 else sT2} offen offset:{k * 2048 + (rt % 2) * 1024}{LD}')
        return it
    def kv_items(i):
        it = [f's_add_u32 m0, s{sM0B}, {((i + 5) % 8) * 16384}']
        if i >= 0: it += [f's_add_u32 s{sT}, s{sSRC}, {i * 16384}']
        else: it += [f's_add_u32 s{sT}, s{sM0W}, {(i + 3) * 16384}']
        it += [f'buffer_load_dwordx4 v{V_L16}, {wsrd(R_KV)}, s{sT} offen offset:{k*1024}{LD} lds ; @KV{i}' for k in range(4)]
        return it
    for i in range(-3, 3):
        ev.append((7 * 256 + 8 + KVSP * (i + 3), kv_items(i), None))
    ev.append((barg(31) + 1, kv_items(3), None))
    V_PK = 18
    pk = []
    for i in range(8):
        ev.append((PKAT[0] + PKAT[1] * i, [f's_add_u32 m0, s{sM0O}, {i * 1024}', f's_add_u32 s{sT}, s{sPS}, {i * 4096}',
                                           f'buffer_load_dwordx4 v{V_PK + (i & 1)}, {wsrd(R_W3)}, s{sT} offen lds ; @PK'], None))
    ev.sort(key=lambda e: e[0])
    glastA = 0
    for g, it, touch in ev:
        it = [x for x in it if x != 's_nop 0']
        if touch: it = [f'TOUCH {touch}'] + it
        ge = P.dma_group(it, int(g), vmspace=(0 if g < 161 else 1 if g < 230 else 3 if g < 1792 else 2))
        if '@A7' in it[-1]: glastA = ge
        if '@W5' in it[-1]: gW5 = ge
    def signal(st, tag, srdr, setup):
        sc.s[barg(st) - 1].insert(0, f'WAITVM {tag}')
        return chain(sc, setup + [f'v_mov_b32 v{V_POLL}, 1', f'buffer_atomic_add v{V_POLL}, v{V_SIG}, {wsrd(srdr)}, s{sFX} offen'], barg(st) + 1)
    def poll_ool(name, vaddr, srdr, soff, expect):
        nonlocal OOL
        OOL += [f'{name}:', f's_mov_b32 s{sSPIN}, {SPIN}', f'{name}_L:',
                f'buffer_load_dword v{V_POLL}, v{vaddr}, {wsrd(srdr)}, {soff} offen sc1', f's_sub_u32 s{sSPIN}, s{sSPIN}, 1', 's_waitcnt vmcnt(0)',
                f's_cbranch_scc1 {name}_RET', f'v_cmp_gt_u32 vcc, {expect}, v{V_POLL}', f's_cbranch_vccnz {name}_L', f's_branch {name}_RET']
    def poll(name, g_issue, g_check, setup, vaddr, srdr, soff, expect, vmspace=1):
        g = chain(sc, setup, g_issue)
        g = sc.place(f'buffer_load_dword v{V_POLL}, v{vaddr}, {wsrd(srdr)}, {soff} offen sc1', g, vmspace=vmspace)
        assert g <= g_check - 60, (name, g)
        g = sc.place(f'v_cmp_gt_u32 vcc, {expect}, v{V_POLL}', g_check)
        g = sc.place(f's_cbranch_vccnz {name}', g + 1)
        sc.s[g].append(f'{name}_RET:')
        poll_ool(name, vaddr, srdr, soff, expect)
        return g + 1
    LNX = 131072
    g = chain(sc, [f'v_mov_b32 v{V_SIG}, v19', 'v_mov_b32 v12, 0'] + ([f'v_mov_b32 v{V_PROF}, v39'] if PROF else []), glastA)
    gmove = g - 2
    gs0 = poll('S0', g, 296, [], 12, R_DBG, '0', 1, vmspace=0)
    g = sc.place('WAITVM Z', 44) + 1
    sc.place(f'buffer_store_dword v23, v21, {wsrd(R_DBG)}, 0 offen sc1', g, vmspace=0)
    sm, s2_, tm = t + 3, t + 4, t + 2
    def reduce32(r, tmp):
        o = []
        for n in (8, 4, 2, 1):
            o += [2, f'v_add_f32_dpp v{r}, v{r}, v{r} row_ror:{n} row_mask:0xf bank_mask:0xf']
        o += [f'v_mov_b32 v{tmp}, v{r}', 2, f'v_permlane16_swap_b32 v{r}, v{tmp}', f'v_add_f32 v{r}, v{r}, v{tmp}']
        return o
    ln = []
    for i in range(8):
        ln += [f'v_lshlrev_b32 v{X+2*i}, 16, v{XR+i}', f'v_and_b32 v{X+2*i+1}, 0xffff0000, v{XR+i}']
    ln += [f'v_add_f32 v{sm}, v{X}, v{X+1}', f'v_add_f32 v{s2_}, v{X+2}, v{X+3}']
    for i in range(4, 16, 2):
        ln += [f'v_add_f32 v{sm}, v{sm}, v{X+i}', f'v_add_f32 v{s2_}, v{s2_}, v{X+i+1}']
    ln += [f'v_add_f32 v{sm}, v{sm}, v{s2_}'] + reduce32(sm, tm) + [f'v_mul_f32 v{sm}, 0x3b000000, v{sm}']
    ln += [f'v_sub_f32 v{X+i}, v{X+i}, v{sm}' for i in range(16)]
    ln += [f'v_mul_f32 v{sm}, v{X}, v{X}', f'v_mul_f32 v{s2_}, v{X+1}, v{X+1}']
    for i in range(2, 16, 2):
        ln += [f'v_fmac_f32 v{sm}, v{X+i}, v{X+i}', f'v_fmac_f32 v{s2_}, v{X+i+1}, v{X+i+1}']
    ln += [f'v_add_f32 v{sm}, v{sm}, v{s2_}'] + reduce32(sm, tm)
    ln += [f'v_mov_b32 v{s2_}, 0x3b000000', f'v_fmaak_f32 v{sm}, v{sm}, v{s2_}, 0x3727c5ac', f'v_rsq_f32 v{sm}, v{sm}']
    ln += [f'v_mul_f32 v{X+i}, v{X+i}, v{sm}' for i in range(16)]
    ln += [f'v_cvt_pk_bf16_f32 v{XR+i}, v{X+2*i}, v{X+2*i+1}' for i in range(8)]
    ln += [f's_lshl_b32 s{sU}, s3, 5', f's_add_u32 s{sU}, s{sU}, {LNX}', f'v_lshlrev_b32 v{tm}, 3, v{t+1}', f'v_lshl_add_u32 v{tm}, v{t}, 4, v{tm}', f'v_add_u32 v{tm}, s{sU}, v{tm}',
           f'ds_write_b128 v{tm}, {V(XR,4)}', f'ds_write_b128 v{tm}, {V(XR+4,4)} offset:4096']
    g = chain(sc, ln, LNAT)
    lnbar = min(st for st in range(2, 9) if barg(st) - 2 >= g)
    g = chain(sc, [f's_lshl_b32 s{sU}, s3, 11', f's_add_u32 s{sU}, s{sU}, {LNX}', f'v_add_u32 v{sm}, s{sU}, v{V_L16}',
                   f'v_bfe_u32 v{tm}, v0, 3, 2', f'v_and_b32 v{s2_}, 7, v0', f'v_lshlrev_b32 v{s2_}, 4, v{s2_}',
                   f'v_lshl_add_u32 v{s2_}, v{tm}, 8, v{s2_}', f'v_lshl_add_u32 v{s2_}, v{t}, 11, v{s2_}', f's_add_u32 s{sXO}, s{sXN}, 4096'], g)
    g = chain(sc, [f'ds_read_b128 {V(XR,4)}, v{sm}', f'ds_read_b128 {V(XR+4,4)}, v{sm} offset:1024', 6,
                   f'buffer_store_dwordx4 {V(XR,4)}, v{s2_}, {wsrd(R_WS)}, s{sXN} offen{ST} ; @XN',
                   f'buffer_store_dwordx4 {V(XR+4,4)}, v{s2_}, {wsrd(R_WS)}, s{sXO} offen{ST} ; @XN'], max(g, barg(lnbar) + 1))
    assert g < 470, g
    s1bar = min(st for st in range(2, 12) if barg(st) - SIGD >= g and barg(st) > gs0)
    signal(s1bar, 'XN', R_WS, [f's_lshr_b32 s{sFX}, s2, 4', f's_lshl_b32 s{sFX}, s{sFX}, 7', f's_add_u32 s{sFX}, s{sFX}, {WS_FLG + 96 * 128:#x}'])
    chain(sc, [f'v_lshrrev_b32 v{t}, 4, v0', f'v_bfe_u32 v{t+1}, v0, 2, 2', f'v_lshl_add_u32 v{t+1}, v{t}, 3, v{t+1}', f'v_lshlrev_b32 v{t+1}, 6, v{t+1}',
               f'v_and_b32 v{t+2}, 3, v0', f'v_lshl_add_u32 v{t+1}, v{t+2}, 3, v{t+1}', f'v_and_b32 v{t}, 1, v{t}',
               f'v_lshl_add_u32 v{V_AR}, v{t}, 5, v{t+1}', f'v_add_u32 v{V_AR}, {half(4)}, v{V_AR}', f'v_xor_b32 v{V_AR+1}, 32, v{V_AR}'], 800)
    g = poll('S1', 650, 786, [f's_lshl_b32 s{sU}, s{sJ}, 1', f's_sub_u32 s{sU}, 15, s{sU}', 'v_and_b32 v12, 1, v0', f'v_mul_u32_u24 v12, s{sU}, v12',
                              f'v_add_u32 v12, s{sJ}, v12', 'v_lshlrev_b32 v12, 7, v12', f's_mov_b32 s{sFX}, {WS_FLG + 96 * 128:#x}'], 12, R_WS, f's{sFX}', 16)
    assert g <= 800
    nx = 0
    for ss in range(8):
        for x in x_items(ss):
            if kind_of(x) == 'm':
                g = max(g, 768 + 32 * (ss + 1), int(800 + nx * XSP)); nx += 1
            g = sc.place(x, g, vmspace=1) + 1
        assert g < 1024 + 32 * ss - 30, (ss, g)
    gst = 0
    for p in range(4):
        for f in range(8):
            b = rbase(p) + 8 * f
            ops = []
            if p < 2:
                rt, p2 = f // 2, f % 2
                m, imm = (rt // 2) * 4 + rt % 2, (2 * p + p2) * 1024
                ops = [f'v_mul_f32 v{b+i}, s{sQS}, v{b+i}' for i in range(8)]
            else:
                ct, q = f // 2, f % 2
                m, imm = q * 4 + 2 + (p - 2), ct * 1024
            g0 = KVAT[p][0] + f * KVAT[p][1]
            g = chain(sc, ops + cvt_pairs(b), g0)
            g = max(g, sc.place(f's_add_u32 s{sK}, s{sKVO}, {m * 4096}', max(gst + 1, g0)) + 1)
            gst = sc.place(f'buffer_store_dwordx4 {V(b,4)}, v{V_L16}, {wsrd(R_WS)}, s{sK} offen offset:{imm}{ST} ; @KVS', g, vmspace=1)
        assert gst < (p + 2) * 256 + 222, (p, gst)
    s2bar = min(st for st in range(18, 28) if barg(st) - SIGD >= gst)
    signal(s2bar, 'KVS', R_WS, [f's_mov_b32 s{sFX}, s{sF2P}'])
    V_PS, V_PBASE = 33, 32
    t = 34
    chain(sc, [f'v_lshrrev_b32 v{t}, 4, v0', f'v_and_b32 v{t+1}, 15, v0', f'v_lshlrev_b32 v{t+2}, 1, v{t}', f'v_xor_b32 v{t+1}, v{t+1}, v{t+2}',
               f'v_lshlrev_b32 v{t+1}, 4, v{t+1}', f'v_lshl_add_u32 v{V_PK}, v{t}, 10, v{t+1}',
               f's_sub_u32 s{sV}, 183, s2', f's_and_b32 s{sV}, s{sV}, 0x40000000', f'v_or_b32 v{V_PK}, s{sV}, v{V_PK}', f'v_xor_b32 v{V_PK+1}, 128, v{V_PK}',
               f'v_lshrrev_b32 v{t}, 2, v0', f'v_and_b32 v{t+1}, 7, v{t}', f'v_lshlrev_b32 v{t}, 8, v{t}', f'v_lshl_add_u32 v{t}, v{t+1}, 5, v{t}',
               f'v_and_b32 v{t+1}, 3, v0', f'v_lshlrev_b32 v{t+1}, 4, v{t+1}', f'v_xor_b32 v{t}, v{t+1}, v{t}', f'v_lshl_add_u32 v{V_PBASE}, s3, 13, v{t}'], 1030, 1250)
    t = V_T + 4
    chain(sc, [f's_sub_u32 s{sU}, 27, s{sH}', f's_and_b32 s{sU}, s{sU}, 0x40000000', f'v_or_b32 v28, s{sU}, v{V_L16}'], 1100)
    chain(sc, [f's_lshr_b32 s{sKQ}, s{sH}, 3', f's_bfe_u32 s{sU}, s{sH}, 0x10002', f's_lshl_b32 s{sU}, s{sU}, 3', f's_add_u32 s{sU}, s{sU}, s{sJ}',
               f's_lshl_b32 s{sU}, s{sU}, 2', f's_and_b32 s{sV}, s{sH}, 3', f's_add_u32 s{sU}, s{sU}, s{sV}', f's_lshl_b32 s{sU}, s{sU}, 2', f's_add_u32 s{sU}, s{sU}, s3',
               f's_mul_i32 s{sXS}, s{sU}, {4 * 6144}', f's_add_u32 s{sXS}, s{sXS}, {WS_X:#x}', f's_mul_i32 s{sU}, s{sKQ}, 6144', f's_add_u32 s{sXI}, s{sU}, s{sXS}',
               f's_lshl_b32 s{sM0O}, s3, 13'], barg(s2bar) + 20, 1780)
    g = poll('S2', 7 * 256 - 100, 7 * 256 - 4, [f's_lshl_b32 s{sFX}, s{sH}, 7', f's_add_u32 s{sFX}, s{sFX}, {WS_FLG:#x}', 'v_mov_b32 v12, 0'], 12, R_WS, f's{sFX}', 8)
    assert g <= 7 * 256 + 8
    sc.s[barg(31) - 1].insert(0, 'WAITVM KV-2')
    for i, r in enumerate(k_reads(V_AV)):
        sc.put(2048 - 16 + i, r)
    gp = 5 * 256 + 6
    ne = 0
    for p in (4, 5):
        gp = max(gp, (p + 1) * 256 + 6)
        for rt in range(4):
            bg = rbase(p) + (rt * 2) * 8; bu = bg + 8
            last = 0
            for e in range(8):
                tm_ = V_T + ne % 8; ne += 1
                ops = [f'v_mul_f32 v{tm_}, v{bg+e}, v{bg+e}', f'v_fmaak_f32 v{tm_}, v{tm_}, v{V_C2}, 0xc0135761', f'v_mul_f32 v{tm_}, v{tm_}, v{bg+e}',
                       f'v_exp_f32 v{tm_}, v{tm_}', f'v_add_f32 v{tm_}, 1.0, v{tm_}', f'v_rcp_f32 v{tm_}, v{tm_}',
                       f'v_mul_f32 v{tm_}, v{tm_}, v{bg+e}', f'v_mul_f32 v{bu+e}, v{tm_}, v{bu+e}']
                g = gp
                for o in ops: g = sc.place(o, g) + 1
                assert g - gp < 72
                last = max(last, g)
                gp += 9
            g = last
            for c in cvt_pairs(bu): g = sc.place(c, g)
            sreg = sHA if rt < 2 else sHB
            if p == 5 and rt % 2 == 0:
                sc.place(f's_add_u32 s{sreg}, s{sreg}, 4096', g - 8, g)
            g = sc.place(f'buffer_store_dwordx4 {V(bu,4)}, v28, {wsrd(R_WS)}, s{sreg} offen offset:{(rt % 2) * 1024}{ST} ; @HS', g + 1, vmspace=1)
            assert g < (p + 2) * 256 + 220, g
    g = 7 * 256 + 34
    for f in range(8):
        b = rbase(6) + 8 * f
        for c in cvt_pairs(b): g = sc.place(c, g)
        g += 1
        for i in range(4): g = sc.place(f'v_accvgpr_write_b32 a{A_QL + 4 * f + i}, v{b + i}', g)
        g += 1
        for i in range(8): sc.place(f'v_mov_b32 v{b + i}, 0', g)
    g = 7 * 256 + 130
    g = sc.place(f'v_mov_b32 v29, 0x3f803f80', g) + 1
    for i in range(4): g = sc.place(f'v_accvgpr_write_b32 a{A_ONE + i}, v29', g)
    for i in range(16): g = sc.place(f'v_accvgpr_write_b32 a{A_L + i}, 0', g)
    for i in range(4): g = sc.place(f'v_accvgpr_write_b32 a{116 + i}, -1', g)
    sc.place(f'v_add_u32 v{V_AV}, {RING + 2 * 16384}, v{V_L16}', 7 * 256 + 130, 2024)
    sMT, sNT = sT1, sT2
    chain(sc, [f's_bfe_u32 s{sMT}, s{sH}, 0x10002', f's_lshl_b32 s{sMT}, s{sMT}, 3', f's_add_u32 s{sMT}, s{sMT}, s{sJ}',
               f's_and_b32 s{sNT}, s{sH}, 3',
               f's_lshr_b32 s{sV}, s3, 1', f's_sub_u32 s{sU}, s{sNT}, s{sMT}', f's_mul_i32 s{sU}, s{sU}, s{sV}', f's_add_u32 s{sU}, s{sU}, s{sMT}',
               f's_lshl_b32 s{sU}, s{sU}, 1', f's_and_b32 s{sK}, s3, 1', f's_add_u32 s{sU}, s{sU}, s{sK}', f's_mul_i32 s{sU}, s{sU}, {184 * 4096}',
               f's_mul_i32 s{sDH}, s{sV}, {WS_W3 - WS_A3:#x}', f's_add_u32 s{sU}, s{sU}, s{sDH}', f's_add_u32 s{sU}, s{sU}, {WS_A3 - 4096:#x}',
               f's_mul_i32 s{sDH}, s{sKQ}, {14 * 4096}', f's_add_u32 s{sDH}, s{sDH}, s{sU}',
               f's_lshl_b32 s{sDC}, s{sKQ}, 17', f's_add_u32 s{sDC}, s{sDC}, s{sU}', f's_add_u32 s{sDC}, s{sDC}, {56 * 4096}',
               f's_lshl_b32 s{sO}, s{sMT}, 1', f's_add_u32 s{sO}, s{sO}, s{sV}', f's_lshl_b32 s{sO}, s{sO}, 2', f's_add_u32 s{sO}, s{sO}, s{sKQ}', f's_lshl_b32 s{sO}, s{sO}, 14',
               f's_lshl_b32 s{sU}, s{sNT}, 1', f's_add_u32 s{sU}, s{sU}, s{sK}', f's_lshl_b32 s{sU}, s{sU}, 7', f's_add_u32 s{sO}, s{sO}, s{sU}',
               f's_sub_u32 s{sV}, 15, s{sMT}', f's_min_u32 s{sU}, s{sMT}, s{sV}', f's_lshl_b32 s{sU}, s{sU}, 2', f's_add_u32 s{sU}, s{sU}, s{sKQ}',
               f's_lshl_b32 s{sU}, s{sU}, 7', f's_add_u32 s{sF4C}, s{sU}, {WS_FLG + 64 * 128:#x}',
               f's_mov_b32 s{sNINF}, {NINF:#x}'], 7 * 256 + 10)
    for p in range(len(PGAPS)): sc.v[PGAPS[p]] += stamp(3 + p, V_PROF if PGAPS[p] > gmove else 39, True)
    L += sc.emit()
    ov = sc.overflow()
    L += ['s_barrier', f'v_add_u32 v{V_LB}, {RING}, v{V_L16}', f'v_add_u32 v{V_AK}, {RING + 3 * 16384}, v{V_L16}', f's_mov_b32 s{sTHR}, 0x53800000']
    L += [f'v_mov_b32 v{V_NB + i}, 0' for i in range(16)]
    def mask_ops(X):
        o = [f'v_mov_b32 v{ntile(X,1,0) + i}, s{sNINF}' for i in range(4)]
        for kq in range(2):
            o += [f'v_cndmask_b32 v{ntile(X,kq,kq) + i}, v{ntile(X,kq,kq) + i}, v{ntile(X,1,0)}, s[{sMASK+2*i}:{sMASK+2*i+1}]' for i in range(4)]
        return o
    L += [f's_cmp_lg_u32 s{sQB}, 0', 's_cbranch_scc1 K_NM0'] + mask_ops('B') + ['K_NM0:']
    for f in range(4): L += cvt_pairs(192 + 8 * f)
    L += ['s_nop 0']
    ps = Sched(qk_mfmas('A', 0, True) + qk_mfmas('B', 1))
    g = 0
    for f in range(4, 8):
        for c in cvt_pairs(192 + 8 * f): g = ps.place(c, g)
    g = 0
    for x in kv_items(4): g = ps.place(x, g) + 1
    for i, r in enumerate(k_reads(V_AK)[:4]): ps.place(r, 24 + i)
    zero = [f'v_mov_b32 v{V_OB + i}, 0' for i in range(64)]
    while zero and ps.place(zero[0], 0, force=False) is not None: zero.pop(0)
    L += ps.emit() + k_reads(V_AK)[4:] + zero
    def rowmax(X, buf):
        o = []
        m = [9, 10]; tm = [11, 12]
        for qs in range(2):
            a, b = stile(buf, 0, qs), stile(buf, 1, qs)
            o += [f'v_max3_f32 v{m[qs]}, v{a}, v{a+1}, v{a+2}', f'v_max3_f32 v{tm[qs]}, v{a+3}, v{b}, v{b+1}',
                  f'v_max3_f32 v{m[qs]}, v{m[qs]}, v{b+2}, v{b+3}', f'v_max_f32 v{m[qs]}, v{m[qs]}, v{tm[qs]}']
        for sw in ('v_permlane16_swap_b32', 'v_permlane32_swap_b32'):
            o += [f'v_mov_b32 v{tm[qs]}, v{m[qs]}' for qs in range(2)] + ['s_nop 0']
            o += [f'{sw} v{m[qs]}, v{tm[qs]}' for qs in range(2)]
            o += [f'v_max_f32 v{m[qs]}, v{m[qs]}, v{tm[qs]}' for qs in range(2)]
        for qs in range(2):
            for kvt in range(2):
                o += [f'v_sub_f32 v{stile(buf,kvt,qs)+i}, v{stile(buf,kvt,qs)+i}, v{m[qs]}' for i in range(4)]
                o += [f'v_sub_f32 v{ntile(X,kvt,qs)+i}, 0, v{m[qs]}' for i in range(4)]
        return o
    idx = L.index('s_barrier', len(L) - 200)
    L.insert(idx, 'WAITVM HS')
    L += [f's_lshl_b32 s{sFX}, s{sJ}, 7', f's_add_u32 s{sFX}, s{sFX}, {WS_FLG + 32 * 128:#x}', f'v_mov_b32 v{V_POLL}, 1',
          f'buffer_atomic_add v{V_POLL}, v{V_SIG}, {wsrd(R_WS)}, s{sFX} offen']
    L += [f'v_xor_b32 v{40 + c}, {(c // 2) * 64 + (c % 2) * 8}, v{V_PBASE}' for c in range(8)]
    L += rowmax('A', 0)
    ex, cv = sm_ops(0)
    for c in range(8):
        L += ex[2 * c:2 * c + 2]
        if c: L.append(cv[c - 1])
    L += ['WAITVM PK']
    for c in range(8):
        L += [f'ds_read_b64_tr_b16 {A(128 + 4 * c, 2)}, v{40 + c}', f'ds_read_b64_tr_b16 {A(130 + 4 * c, 2)}, v{40 + c} offset:4096']
    L += rowmax('B', 1) + [cv[7]]
    L += [f's_sub_u32 s{sU}, 183, s2', f's_and_b32 s{sU}, s{sU}, 0x40000000', f'v_or_b32 v12, s{sU}, v{V_L16}',
          f's_add_u32 s{sV}, s{sXI}, 4096', f's_add_u32 s{sU}, s{sPD}, {184 * 4096}']
    sent = [f'buffer_store_dwordx4 a[116:119], v{V_L16}, {wsrd(R_WS)}, s{sXI if i < 4 else sV} offen offset:{(i % 4) * 1024}{ST}' for i in range(6)]
    pkst = [f'buffer_store_dwordx4 {A(128 + 4 * c, 4)}, v12, {wsrd(R_WS)}, s{sPD if c < 4 else sU} offen offset:{(c % 4) * 1024}{ST}' for c in range(8)]
    L += [f's_mov_b32 s{sSLOT}, {5 * 16384}', f's_mov_b32 s{sM0R}, {2 * 16384}', f's_add_u32 s{sSRC}, s{sSRC}, {5 * 16384}',
          f'v_add_u32 v{V_AV}, {5 * 16384}, v{V_LB}', f'v_add_u32 v{V_AK}, {4 * 16384}, v{V_LB}',
          f's_mov_b32 s{sCNT}, s{sQB}', 'WAITVM KV0', 's_waitcnt lgkmcnt(0)']
    L = autowait(L)
    def step(qk, pv, buf, first, last, rdK, mask=None, loop=None, prevK=True, extra=(), vmw=16):
        s_ = Sched(qk_mfmas(qk, 1 - buf) + pv_mfmas(pv, 1 - buf))
        ex, cv = sm_ops(buf)
        for i, e in enumerate(ex): s_.put(2 * i, e)
        if first:
            s_.put(0, 's_barrier')
            for i, r in enumerate(v_reads()): s_.put(1 + 2 * i, r)
            s_.put(1, f's_add_u32 m0, s{sM0B}, s{sM0R}')
            s_.put(2, f's_add_u32 s{sM0R}, s{sM0R}, 16384'); s_.put(3, f's_and_b32 s{sM0R}, s{sM0R}, 0x1ffff')
            for k in range(4):
                s_.put(5 + 8 * k, f'buffer_load_dwordx4 v{V_L16}, {wsrd(R_KV)}, s{sSRC} offen offset:{k*1024}{LD} lds')
            s_.put(30, f's_add_u32 s{sSRC}, s{sSRC}, 16384')
            s_.put(17, 's_waitcnt lgkmcnt(4)')
            s_.put(25, f's_waitcnt lgkmcnt({4 if rdK else 0})')
        if prevK: s_.put(7, f's_waitcnt lgkmcnt({3 if first else 0})')
        if rdK:
            for i, r in enumerate(k_reads(rdK)): s_.put(17 + 2 * i, r)
        for c, x in enumerate(cv): s_.put(4 * c + 3, x)
        w = []
        if last:
            s_.put(27, f's_add_u32 s{sSLOT}, s{sSLOT}, 16384'); s_.put(28, f's_and_b32 s{sSLOT}, s{sSLOT}, 0x1ffff')
            s_.put(32, f'v_mov_b32 v{V_AK}, v{V_AV}'); s_.put(32, f'v_add_u32 v{V_AV}, s{sSLOT}, v{V_LB}')
            w.append(f'vmcnt({vmw})')
        if rdK: w.append('lgkmcnt(4)')
        if w: s_.put(33, 's_waitcnt ' + ' '.join(w))
        for g, x in extra: s_.put(g, x)
        if mask:
            s_.put(19, f's_cmp_eq_u32 s{sCNT}, 1'); s_.put(20, f's_cbranch_scc1 {mask}'); s_.s[20].append(f'{mask}_RET:')
        if loop:
            s_.put(31, f's_sub_u32 s{sCNT}, s{sCNT}, 1'); s_.put(32, f's_cmp_lg_u32 s{sCNT}, 0')
            s_.s[33].append(f's_cbranch_scc1 {loop}')
        return s_.emit()
    def epilogue(X, sC, extra=()):
        o = []
        extra = list(extra)
        r = [9, 10]
        for qs in range(2): o.append(f'v_accvgpr_read_b32 v{r[qs]}, a{lacc(X, qs)}')
        o += [f'v_add_f32 v11, v{r[0]}, v{r[1]}', f'v_cmp_ngt_f32 vcc, s{sTHR}, v11']
        o += [f'v_rcp_f32 v{r[qs]}, v{r[qs]}' for qs in range(2)]
        o += [f's_or_b64 s[{sFLAG}:{sFLAG+1}], s[{sFLAG}:{sFLAG+1}], vcc', 's_nop 0']
        for p in range(4):
            o.append(f's_add_u32 s{sT}, s{sC}, {p * 4096}')
            for qs in range(2):
                b = otile(X, 2 * p, qs)
                o += [f'v_mul_f32 v{b+i}, v{b+i}, v{r[qs]}' for i in range(8)] + cvt_pairs(b)
                o.append(f'buffer_store_dwordx4 {V(b,4)}, v{V_L16}, {wsrd(R_WS)}, s{sT} offen offset:{qs * 1024}{ST} ; @CS')
        return o
    L += stamp(11)
    L += [f's_cmp_eq_u32 s{sCNT}, 0', 's_cbranch_scc1 K_TB', f'.p2align {ALN}', 'K_DUAL:']
    L += step('A', 'A', 1, True, False, None, mask='K_MB')
    L += step('B', 'B', 0, False, True, V_AK, loop='K_DUAL', prevK=False)
    L += ['K_TB:']
    L += step('A', 'A', 1, True, False, V_AK, extra=list(zip((1, 9, 17, 25, 32, 33), pkst[:6])))
    L += step('A', 'B', 0, False, True, V_AV, extra=list(zip((1, 5, 9, 13, 17, 21, 25, 29), pkst[6:] + sent)), vmw=30)
    L += [f's_lshl_b32 s{sU}, s{sJ}, 2', f's_sub_u32 s{sCNT}, 29, s{sU}']
    L += stamp(12)
    L += epilogue('B', sCB)
    L += ['v_cmp_eq_u32 vcc, 0, v0', f'v_mov_b32 v12, {BIGOFF:#x}', f's_add_u32 s{sFX}, s{sFX}, {8 * 128}', 'v_cndmask_b32 v12, v12, v0, vcc', 's_waitcnt vmcnt(14)',
          f'buffer_atomic_add v{V_POLL}, v12, {wsrd(R_WS)}, s{sFX} offen']
    V_DV, V_RA, V_EXP = 16, 20, 24
    L += ['v_min_u32 v12, 13, v0', f'v_lshrrev_b32 v{V_EXP}, 3, v12', f'v_mul_u32_u24 v{V_EXP}, 96, v{V_EXP}', f'v_add_u32 v{V_EXP}, 32, v{V_EXP}', 'v_lshlrev_b32 v12, 7, v12',
          f's_mov_b32 s{sFX}, {WS_FLG + 32 * 128:#x}',
          's_cmp_lt_u32 s3, 2', f's_cselect_b32 s{sV}, s{sKQ}, 0']
    for i in range(4):
        L += [f's_add_u32 s{sU}, s{sV}, {i}', f's_and_b32 s{sU}, s{sU}, 3', f's_add_u32 s{sU}, s{sU}, {4 - i}', f'v_lshl_add_u32 v{V_DV+i}, s{sU}, 10, v{V_L16}']
    L += [f's_lshr_b32 s{sU}, s3, 1', f'v_lshl_add_u32 v{V_RA}, s{sU}, 13, v{V_L16}', f's_and_b32 s{sU}, s3, 1', f's_add_u32 s{sU}, s{sU}, 2',
          f'v_lshl_add_u32 v{V_RA+1}, s{sU}, 13, v{V_L16}', f'v_add_u32 v{V_RA+2}, 0x10000, v{V_RA}', f'v_add_u32 v{V_RA+3}, 0x10000, v{V_RA+1}']
    L += [f'.p2align {ALN}', 'K_SINGLE:']
    L += step('A', 'A', 1, True, True, V_AV, mask='K_MA')
    L += step('A', 'A', 0, True, True, V_AV, loop='K_SINGLE')
    OOL += ['K_MB:'] + mask_ops('B') + ['s_branch K_MB_RET', 'K_MA:'] + mask_ops('A')
    OOL += [f'buffer_load_dword v{V_POLL}, v12, {wsrd(R_WS)}, s{sFX} offen sc1', 's_branch K_MA_RET']
    NSS = 23
    V_AC3, V_XR, V_OA_ = 64, 24, 9
    def fr(ss, op, k, i): return A(128 + 64 * (ss % 2) + (op * 8 + k * 4 + i) * 4, 4)
    def d_items(ss):
        it = []
        for k in range(2):
            base, ks = (sDH, 2 * ss + k) if ss < 7 else (sDC, 2 * (ss - 7) + k)
            it += [f's_add_u32 m0, s{sM0O}, {(ss % 4) * 32768 + k * 4096}', f's_add_u32 s{sT2}, s{base}, {ks * 4096}']
            it += [f'buffer_load_dwordx4 v{V_DV+i}, {wsrd(R_WS)}, s{sT2} offen offset:{i*1024}{LD} lds ; @D{ss}' for i in range(4)]
        return it
    def f_reads(ss):
        o = []
        for op, k, i in [(1, 0, 0), (1, 1, 0)] + [(0, k, i) for i in range(4) for k in range(2)] + [(1, k, i) for i in range(1, 4) for k in range(2)]:
            o.append(f'ds_read_b128 {fr(ss, op, k, i)}, v{V_RA + op + 2 * ((ss % 4) // 2)} offset:{(ss % 2) * 32768 + k * 4096 + i * 1024}')
        return o
    L += stamp(13)
    L += ['s_barrier'] + v_reads()
    ex, cv = sm_ops(1)
    L += ex[0:4] + cv[0:2]
    L += ['s_waitcnt vmcnt(6)', f'v_cmp_gt_u32 vcc, v{V_EXP}, v{V_POLL}', 's_cbranch_vccnz S3', 'S3_RET:']
    poll_ool('S3', 12, R_WS, f's{sFX}', f'v{V_EXP}')
    T = []
    f1 = Sched(pv_mfmas('A', 0))
    f1.put(1, 's_waitcnt lgkmcnt(4)'); f1.put(9, 's_waitcnt lgkmcnt(0)')
    g = 0
    for c in range(2, 8):
        f1.put(g, ex[2 * c]); f1.put(g + 1, ex[2 * c + 1]); f1.put(g + 2, cv[c]); g += 3
    f1.put(12, f's_add_u32 s{sSLOT}, s{sSLOT}, 16384'); f1.put(13, f's_and_b32 s{sSLOT}, s{sSLOT}, 0x1ffff')
    f1.put(14, f'v_add_u32 v{V_AV}, s{sSLOT}, v{V_LB}')
    f1.put(16, 's_barrier')
    d0 = d_items(0)
    T += d0[:2]
    for i in range(4): f1.put(2 + 3 * i, d0[2 + i])
    T += f1.emit() + v_reads(A_K) + d0[6:8]
    f2 = Sched(pv_mfmas('A', 1, A_K))
    for i in range(4): f2.put(3 * i, d0[8 + i])
    T += f2.emit()
    T += [f's_sub_u32 s{sCNT}, 3, s3', 'K_XB:', f's_cmp_eq_u32 s{sCNT}, 0', 's_cbranch_scc1 K_XBD',
          's_barrier', f's_sub_u32 s{sCNT}, s{sCNT}, 1', 's_branch K_XB', 'K_XBD:']
    T += ['s_waitcnt vmcnt(0) lgkmcnt(0)', 's_barrier'] + stamp(14) + f_reads(0)
    ep = epilogue('A', sCA)
    if EPD == 0: T += d_items(1) + ep + d_items(2)
    elif EPD == 1: T += ep + d_items(1) + d_items(2)
    else:
        dd = d_items(1)
        for x in ep:
            T.append(x)
            if x.startswith('buffer_store'):
                while kind_of(dd[0]) == 's': T.append(dd.pop(0))
                T.append(dd.pop(0))
        T += d_items(2)
    T += stamp(15)
    mf = []
    for ss in range(NSS):
        order = [(ct, rt) for ct in range(4) for rt in range(4)] if ss < NSS - 1 else [(ct, rt) for rt in (1, 2, 3, 0) for ct in range(4)]
        for ct, rt in order:
            if True:
                acc = V(V_AC3 + (rt * 4 + ct) * 4, 4)
                for k in range(2):
                    mf.append(mfma(acc, fr(ss, 1, k, ct), fr(ss, 0, k, rt), '0' if (ss == 0 and k == 0) else acc))
    sc = Sched(mf)
    issue = {ss: [ss + 3] for ss in range(NSS - 3)}
    for ss in range(4, S4P): issue[ss] = []
    nxt = 7
    for ss in range(S4P, NSS):
        issue[ss] = [x for x in (nxt, nxt + 1) if x <= ss + 3 and x < NSS]
        nxt += len(issue[ss])
    for ss in range(NSS):
        g0 = 32 * ss
        late = ss + 1 < NSS and ss + 1 in issue.get(ss, [])
        gb = g0 + (22 if late else 0)
        if ss + 1 < NSS:
            sc.put(gb, f'WAITVM D{ss+1}'); sc.s[gb].append('s_waitcnt lgkmcnt(0)'); sc.put(gb + 1, 's_barrier')
            for i, r in enumerate(f_reads(ss + 1)):
                sc.put(gb + 1 + (i // 2 if late else (3 * i) // 2), r)
        g = g0 + 2
        if ss == S4P:
            sc.put(g0 + 2, f'v_cmp_gt_u32 vcc, 8, v{V_POLL}'); sc.put(g0 + 3, 's_cbranch_vccnz S4'); sc.s[g0 + 3].append('S4_RET:')
            poll_ool('S4', 12, R_WS, f's{sF4C}', 8)
            g = g0 + 4
        it = sum((d_items(x) for x in issue.get(ss, [])), [])
        nm_ = sum(1 for x in it if kind_of(x) == 'm')
        k = 0
        for x in it:
            gg = g + (k * (g0 + 31 - g)) // max(nm_, 8)
            if kind_of(x) == 'm':
                sc.m[gg].append(x); k += 1
            else: sc.m[gg].append(x)
    sc.s[32 * S4S].insert(0, 'WAITVM CS')
    chain(sc, [f's_lshl_b32 s{sV}, s{sJ}, 2', f's_add_u32 s{sU}, s{sKQ}, s{sV}', f's_lshl_b32 s{sU}, s{sU}, 7',
               f's_add_u32 s{sFX}, s{sU}, {WS_FLG + 64 * 128:#x}', f'v_mov_b32 v{V_POLL}, 1', 'v_mov_b32 v12, 0'], 4)
    sc.m[32 * S4S + 1].insert(0, f'buffer_atomic_add v{V_POLL}, v{V_SIG}, {wsrd(R_WS)}, s{sFX} offen')
    sc.m[32 * S4P - 24].append(f'buffer_load_dword v{V_POLL}, v12, {wsrd(R_WS)}, s{sF4C} offen sc1')
    chain(sc, ['v_and_b32 v10, 15, v0', 'v_lshrrev_b32 v11, 4, v0', 'v_lshlrev_b32 v11, 4, v11', f'v_lshl_add_u32 v{V_OA_}, v10, 10, v11',
               f'buffer_load_dwordx4 {V(V_XR,4)}, v{V_OA_}, {wsrd(R_X)}, s{sO} offen', f'buffer_load_dwordx4 {V(V_XR+4,4)}, v{V_OA_}, {wsrd(R_X)}, s{sO} offen offset:64',
               ], 32 * 19 + 2)
    chain(sc, ['v_and_b32 v12, 3, v0', 'v_lshlrev_b32 v12, 7, v12', f's_lshl_b32 s{sFX}, s{sJ}, 9', f's_add_u32 s{sFX}, s{sFX}, {WS_FLG + 64 * 128:#x}'], 32 * 16)
    sc.m[32 * 17].append(f'buffer_load_dword v{V_POLL}, v12, {wsrd(R_WS)}, s{sFX} offen sc1')
    g = sc.place(f'v_cmp_gt_u32 vcc, 8, v{V_POLL}', 32 * 20 + 4)
    g = sc.place('s_cbranch_vccnz S7', g + 1); sc.s[g].append('S7_RET:')
    poll_ool('S7', 12, R_WS, f's{sFX}', 8)
    for r in range(1, 4):
        chain(sc, [f's_add_u32 s{sT+r-1}, s{sKQ}, {r}', f's_and_b32 s{sT+r-1}, s{sT+r-1}, 3', f's_mul_i32 s{sT+r-1}, s{sT+r-1}, 6144',
                   f's_add_u32 s{sT+r-1}, s{sT+r-1}, s{sXS}', f's_add_u32 s{sT+r-1}, s{sT+r-1}, {(r - 1) * 2048}'], 32 * 21 + 2)
    chain(sc, [f's_add_u32 s{sV}, s{sXI}, 4096', f's_mov_b32 s{sSPIN}, {SPIN}'], 32 * 22)
    X = 32
    chain(sc, sum(([f'v_lshlrev_b32 v{X+2*i}, 16, v{V_XR+i}', f'v_and_b32 v{X+2*i+1}, 0xffff0000, v{V_XR+i}'] for i in range(8)), []), 32 * 21)
    rest = []
    for n, (r, cp) in enumerate([(r, cp) for r in (1, 2, 3) for cp in range(2)]):
        b = V_AC3 + (r * 4 + cp * 2) * 4
        ops = cvt_pairs(b) + [f'buffer_store_dwordx4 {V(b, 4)}, v{V_L16}, {wsrd(R_WS)}, s{sT+r-1} offen offset:{cp * 1024}{ST}']
        g = 32 * 22 + 4 * n + 3 + (8 if n == 0 else 5)
        for i, o in enumerate(ops):
            gg = g + i // 2
            if gg < 32 * 23: (sc.m if i == 4 else sc.v)[gg].append(o)
            else: rest.append(o)
    for i, ss in enumerate((0, 3, 5, 7, 12, 17, 22)): sc.v[32 * ss + 31] += stamp(16 + i)
    T += sc.emit() + rest
    Y = 128
    xl = [f'buffer_load_dwordx4 {V(Y + 4 * i, 4)}, v{V_L16}, {wsrd(R_WS)}, s{sXI if i < 4 else sV} offen offset:{(i % 4) * 1024}{LD}' for i in range(6)]
    T += ['S5_RET:'] + xl + ['s_nop 0'] + [f'v_add_f32 v{X+i}, v{X+i}, v{V_AC3+i}' for i in range(16)]
    chk = [f'v_max3_u32 v10, v{Y}, v{Y+1}, v{Y+2}', f'v_max3_u32 v11, v{Y+3}, v{Y+4}, v{Y+5}']
    for i in range(6, 22, 4):
        chk += [f'v_max3_u32 v10, v10, v{Y+i}, v{Y+i+1}', f'v_max3_u32 v11, v11, v{Y+i+2}, v{Y+i+3}']
    chk += [f'v_max3_u32 v10, v10, v{Y+22}, v{Y+23}', 'v_max_u32 v10, v10, v11', 'v_cmp_eq_u32 vcc, -1, v10']
    T += ['K_XC:', 's_waitcnt vmcnt(0)'] + chk + ['s_cbranch_vccnz K_XR', 'K_XD:']
    OOL += ['K_XR:', f's_sub_u32 s{sSPIN}, s{sSPIN}, 1', 's_cbranch_scc1 K_XD'] + xl + ['s_branch K_XC']
    for r in range(3):
        for i in range(8):
            T += [f'v_lshlrev_b32 v{160+2*i}, 16, v{Y+8*r+i}', f'v_and_b32 v{161+2*i}, 0xffff0000, v{Y+8*r+i}']
        T += [f'v_add_f32 v{X+i}, v{X+i}, v{160+i}' for i in range(16)]
    for s_ in range(2):
        T += cvt_pairs(X + 8 * s_)
        T += [f'buffer_store_dwordx4 {V(X + 8 * s_, 4)}, v{V_OA_}, {wsrd(R_OUT)}, s{sO} offen offset:{64 * s_}']
    if PROF:
        T += stamp(23) + ['s_waitcnt vmcnt(0)'] + stamp(24) + [f's_add_u32 s{R_TMP}, s{R_WS}, {WS_PROF:#x}', f's_addc_u32 s{R_TMP+1}, s{R_WS+1}, 0', f's_mov_b32 s{R_TMP+2}, 0x40000',
             f's_lshl_b32 s{sU}, s2, 2', f's_add_u32 s{sU}, s{sU}, s3', f's_lshl_b32 s{sU}, s{sU}, 8', 'v_lshlrev_b32 v0, 2, v0',
             f'buffer_store_dword v{V_PROF}, v0, {wsrd(R_TMP)}, s{sU} offen']
    if DIAG is not None:
        T += stamp(23) + ['K_DG:', 's_memrealtime s[100:101]', 's_waitcnt lgkmcnt(0)', 's_sub_u32 s100, s100, s98', 's_cmp_lt_u32 s100, 12000', 's_cbranch_scc1 K_DG']
    L += autowait(T)
    L += ['K_END:', 's_endpgm'] + OOL + ['K_LAST:', 's_endpgm']
    return L, ov

def build(lines):
    hdr = open('cdna_kernels/' + NAME + '.s.ref').read().split('; Override launch')[0]
    out = hdr + f'; @launch grid=(256,1,1) block=(256,1,1) lds={LDS_SZ}\n'
    out += '.amdgcn_target "amdgcn-amd-amdhsa--gfx950"\n.text\n' + fmt(lines) + '\n'
    out += '.section .rodata,"a"\n.p2align 6\n' + kdesc(NAME + '_kernel') + '\n'
    return out

if __name__ == '__main__':
    path = sys.argv[1]
    for a in sys.argv[2:]:
        k, v = a.split('=')
        globals()[k] = eval(v)
    cb = 4096
    for it in range(2):
        lines, ov = gen_fused(cb)
        open(path, 'w').write(build(lines))
        sym = G.sizes(path)
        cb = (sym['K_LAST'] - sym[NAME + '_kernel'] - 128) & ~63
    print('overflow', ov, 'lines', len(lines), 'bytes', cb, file=sys.stderr)
```

```python
import re
from emu import Op

def V(b, n=1):
    return f'v{b}' if n == 1 else f'v[{b}:{b+n-1}]'
def A(b, n=1):
    return f'a{b}' if n == 1 else f'a[{b}:{b+n-1}]'
def S(b, n=1):
    return f's{b}' if n == 1 else f's[{b}:{b+n-1}]'

def mfma(d, a, b, c):
    return f'v_mfma_f32_16x16x32_bf16 {d}, {a}, {b}, {c}'

TRANS = ('v_exp_f32', 'v_rcp_f32', 'v_rsq_f32', 'v_log_f32', 'v_sqrt_f32')

def kind_of(t):
    m = t.split()[0]
    if m.startswith('v_mfma'): return 'M'
    if m in TRANS: return 't'
    if m.startswith('v_'): return 'v'
    if m.startswith('ds_') or m.startswith('buffer_'): return 'm'
    return 's'

class Sched:
    def __init__(self, mf):
        self.mf = list(mf)
        n = len(self.mf)
        self.s = [[] for _ in range(n)]; self.m = [[] for _ in range(n)]; self.v = [[] for _ in range(n)]
        self.used = [0] * n
        self.vm = [0] * n
        self.cap = [2] * n
    def extend(self, mf):
        n = len(mf)
        self.mf += list(mf)
        for a in (self.s, self.m, self.v): a += [[] for _ in range(n)]
        self.used += [0] * n; self.vm += [0] * n; self.cap += [2] * n
    def put(self, g, t):
        k = kind_of(t)
        if k == 's':
            if self.s[g]: self.used[g] += 1
            self.s[g].append(t)
        elif k == 'm':
            self.m[g].append(t); self.used[g] += 1
            if t.startswith('buffer_'): self.vm[g] += 1
        else:
            self.v[g].append(t); self.used[g] += 2 if k == 't' else 1
        return g
    def fits(self, g, t, vmspace=3):
        k = kind_of(t)
        if k == 's': return not self.s[g]
        if t.startswith('buffer_'):
            if any(self.vm[x] for x in range(max(0, g - vmspace), min(len(self.mf), g + vmspace + 1))): return False
        return self.used[g] + (2 if k == 't' else 1) <= self.cap[g]
    def place(self, t, lo, hi=None, vmspace=3, force=True):
        n = len(self.mf)
        hi = n - 1 if hi is None else min(hi, n - 1)
        for g in range(lo, hi + 1):
            if self.fits(g, t, vmspace): return self.put(g, t)
        if not force: return None
        raise Exception(f'cannot place {t} in [{lo},{hi}]')
    def emit(self):
        out = []
        for g, m in enumerate(self.mf):
            out.append(m)
            out += self.s[g] + self.m[g] + self.v[g]
        return out
    def overflow(self):
        return sum(max(0, u - 2) for u in self.used)

def split_ins(t):
    t = t.split(';')[0].strip()
    p = t.split(None, 1)
    if len(p) == 1: return p[0], [], {}
    if p[0] in ('s_waitcnt', 'WAITVM', 'buffer_inv', 'buffer_wbl2', 's_getreg_b32'): return p[0], [], {}
    parts = re.sub(r'(op_sel_hi|op_sel|neg_lo|neg_hi):\[[\d,]+\]', '', p[1]).split(',')
    last = parts[-1].split()
    parts[-1] = last[0]
    return p[0], [Op(x) for x in parts], set(last[1:])

def vregs(t):
    mn, ops, mods = split_ins(t)
    allr = set()
    for o in ops:
        if o.k == 'v': allr.update(o.regs())
    dst = set()
    if mn.startswith('ds_read') or (mn.startswith('buffer_load') and 'lds' not in mods):
        dst = set(ops[0].regs())
    return mn, allr, dst

def autowait(seq):
    out = []
    lg = []; vm = []
    nlg_pos = []
    nvm_pos = []
    def insert_wait(cls, op_pos):
        pos = len(out)
        for k in range(len(out) - 1, op_pos, -1):
            t = out[k]
            if t.startswith('v_mfma'):
                pos = k + 1; break
            if t.endswith(':') or t.startswith('s_barrier') or t.startswith('s_cbranch') or t.startswith('s_branch'):
                break
        lst = nlg_pos if cls == 'lgkmcnt' else nvm_pos
        n = sum(1 for p in lst if op_pos < p < pos)
        n = min(n, 15 if cls == 'lgkmcnt' else 63)
        add_wait(pos, cls, n)
    def add_wait(pos, cls, n):
        nonlocal lg, vm, nlg_pos, nvm_pos
        tgt = None
        if pos < len(out) and out[pos].startswith('s_waitcnt'): tgt = pos
        elif pos > 0 and out[pos - 1].startswith('s_waitcnt'): tgt = pos - 1
        if tgt is not None:
            d = dict((k, int(v)) for k, v in re.findall(r'(\w+)\((\d+)\)', out[tgt]))
            d[cls] = min(d.get(cls, 99), n)
            out[tgt] = 's_waitcnt ' + ' '.join(f'{k}({v})' for k, v in sorted(d.items(), reverse=True))
        else:
            out.insert(pos, f's_waitcnt {cls}({n})')
            for q in (lg, vm):
                for o in q:
                    if o['idx'] >= pos: o['idx'] += 1
            nlg_pos = [p + 1 if p >= pos else p for p in nlg_pos]
            nvm_pos = [p + 1 if p >= pos else p for p in nvm_pos]
        q = lg if cls == 'lgkmcnt' else vm
        before = [o for o in q if o['idx'] < pos]
        keep = before[len(before) - n:] if n else []
        q[:] = keep + [o for o in q if o['idx'] >= pos]
    for t in seq:
        if t.endswith(':') or t.startswith('.') or t.startswith(';'):
            out.append(t); continue
        if t.startswith('WAITVM'):
            tag = t.split()[1]
            c = [o for o in vm if o['tag'] == tag]
            if c:
                n = sum(1 for p in nvm_pos if p > c[-1]['idx'])
                add_wait(len(out), 'vmcnt', min(n, 63))
            continue
        if t.startswith('s_waitcnt'):
            d = dict((k, int(v)) for k, v in re.findall(r'(\w+)\((\d+)\)', t))
            for k, v in d.items(): add_wait(len(out), k, v)
            continue
        mn, allr, dst = vregs(t)
        for cls, q in (('lgkmcnt', lg), ('vmcnt', vm)):
            c = [o for o in q if o['dst'] & allr]
            if c: insert_wait(cls, c[-1]['idx'])
        if mn == 'TOUCH': continue
        if mn.startswith('ds_') and len(lg) >= 15: insert_wait('lgkmcnt', lg[3]['idx'])
        if mn.startswith('buffer_') and len(vm) >= 63: insert_wait('vmcnt', vm[0]['idx'])
        if mn.startswith('ds_'):
            lg.append(dict(idx=len(out), dst=dst, tag=None)); nlg_pos.append(len(out))
            nlg_pos = nlg_pos[-80:]
        elif mn.startswith('buffer_'):
            m = re.search(r'@(\S+)', t)
            vm.append(dict(idx=len(out), dst=dst, tag=m.group(1) if m else None)); nvm_pos.append(len(out))
            nvm_pos = nvm_pos[-200:]
        out.append(t)
    return out

def srd(d, lo, hi, size):
    return [f's_mov_b32 s{d}, s{lo}', f's_mov_b32 s{d+1}, s{hi}', f's_mov_b32 s{d+2}, {size:#x}', f's_mov_b32 s{d+3}, 0x20000']

def srd_off(d, lo, hi, off, size):
    return [f's_add_u32 s{d}, s{lo}, {off:#x}', f's_addc_u32 s{d+1}, s{hi}, 0', f's_mov_b32 s{d+2}, {size:#x}', f's_mov_b32 s{d+3}, 0x20000']

def fmt(lines):
    return '\n'.join(l if (l.endswith(':') or l.startswith('.')) else '    ' + l for l in lines)

def kdesc(name, vgpr=512, accum=256, sgpr=102):
    return f'''.amdhsa_kernel {name}
  .amdhsa_next_free_vgpr {vgpr}
  .amdhsa_next_free_sgpr {sgpr}
  .amdhsa_accum_offset {accum}
  .amdhsa_group_segment_fixed_size 0
  .amdhsa_kernarg_size 104
  .amdhsa_user_sgpr_count 2
  .amdhsa_user_sgpr_kernarg_segment_ptr 1
  .amdhsa_system_sgpr_workgroup_id_x 1
.end_amdhsa_kernel'''

def pk_bcast(op, d, a, m, neg=False):
    sel = 'op_sel:[0,1] op_sel_hi:[1,1]' if m % 2 else 'op_sel_hi:[1,0]'
    return f'v_pk_{op}_f32 {V(d,2)}, {V(a,2)}, {V(m & ~1, 2)} {sel}' + (' neg_lo:[0,1] neg_hi:[0,1]' if neg else '')
def pk_negb(d, m):
    sel = 'op_sel:[1,0] op_sel_hi:[1,0]' if m % 2 else 'op_sel_hi:[0,0]'
    return f'v_pk_mul_f32 {V(d,2)}, {V(m & ~1, 2)}, -1.0 {sel}'
def packify(ops):
    out = []; i = 0
    while i < len(ops):
        a = re.match(r'v_(sub|mul|add)_f32 v(\d+), (v\d+|0), v(\d+)$', ops[i])
        b = re.match(r'v_(sub|mul|add)_f32 v(\d+), (v\d+|0), v(\d+)$', ops[i + 1]) if a and i + 1 < len(ops) else None
        if b and a.group(1) == b.group(1) and int(a.group(2)) % 2 == 0 and int(b.group(2)) == int(a.group(2)) + 1:
            d, op = int(a.group(2)), a.group(1)
            ma, mb = int(a.group(4)), int(b.group(4))
            if a.group(3) == '0' and b.group(3) == '0' and op == 'sub' and ma == mb:
                out.append(pk_negb(d, ma)); i += 2; continue
            if a.group(3) == f'v{d}' and b.group(3) == f'v{d+1}':
                if ma == mb and ma not in (d, d + 1):
                    out.append(pk_bcast('mul' if op == 'mul' else 'add', d, d, ma, op == 'sub')); i += 2; continue
                if mb == ma + 1 and ma % 2 == 0 and op != 'sub':
                    out.append(f'v_pk_{op}_f32 {V(d,2)}, {V(d,2)}, {V(ma,2)}'); i += 2; continue
        out.append(ops[i]); i += 1
    return out
```

```python
import re, math
import numpy as np

U32 = np.uint32
LANES = np.arange(64, dtype=np.int64)

class EmuError(Exception):
    pass

def bf16_round(f):
    u = np.ascontiguousarray(f, dtype=np.float32).view(np.uint32)
    r = ((u.astype(np.uint64) + 0x7fff + ((u >> 16) & 1)) >> 16).astype(np.uint32) & 0xffff
    nan = np.isnan(f)
    if nan.any():
        r = np.where(nan, 0x7fc0, r)
    return r.astype(np.uint32)

def f2u(x):
    return int(np.float32(x).view(np.uint32))

class Mem:
    def __init__(self):
        self.bufs = []
        self.next = 0x100000000
        self.frozen = []
        self.log = []
        self.written = {}
        self.region = None
        self.sigof = None
    def add(self, arr, name):
        a = np.ascontiguousarray(arr).view(np.uint8).reshape(-1)
        base = self.next
        self.bufs.append((base, a, name))
        self.next += (len(a) + 0xfffff + 0x200000) & ~0xfffff
        return base
    def find(self, addr):
        for base, a, name in self.bufs:
            if base <= addr < base + len(a):
                return base, a, name
        raise EmuError('bad base address %x' % addr)

OPRE = re.compile(r'^(-?)(abs\()?([sva])(?:(\d+)|\[(\d+):(\d+)\])\)?$')

class Op:
    __slots__ = ('k', 'i', 'n', 'neg', 'abs', 'val')
    def __init__(self, t):
        self.neg = self.abs = False
        self.n = 1
        t = t.strip()
        if t.startswith('|') or t.startswith('-|'):
            raise EmuError('use abs()')
        m = OPRE.match(t)
        if m:
            self.neg = bool(m.group(1)); self.abs = bool(m.group(2))
            self.k = m.group(3)
            if m.group(4) is not None:
                self.i = int(m.group(4))
            else:
                self.i = int(m.group(5)); self.n = int(m.group(6)) - self.i + 1
            if self.k == 'a':
                self.k = 'v'; self.i += 256
        elif t in ('vcc', 'exec'):
            self.k = 's'; self.i = 106 if t == 'vcc' else 126; self.n = 2
        elif t in ('vcc_lo', 'vcc_hi', 'exec_lo', 'exec_hi'):
            self.k = 's'; self.i = (106 if t[0] == 'v' else 126) + (1 if t.endswith('hi') else 0)
        elif t == 'm0':
            self.k = 's'; self.i = 124
        elif t == 'off':
            self.k = 'off'
        else:
            self.k = 'c'
            try:
                self.val = int(t, 0) & 0xffffffffffffffff
            except ValueError:
                try:
                    self.val = f2u(float(t))
                except ValueError:
                    self.k = 'l'; self.val = t
    def regs(self):
        return range(self.i, self.i + self.n)

class Ins:
    __slots__ = ('mn', 'ops', 'mods', 'text', 'line', 'fn', 'cls', 'vr', 'vw', 'sr', 'sw', 'size')

TRANS = ('v_exp_f32', 'v_log_f32', 'v_rcp_f32', 'v_rsq_f32', 'v_sqrt_f32')

def parse(text):
    ins = []; labels = {}
    for ln, raw in enumerate(text.split('\n'), 1):
        s = raw.split(';')[0].strip()
        if not s or s.startswith('.'):
            if s.startswith('.section'):
                break
            continue
        if s.endswith(':'):
            labels[s[:-1]] = len(ins); continue
        p = s.split(None, 1)
        I = Ins(); I.mn = p[0]; I.text = s; I.line = ln
        for suf in ('_e32', '_e64', '_dpp'):
            if I.mn.endswith(suf): I.mn = I.mn[:-len(suf)]
        I.ops = []; I.mods = {}
        if len(p) > 1:
            if I.mn == 's_waitcnt':
                for k, v in re.findall(r'(\w+)\((\d+)\)', p[1]): I.mods[k] = int(v)
            elif I.mn in ('buffer_inv', 'buffer_wbl2', 's_getreg_b32'):
                if I.mn == 's_getreg_b32':
                    I.ops = [Op(p[1].split(',')[0])]
            else:
                for k, v in re.findall(r'(op_sel_hi|op_sel|neg_lo|neg_hi):\[([\d,]+)\]', p[1]): I.mods[k] = [int(x) for x in v.split(',')]
                parts = re.sub(r'(op_sel_hi|op_sel|neg_lo|neg_hi):\[[\d,]+\]', '', p[1]).split(',')
                last = parts[-1].split()
                parts[-1] = last[0]
                for m in last[1:]:
                    if ':' in m:
                        k, v = m.split(':', 1); I.mods[k] = int(v, 0)
                    else:
                        I.mods[m] = True
                I.ops = [Op(x) for x in parts]
        ins.append(I)
    return ins, labels

class WG:
    def __init__(self, prog, mem, kernarg, wgid, entry, nwaves=4, lds=163840, check=True):
        self.ins, self.labels = prog
        self.mem = mem; self.lds = np.full(lds, 0xcd, np.uint8); self.ldsz = lds
        ng = lds // 8
        self.w_wave = np.full(ng, -1, np.int32)
        self.w_ep = np.full(ng, -1, np.int64)
        self.r_ep = np.full((nwaves, ng), -1, np.int64)
        self.r_cnt = np.zeros((nwaves, ng), np.int32)
        self.epoch = 0
        self.check = check
        self.waves = [Wave(self, w, kernarg, wgid, self.labels[entry]) for w in range(nwaves)]
        self.rets = {v: k for k, v in self.labels.items() if k.startswith('S') and k.endswith('_RET')}
        self.stores = []; self.signalled = set()
    def run(self, maxsteps=10**8):
        while True:
            alive = [w for w in self.waves if not w.done]
            if not alive: break
            for w in alive:
                w.run(maxsteps)
            self.epoch += 1
        n = [w.nbar for w in self.waves]
        if len(set(n)) != 1:
            raise EmuError('barrier count mismatch %s' % n)

BIG = 1 << 60

class Wave:
    def __init__(self, wg, wid, kernarg, wgid, pc):
        self.wg = wg; self.wid = wid; self.pc = pc
        self.s = [0xdeadbeef] * 128
        self.s[0] = kernarg & 0xffffffff; self.s[1] = kernarg >> 32; self.s[2] = wgid
        self.s[126] = self.s[127] = 0xffffffff
        self.scc = 0
        self.v = np.full((512, 64), 0x7fc0dead, np.uint32)
        self.v[0] = LANES + 64 * wid
        self.vinit = np.zeros(512, bool); self.vinit[0] = True
        self.done = False; self.nbar = 0
        self.vmq = []; self.lgq = []
        self.vpend = np.zeros(512, np.int32); self.spend = set()
        self.t = 0
        NEG = -1000
        self.t_valu_w = np.full(512, NEG, np.int64); self.t_trans_w = np.full(512, NEG, np.int64)
        self.t_mfma_w = np.full(512, NEG, np.int64); self.mfma_d = np.full(512, -1, np.int64)
        self.t_mfma_c = np.full(512, NEG, np.int64); self.t_store_r = np.full(512, NEG, np.int64)
        self.t_s_valu = [NEG] * 128; self.t_m0 = NEG
        self.count = {}; self.nins = 0; self.passed = set()
    def err(self, I, msg):
        raise EmuError('wave %d line %d [%s]: %s' % (self.wid, I.line, I.text, msg))
    def exec_mask(self):
        e = self.s[126] | (self.s[127] << 32)
        if e == 0xffffffffffffffff: return None
        return ((e >> LANES.astype(object)) & 1).astype(bool)
    def sget(self, I, o):
        if o.k == 'c': return o.val & 0xffffffff
        if o.i in self.spend: self.err(I, 'pending sgpr s%d' % o.i)
        return self.s[o.i]
    def sget64(self, I, o):
        if o.k == 'c':
            return o.val
        if o.i in self.spend or o.i + 1 in self.spend: self.err(I, 'pending sgpr')
        return self.s[o.i] | (self.s[o.i + 1] << 32)
    def sset(self, I, o, v):
        if o.i in self.spend: self.err(I, 'write pending sgpr')
        self.s[o.i] = v & 0xffffffff
        if o.i == 124: self.t_m0 = self.t
    def sset64(self, I, o, v):
        self.s[o.i] = v & 0xffffffff; self.s[o.i + 1] = (v >> 32) & 0xffffffff
    def chk_vread(self, I, o, kind):
        sl = slice(o.i, o.i + o.n)
        if self.vpend[sl].any(): self.err(I, 'read of pending vgpr %d' % o.i)
        if not self.vinit[sl].all(): self.err(I, 'read of uninitialised vgpr %d' % o.i)
        t = self.t
        d = t - self.t_mfma_w[sl].max() - 1
        if kind == 'mfma_c':
            if d < 6 and not (self.mfma_d[sl] == o.i).all(): self.err(I, 'mfma D->C overlap hazard %d' % d)
        elif d < 8: self.err(I, 'mfma D->read hazard (%d states)' % d)
        d = t - self.t_valu_w[sl].max() - 1
        if kind in ('mfma_ab', 'mfma_c', 'perm') and d < 2: self.err(I, 'valu->%s hazard (%d)' % (kind, d))
        if kind == 'rl' and d < 1: self.err(I, 'valu->readlane hazard')
        if kind in ('valu', 'perm', 'rl', 'mem') and t - self.t_trans_w[sl].max() - 1 < 1: self.err(I, 'trans->use hazard')
    def chk_vwrite(self, I, o, kind):
        sl = slice(o.i, o.i + o.n)
        if self.vpend[sl].any(): self.err(I, 'write of pending vgpr %d' % o.i)
        t = self.t
        if kind != 'mfma':
            d = t - self.t_mfma_w[sl].max() - 1
            if d < 8: self.err(I, 'mfma D->write hazard (%d)' % d)
            if t - self.t_mfma_c[sl].max() - 1 < 3: self.err(I, 'mfma C WAR hazard')
        if t - self.t_store_r[sl].max() - 1 < 2: self.err(I, 'store data WAR hazard')
        self.vinit[sl] = True
        if kind in ('valu', 'trans'): self.t_valu_w[sl] = t
        if kind == 'trans': self.t_trans_w[sl] = t
    def vsrc(self, I, o, kind='valu'):
        if o.k == 'v':
            if o.i >= 256 and kind in ('valu', 'trans') and not I.mn.startswith('v_accvgpr'): self.err(I, 'agpr in valu')
            self.chk_vread(I, o, kind)
            return self.v[o.i]
        if o.k == 's' and self.t - self.t_s_valu[o.i] - 1 < 2: self.err(I, 'valu sgpr write -> valu read hazard')
        return np.full(64, self.sget(I, o), np.uint32)
    def fsrc(self, I, o, kind='valu'):
        x = self.vsrc(I, o, kind).view(np.float32)
        if o.abs: x = np.abs(x)
        if o.neg: x = -x
        return x
    def vdst(self, I, o, val, kind='valu'):
        self.chk_vwrite(I, o, kind)
        val = np.asarray(val)
        if val.dtype == np.float32: val = val.view(np.uint32)
        elif val.dtype != np.uint32: val = (val & 0xffffffff).astype(np.uint32)
        m = self.exec_mask()
        if m is None: self.v[o.i] = val
        else: self.v[o.i] = np.where(m, val, self.v[o.i])
    def set_mask(self, I, o, c):
        m = self.exec_mask()
        if m is not None: c = c & m
        val = 0
        for b in np.nonzero(c)[0]: val |= 1 << int(b)
        self.sset64(I, o, val)
        self.t_s_valu[o.i] = self.t_s_valu[o.i + 1] = self.t
    def get_mask(self, I, o):
        if self.t - max(self.t_s_valu[o.i], self.t_s_valu[o.i + 1]) - 1 < 2: self.err(I, 'valu mask write -> read hazard')
        e = self.sget64(I, o)
        return np.array([(e >> i) & 1 for i in range(64)], bool)
    def lds_gran(self, I, addr, nb, m):
        if m is not None: addr = addr[m]
        if len(addr) and (addr.max() + nb > self.wg.ldsz): self.err(I, 'LDS OOB %d' % addr.max())
        g = addr // 8
        if nb > 8: g = np.concatenate([g + k for k in range(nb // 8)])
        return np.unique(g)
    def lds_read_chk(self, I, g):
        wg = self.wg
        if (wg.w_wave[g] < 0).any(): self.err(I, 'LDS read of never written data at %d' % (g[wg.w_wave[g] < 0][0] * 8))
        bad = (wg.w_ep[g] == BIG) | ((wg.w_wave[g] != self.wid) & (wg.w_ep[g] >= wg.epoch))
        if bad.any(): self.err(I, 'LDS RAW hazard at %d (writer wave %d, ep %d, now %d)' % (g[bad][0] * 8, wg.w_wave[g][bad][0], wg.w_ep[g][bad][0], wg.epoch))
        wg.r_cnt[self.wid, g] += 1
        def done():
            wg.r_cnt[self.wid, g] -= 1; wg.r_ep[self.wid, g] = wg.epoch
        return done
    def lds_write_chk(self, I, g, dma):
        wg = self.wg
        for y in range(len(wg.waves)):
            if y == self.wid and not dma: continue
            if wg.r_cnt[y, g].any(): self.err(I, 'LDS WAR hazard: read in flight by wave %d at %d' % (y, g[wg.r_cnt[y, g] > 0][0] * 8))
            if y != self.wid and (wg.r_ep[y, g] >= wg.epoch).any(): self.err(I, 'LDS WAR hazard vs wave %d at %d' % (y, g[wg.r_ep[y, g] >= wg.epoch][0] * 8))
        bad = (wg.w_ep[g] == BIG) | ((wg.w_wave[g] != self.wid) & (wg.w_wave[g] >= 0) & (wg.w_ep[g] >= wg.epoch))
        if bad.any(): self.err(I, 'LDS WAW hazard at %d' % (g[bad][0] * 8))
        wg.w_wave[g] = self.wid
        if dma:
            wg.w_ep[g] = BIG
        else:
            wg.w_ep[g] = BIG - 1
        def done():
            wg.w_ep[g] = wg.epoch
        return done
    def bank_conf(self, I, addr, kind):
        if kind == 'b128':
            groups = [[0,1,2,3,12,13,14,15,20,21,22,23,24,25,26,27],[4,5,6,7,8,9,10,11,16,17,18,19,28,29,30,31]]
            groups += [[x + 32 for x in g] for g in groups]; nd = 4
        else:
            groups = [list(range(32)), list(range(32, 64))]; nd = 2
        ex = 0
        for g in groups:
            a = np.unique(addr[g] // 4)
            b = np.concatenate([(a + k) % 64 for k in range(nd)])
            ex += np.bincount(b).max() - 1
        if ex:
            k = 'bankconf:' + str(I.line)
            self.count[k] = self.count.get(k, 0) + ex
    def baddr(self, I, vo, srd, so):
        for r in list(srd.regs()) + ([so.i] if so.k == 's' else []):
            if self.t - self.t_s_valu[r] - 1 < 5: self.err(I, 'valu sgpr -> vmem hazard')
            if r in self.spend: self.err(I, 'pending srd')
        base = self.s[srd.i] | ((self.s[srd.i + 1] & 0xffff) << 32)
        if self.s[srd.i + 3] != 0x20000: self.err(I, 'bad srd word3')
        off = np.full(64, I.mods.get('offset', 0) + self.sget(I, so), np.int64)
        if vo.k == 'v':
            self.chk_vread(I, vo, 'mem')
            off = off + self.v[vo.i].astype(np.int64)
        return base, off, self.s[srd.i + 2]
    def gather(self, I, base, off, nrec, nb):
        if base == 0x7777000000: return np.zeros((64, nb // 4), np.uint32)
        b0, a, name = self.wg.mem.find(base)
        if base - b0 + nrec > len(a): self.err(I, 'SRD range exceeds buffer %s' % name)
        ok = off + nb <= nrec
        if self.wg.mem.region and ok.any():
            r = self.wg.mem.region(name, base - b0 + int(off[ok].min()))
            if r == 'S5': self.wg.mem.log.append(('xload', name, base - b0 + int(off[ok].min()), 0, 0, self.wid, I.line))
            if r == 'S6': r = 'S3'
            if r and r not in self.passed: self.err(I, 'load before sync %s' % r)
            if r and 'sc1' not in I.mods: self.err(I, 'hand-off load without sc1')
        idx = (base - b0 + np.where(ok, off, 0))[:, None] + np.arange(nb)[None, :]
        d = a[idx]
        if not ok.all():
            d[~ok] = 0
            self.count['oob_load'] = self.count.get('oob_load', 0) + 1
        return np.ascontiguousarray(d).view(np.uint32)
    def retire(self, q, n):
        while len(q) > n:
            for f in q.pop(0): f()
    def pend(self, o):
        sl = slice(o.i, o.i + o.n)
        self.vpend[sl] += 1
        def done(): self.vpend[sl] -= 1
        return done
    def run(self, maxsteps):
        ins = self.wg.ins
        while True:
            if self.pc in self.wg.rets: self.passed.add(self.wg.rets[self.pc][:-4])
            I = ins[self.pc]; self.pc += 1
            self.nins += 1
            if self.nins > maxsteps: self.err(I, 'too many steps')
            r = self.step(I)
            self.t += 1
            if r: return
    def step(self, I):
        mn = I.mn; o = I.ops
        c = mn[0]
        if c == 'v':
            if mn == 'v_mfma_f32_16x16x32_bf16':
                self.chk_vread(I, o[1], 'mfma_ab'); self.chk_vread(I, o[2], 'mfma_ab')
                def frag(x):
                    r = self.v[x.i:x.i + 4]
                    lo = (r << 16).view(np.float32); hi = (r & 0xffff0000).view(np.float32)
                    f = np.stack([lo, hi], 1).reshape(8, 4, 16)
                    return f.transpose(2, 1, 0).reshape(16, 32)
                A = frag(o[1]); B = frag(o[2])
                with np.errstate(all='ignore'):
                    D = A @ B.T
                    D = D.reshape(4, 4, 16).transpose(1, 0, 2).reshape(4, 64)
                    if o[3].k == 'v':
                        if (o[3].i >= 256) != (o[0].i >= 256): self.err(I, 'C/D class mismatch')
                        self.chk_vread(I, o[3], 'mfma_c')
                        D = D + self.v[o[3].i:o[3].i + 4].view(np.float32)
                        self.t_mfma_c[o[3].i:o[3].i + 4] = self.t
                    elif o[3].val != 0: self.err(I, 'const C')
                self.chk_vwrite(I, o[0], 'mfma')
                if self.exec_mask() is not None: self.err(I, 'mfma under partial exec')
                self.v[o[0].i:o[0].i + 4] = D.astype(np.float32).view(np.uint32)
                self.t_mfma_w[o[0].i:o[0].i + 4] = self.t; self.mfma_d[o[0].i:o[0].i + 4] = o[0].i
                self.count['mfma'] = self.count.get('mfma', 0) + 1
                return
            return self.valu(I)
        if c == 's': return self.salu(I)
        if c == 'd': return self.ds(I)
        if c == 'b': return self.vmem(I)
        self.err(I, 'unknown')
    def valu(self, I):
        mn = I.mn; o = I.ops
        F = self.fsrc; V = self.vsrc
        with np.errstate(all='ignore'):
            if mn in TRANS:
                x = F(I, o[1], 'trans')
                r = {'v_exp_f32': np.exp2, 'v_log_f32': np.log2, 'v_rcp_f32': lambda x: np.float32(1) / x,
                     'v_rsq_f32': lambda x: np.float32(1) / np.sqrt(x), 'v_sqrt_f32': np.sqrt}[mn](x)
                return self.vdst(I, o[0], r.astype(np.float32), 'trans')
            dpp = [k for k in I.mods if k.startswith(('row_ror', 'row_shr', 'quad_perm', 'row_half_mirror', 'row_mirror'))]
            if dpp:
                self.chk_vread(I, o[1], 'perm')
                src = self.v[o[1].i]
                k = dpp[0]
                if k == 'row_ror':
                    n = I.mods[k]; idx = (LANES & ~15) | ((LANES - n) & 15)
                elif k == 'row_mirror': idx = (LANES & ~15) | (15 - (LANES & 15))
                elif k == 'row_half_mirror': idx = (LANES & ~7) | (7 - (LANES & 7))
                else: self.err(I, 'dpp')
                a = src[idx].view(np.float32)
                if mn == 'v_mov_b32': return self.vdst(I, o[0], a.copy())
                b = F(I, o[2])
                r = {'v_add_f32': np.add, 'v_max_f32': np.fmax}[mn](a, b)
                return self.vdst(I, o[0], r)
            if mn in ('v_pk_mul_f32', 'v_pk_add_f32'):
                res = []
                for hi in range(2):
                    sel = I.mods.get('op_sel_hi', [1, 1]) if hi else I.mods.get('op_sel', [0, 0])
                    ng = I.mods.get('neg_hi' if hi else 'neg_lo', [0, 0])
                    xs = []
                    for k in range(2):
                        q = o[1 + k]
                        if q.k == 'v':
                            if q.i % 2 or q.i >= 256: self.err(I, 'pk operand')
                            self.chk_vread(I, Op('v%d' % (q.i + sel[k])), 'valu')
                            x = self.v[q.i + sel[k]].view(np.float32)
                        else:
                            if sel[k]: self.err(I, 'pk const hi select')
                            x = F(I, q)
                        xs.append(-x if ng[k] else x)
                    res.append(xs[0] * xs[1] if mn == 'v_pk_mul_f32' else xs[0] + xs[1])
                for hi in range(2): self.vdst(I, Op('v%d' % (o[0].i + hi)), res[hi])
                return
            if mn == 'v_cvt_pk_bf16_f32':
                return self.vdst(I, o[0], bf16_round(F(I, o[1])) | (bf16_round(F(I, o[2])) << 16))
            if mn in ('v_mov_b32', 'v_accvgpr_write_b32', 'v_accvgpr_read_b32', 'v_accvgpr_mov_b32'):
                return self.vdst(I, o[0], V(I, o[1]).copy())
            f2 = {'v_add_f32': np.add, 'v_sub_f32': np.subtract, 'v_mul_f32': np.multiply, 'v_max_f32': np.fmax, 'v_min_f32': np.fmin,
                  'v_subrev_f32': lambda a, b: b - a}
            if mn in f2: return self.vdst(I, o[0], f2[mn](F(I, o[1]), F(I, o[2])))
            if mn == 'v_fma_f32':
                return self.vdst(I, o[0], (F(I, o[1]).astype(np.float64) * F(I, o[2]) + F(I, o[3])).astype(np.float32))
            if mn == 'v_fmac_f32':
                return self.vdst(I, o[0], (F(I, o[1]).astype(np.float64) * F(I, o[2]) + F(I, o[0])).astype(np.float32))
            if mn == 'v_fmaak_f32':
                return self.vdst(I, o[0], (F(I, o[1]).astype(np.float64) * F(I, o[2]) + F(I, o[3])).astype(np.float32))
            if mn == 'v_max3_f32': return self.vdst(I, o[0], np.fmax(np.fmax(F(I, o[1]), F(I, o[2])), F(I, o[3])))
            L = lambda x: V(I, x).astype(np.int64)
            i2 = {'v_add_u32': lambda a, b: a + b, 'v_sub_u32': lambda a, b: a - b, 'v_subrev_u32': lambda a, b: b - a,
                  'v_and_b32': lambda a, b: a & b, 'v_or_b32': lambda a, b: a | b, 'v_xor_b32': lambda a, b: a ^ b,
                  'v_lshlrev_b32': lambda a, b: b << (a & 31), 'v_lshrrev_b32': lambda a, b: b >> (a & 31),
                  'v_mul_u32_u24': lambda a, b: (a & 0xffffff) * (b & 0xffffff), 'v_mul_lo_u32': lambda a, b: (a * b),
                  'v_min_u32': np.minimum, 'v_max_u32': np.maximum}
            if mn in i2: return self.vdst(I, o[0], i2[mn](L(o[1]), L(o[2])))
            i3 = {'v_lshl_add_u32': lambda a, b, c: (a << (b & 31)) + c, 'v_lshl_or_b32': lambda a, b, c: (a << (b & 31)) | c,
                  'v_add_lshl_u32': lambda a, b, c: (a + b) << (c & 31), 'v_and_or_b32': lambda a, b, c: (a & b) | c,
                  'v_mad_u32_u24': lambda a, b, c: (a & 0xffffff) * (b & 0xffffff) + c, 'v_add3_u32': lambda a, b, c: a + b + c,
                  'v_bfe_u32': lambda a, b, c: (a >> (b & 31)) & ((1 << (c & 31)) - 1), 'v_or3_b32': lambda a, b, c: a | b | c,
                  'v_xad_u32': lambda a, b, c: (a ^ b) + c,
                  'v_max3_u32': lambda a, b, c: np.maximum(np.maximum(a, b), c)}
            if mn in i3: return self.vdst(I, o[0], i3[mn](L(o[1]), L(o[2]), L(o[3])))
            if mn.startswith('v_cmp_'):
                _, _, op, ty = mn.split('_')
                if ty == 'f32': a, b = F(I, o[1]), F(I, o[2])
                elif ty == 'u32': a, b = L(o[1]), L(o[2])
                else: a, b = V(I, o[1]).view(np.int32), V(I, o[2]).view(np.int32)
                neg = False
                if ty == 'f32' and op in ('nlt', 'nle', 'ngt', 'nge', 'neq'): neg = True; op = op[1:]
                r = {'lt': a < b, 'le': a <= b, 'gt': a > b, 'ge': a >= b, 'eq': a == b, 'ne': a != b}[op]
                if neg: r = ~r
                return self.set_mask(I, o[0], r)
            if mn == 'v_cndmask_b32':
                m = self.get_mask(I, o[3])
                return self.vdst(I, o[0], np.where(m, V(I, o[2]), V(I, o[1])))
            if mn == 'v_readfirstlane_b32':
                self.chk_vread(I, o[1], 'rl')
                m = self.exec_mask()
                l = 0 if m is None or not m.any() else int(np.argmax(m))
                self.sset(I, o[0], int(self.v[o[1].i][l])); self.t_s_valu[o[0].i] = self.t
                return
            if mn in ('v_permlane32_swap_b32', 'v_permlane16_swap_b32'):
                self.chk_vread(I, o[0], 'perm'); self.chk_vread(I, o[1], 'perm')
                a = self.v[o[0].i].copy(); b = self.v[o[1].i].copy()
                if mn == 'v_permlane32_swap_b32':
                    t = a[32:].copy(); a[32:] = b[:32]; b[:32] = t
                else:
                    for r in (0, 32):
                        t = a[r + 16:r + 32].copy(); a[r + 16:r + 32] = b[r:r + 16]; b[r:r + 16] = t
                self.vdst(I, o[0], a); self.vdst(I, o[1], b)
                return
            if mn == 'v_nop': return
        self.err(I, 'unknown valu')
    def salu(self, I):
        mn = I.mn; o = I.ops; S = lambda x: self.sget(I, x)
        if mn == 's_waitcnt':
            if 'vmcnt' in I.mods: self.retire(self.vmq, I.mods['vmcnt'])
            if 'lgkmcnt' in I.mods:
                n = I.mods['lgkmcnt']
                if n > 15: self.err(I, 'lgkmcnt range')
                if self.spend and n != 0: self.err(I, 'counted lgkm with smem pending')
                self.retire(self.lgq, n)
                if n == 0: self.spend = set()
            if I.mods.get('vmcnt', 0) > 63: self.err(I, 'vmcnt range')
            return
        if mn == 's_nop': self.t += o[0].val; return
        if mn == 's_barrier': self.nbar += 1; return True
        if mn == 's_endpgm':
            self.retire(self.vmq, 0); self.retire(self.lgq, 0); self.done = True; return True
        if mn in ('s_setprio', 's_sleep'):
            return
        if mn == 's_branch': self.pc = self.wg.labels[o[0].val]; return
        if mn.startswith('s_cbranch_'):
            k = mn[10:]
            vcc = self.s[106] | self.s[107]; ex = self.s[126] | self.s[127]
            t = {'scc0': not self.scc, 'scc1': self.scc, 'vccz': vcc == 0, 'vccnz': vcc != 0, 'execz': ex == 0, 'execnz': ex != 0}[k]
            if t: self.pc = self.wg.labels[o[0].val]
            return
        if mn.startswith('s_load_dword'):
            addr = self.sget64(I, o[1]) + o[2].val
            b0, a, _ = self.wg.mem.find(addr)
            d = a[addr - b0: addr - b0 + 4 * o[0].n].view(np.uint32)
            for k in range(o[0].n):
                self.s[o[0].i + k] = int(d[k]); self.spend.add(o[0].i + k)
            return
        if mn == 's_getpc_b64': return self.sset64(I, o[0], 0x7777000000)
        if mn in ('s_memtime', 's_memrealtime'): return self.sset64(I, o[0], 1)
        if mn == 's_getreg_b32': return self.sset(I, o[0], 0)
        if mn in ('s_mov_b32', 's_movk_i32'): return self.sset(I, o[0], S(o[1]))
        if mn == 's_mov_b64': return self.sset64(I, o[0], self.sget64(I, o[1]))
        if mn.startswith('s_cmp_'):
            _, _, op, ty = mn.split('_')
            if ty == 'u64': a, b = self.sget64(I, o[0]), self.sget64(I, o[1])
            else: a, b = S(o[0]), S(o[1])
            if ty == 'i32':
                a -= (a >> 31) << 32; b -= (b >> 31) << 32
            self.scc = int({'eq': a == b, 'lg': a != b, 'lt': a < b, 'le': a <= b, 'gt': a > b, 'ge': a >= b}[op]); return
        if mn == 's_bitcmp1_b32': self.scc = (S(o[0]) >> (S(o[1]) & 31)) & 1; return
        if mn == 's_cselect_b32': return self.sset(I, o[0], S(o[1]) if self.scc else S(o[2]))
        if mn == 's_and_saveexec_b64':
            e = self.s[126] | (self.s[127] << 32); m = self.sget64(I, o[1])
            self.sset64(I, o[0], e); e &= m
            self.s[126] = e & 0xffffffff; self.s[127] = e >> 32; self.scc = int(e != 0); return
        if mn in ('s_or_b64', 's_and_b64'):
            a, b = self.sget64(I, o[1]), self.sget64(I, o[2])
            r = a | b if mn == 's_or_b64' else a & b
            self.sset64(I, o[0], r); self.scc = int(r != 0); return
        a, b = S(o[1]), S(o[2])
        if mn == 's_add_u32': r = a + b; self.scc = r >> 32
        elif mn == 's_addc_u32': r = a + b + self.scc; self.scc = r >> 32
        elif mn == 's_sub_u32': r = a - b; self.scc = int(r < 0)
        elif mn == 's_mul_i32': r = a * b
        elif mn == 's_mul_hi_u32': r = (a * b) >> 32
        elif mn == 's_min_u32': r = min(a, b); self.scc = int(a < b)
        elif mn == 's_max_u32': r = max(a, b); self.scc = int(a > b)
        else:
            r = {'s_lshl_b32': a << (b & 31), 's_lshr_b32': a >> (b & 31), 's_and_b32': a & b, 's_or_b32': a | b, 's_xor_b32': a ^ b,
                 's_bfe_u32': (a >> (b & 31)) & ((1 << ((b >> 16) & 127)) - 1)}.get(mn)
            if r is None: self.err(I, 'unknown salu')
            self.scc = int((r & 0xffffffff) != 0)
        self.sset(I, o[0], r)
    def ds(self, I):
        mn = I.mn; o = I.ops; lds = self.wg.lds
        m = self.exec_mask()
        if mn.startswith('ds_read'):
            nb = {'ds_read_b128': 16, 'ds_read_b64': 8, 'ds_read_b64_tr_b16': 8, 'ds_read_b32': 4}[mn]
            self.chk_vread(I, o[1], 'mem')
            addr = self.v[o[1].i].astype(np.int64) + I.mods.get('offset', 0)
            if I.mods.get('offset', 0) > 65535: self.err(I, 'ds offset')
            if (addr % nb).any(): self.err(I, 'unaligned ds')
            g = self.lds_gran(I, addr, nb, m)
            d1 = self.lds_read_chk(I, g)
            if m is not None:
                if mn.endswith('tr_b16'): self.err(I, 'tr under mask')
                addr = np.where(m, addr, 0)
            elif nb >= 8: self.bank_conf(I, addr, 'b128' if nb == 16 else 'b64')
            d = np.ascontiguousarray(lds[addr[:, None] + np.arange(nb)[None, :]])
            if mn.endswith('tr_b16'):
                h = d.view(np.uint16).reshape(4, 4, 16)
                d = np.ascontiguousarray(h.transpose(0, 2, 1)).reshape(64, 4)
            d = d.view(np.uint32).reshape(64, nb // 4)
            self.chk_vwrite(I, o[0], 'load')
            for k in range(nb // 4):
                self.v[o[0].i + k] = d[:, k] if m is None else np.where(m, d[:, k], self.v[o[0].i + k])
            self.lgq.append([d1, self.pend(o[0])])
        elif mn.startswith('ds_write'):
            nb = {'ds_write_b128': 16, 'ds_write_b64': 8, 'ds_write_b32': 4}[mn]
            self.chk_vread(I, o[0], 'mem'); self.chk_vread(I, o[1], 'mem')
            addr = self.v[o[0].i].astype(np.int64) + I.mods.get('offset', 0)
            g = self.lds_gran(I, addr, nb, m)
            d1 = self.lds_write_chk(I, g, False)
            d = np.ascontiguousarray(self.v[o[1].i:o[1].i + nb // 4].T).view(np.uint8)
            sel = slice(None) if m is None else m
            lds[addr[sel][:, None] + np.arange(nb)[None, :]] = d[sel]
            self.lgq.append([d1])
        else: self.err(I, 'unknown ds')
        if len(self.lgq) > 15: self.count['lgkm_overflow'] = self.count.get('lgkm_overflow', 0) + 1
    def vmem(self, I):
        mn = I.mn; o = I.ops
        m = self.exec_mask()
        if I.mods.get('offset', 0) > 4095: self.err(I, 'buffer offset')
        if mn in ('buffer_inv', 'buffer_wbl2'):
            self.vmq.append([]); return
        nb = 4 * {'dword': 1, 'dwordx2': 2, 'dwordx4': 4, 'add': 1}[mn.split('_')[-1]]
        if mn.startswith('buffer_load'):
            if 'lds' in I.mods:
                if self.t - self.t_m0 - 1 < 1: self.err(I, 'm0 -> lds dma hazard')
                if m is not None: self.err(I, 'dma under mask')
                base, off, nrec = self.baddr(I, o[0], o[1], o[2])
                d = self.gather(I, base, off, nrec, nb)
                la = (self.s[124] & 0x3fffc) + I.mods.get('offset', 0) + LANES * nb
                g = self.lds_gran(I, la, nb, None)
                d1 = self.lds_write_chk(I, g, True)
                self.wg.lds[la[0]:la[0] + 64 * nb] = d.view(np.uint8).reshape(-1)
                self.vmq.append([d1])
            else:
                base, off, nrec = self.baddr(I, o[1], o[2], o[3])
                if m is not None: off = np.where(m, off, 0)
                d = self.gather(I, base, off, nrec, nb)
                self.chk_vwrite(I, o[0], 'load')
                for k in range(nb // 4):
                    self.v[o[0].i + k] = d[:, k] if m is None else np.where(m, d[:, k], self.v[o[0].i + k])
                self.vmq.append([self.pend(o[0])])
        else:
            base, off, nrec = self.baddr(I, o[1], o[2], o[3])
            self.chk_vread(I, o[0], 'mem')
            b0, a, name = self.wg.mem.find(base)
            if base - b0 + nrec > len(a): self.err(I, 'SRD range exceeds buffer %s' % name)
            ok = off + nb <= nrec
            if m is not None: ok = ok & m
            elif not ok.all() and nrec and (off[~ok] < 0x40000000).any(): self.err(I, 'OOB store')
            mem = self.wg.mem; cbs = []
            if ok.any():
                lo_ = base - b0 + off[ok].min()
                rec = None; skip = False
                if mem.region:
                    if mn.startswith('buffer_store'):
                        r = mem.region(name, int(lo_))
                        if name == 'dbg':
                            for q in self.wg.stores:
                                if q[0] == 'S0' and q[1] is None: self.err(I, 'init flag before clearing completes')
                        if r:
                            if r == 'S5':
                                if (self.v[o[0].i] == 0xffffffff).all():
                                    r = 'S4'; skip = True
                                    mem.log.append(('sentinel', name, int(lo_), int(ok.sum()), 0, self.wid, I.line))
                                elif 'S7' not in self.passed: self.err(I, 'exchange data before S7')
                            if r == 'S6': r = 'S6w%d' % self.wid
                            if r in self.wg.signalled: self.err(I, 'store after signal %s' % r)
                            if 'sc1' not in I.mods: self.err(I, 'hand-off store without sc1')
                            rec = [r, None]; self.wg.stores.append(rec)
                    else:
                        r = mem.sigof(name, int(lo_))
                        if 'S0' not in self.passed: self.err(I, 'signal before flags are known cleared')
                        if r == 'S6': r = 'S6w%d' % self.wid
                        for q in self.wg.stores:
                            if q[0] == r and (q[1] is None or (q[1] >= self.wg.epoch and r[:2] != 'S6')): self.err(I, 'signal %s before stores complete' % r)
                        self.wg.signalled.add(r)
                if rec:
                    def fin(rec=rec): rec[1] = self.wg.epoch
                    cbs.append(fin)
                if skip:
                    self.vmq.append(cbs); return
                if any(n == name and l <= lo_ < h for n, l, h in mem.frozen):
                    mem.log.append((mn, name, int(lo_), int(ok.sum()), int(self.v[o[0].i][np.argmax(ok)]), self.wid, I.line))
                    self.vmq.append(cbs); return
                if name in mem.written:
                    mem.written[name][((base - b0 + off[ok]) // 2)[:, None] + np.arange(nb // 2)[None, :]] = True
            if mn.startswith('buffer_store'):
                d = np.ascontiguousarray(self.v[o[0].i:o[0].i + nb // 4].T).view(np.uint8)
                a[(base - b0 + off[ok])[:, None] + np.arange(nb)[None, :]] = d[ok]
                if nb > 8: self.t_store_r[o[0].i:o[0].i + o[0].n] = self.t
            else:
                w = a.view(np.uint32)
                for l in np.nonzero(ok)[0]:
                    w[(base - b0 + off[l]) // 4] += self.v[o[0].i][l]
            self.vmq.append(cbs)
        if len(self.vmq) > 63: self.count['vm_overflow'] = self.count.get('vm_overflow', 0) + 1
```

```python
import sys, math
from asmlib import *

NAME = 'parallel_sum__compressed_kv_cla__glu_gated_geglu__prompt'
MB = 1 << 20
WS_XN, WS_KV, WS_A3 = 0, 2 * MB, 34 * MB
XN_SZ, KV_SZ, A3_SZ = 2 * MB, 32 * MB, 32 * 184 * 4096
LDS_SZ = 163840
ST = ''

P_X, P_CKV, P_WQ, P_WK, P_WV, P_WO, P_WG, P_WU, P_WD, P_OUT, P_DBG, P_WS = 4, 6, 8, 10, 12, 14, 18, 20, 22, 24, 26, 28

def entry(name, end_label, code_bytes):
    L = [f'.globl {name}', '.p2align 8', f'.type {name},@function', f'{name}:']
    L += ['s_cmp_ge_u32 s2, 256', f's_cbranch_scc1 {end_label}',
          's_load_dwordx16 s[4:19], s[0:1], 0', 's_load_dwordx8 s[20:27], s[0:1], 64', 's_load_dwordx2 s[28:29], s[0:1], 96']
    L += ['s_getpc_b64 s[96:97]', f's_mov_b32 s98, {code_bytes}', 's_mov_b32 s99, 0x20000',
          's_lshr_b32 s30, s2, 3', 's_lshl_b32 s30, s30, 12', 'v_lshl_add_u32 v1, v0, 4, s30',
          'buffer_load_dword v2, v1, s[96:99], 0 offen',
          'v_lshrrev_b32 v1, 6, v0', 'v_and_b32 v0, 63, v0', 'v_readfirstlane_b32 s3, v1',
          's_waitcnt lgkmcnt(0)']
    return L

PROF = False
PF = 0
LD = ''
def stamp(k, vp):
    if not PROF: return []
    o = [f'v_mov_b32 v{vp}, 0'] if k == 0 else []
    return o + ['s_memrealtime s[94:95]', 's_memtime s[100:101]', 's_waitcnt lgkmcnt(0)', f'v_writelane_b32 v{vp}, s94, {2*k}', f'v_writelane_b32 v{vp}, s100, {2*k+1}']
def stamp_out(kid, vp, k):
    if not PROF: return []
    return ['s_waitcnt vmcnt(0)'] + stamp(k, vp) + srd_off(96, P_WS, P_WS + 1, 60 * MB + kid * 256 * 1024, 256 * 1024) + [
        's_lshl_b32 s30, s2, 2', 's_add_u32 s30, s30, s3', 's_lshl_b32 s30, s30, 8', 'v_lshlrev_b32 v0, 2, v0',
        f'buffer_store_dword v{vp}, v0, s[96:99], s30 offen']

V_L16 = 1
V_TR = 4
V_WD = 8
V_AD = 12
V_AR = 16
V_T = 20
V_WB = 40
V_ACC = 64
V_R = 128
QSCALE = 0x3e0293ee

def w_dma_voff(dst, stride, tmp):
    L = [f'v_lshrrev_b32 v{tmp}, 3, v0',
         f'v_mul_u32_u24 v{tmp}, {stride}, v{tmp}',
         f'v_bfe_u32 v{tmp+1}, v0, 4, 1',
         f'v_lshlrev_b32 v{tmp+1}, 1, v{tmp+1}',
         f'v_and_b32 v{tmp+2}, 7, v0',
         f'v_xor_b32 v{tmp+1}, v{tmp+1}, v{tmp+2}',
         f'v_xor_b32 v{tmp+2}, 4, v{tmp+1}',
         f'v_lshl_add_u32 v{tmp+1}, v{tmp+1}, 4, v{tmp}',
         f'v_lshl_add_u32 v{tmp+2}, v{tmp+2}, 4, v{tmp}']
    for i in range(4):
        L.append(f'v_add_u32 v{dst+i}, {i * 8 * stride - i * 1024}, v{tmp + 1 + (i & 1)}')
    return L

def tr_addrs(dst, tmp):
    L = [f'v_lshrrev_b32 v{tmp}, 4, v0',
         f'v_bfe_u32 v{tmp+1}, v0, 2, 2',
         f'v_lshl_add_u32 v{tmp+2}, v{tmp}, 3, v{tmp+1}',
         f'v_lshlrev_b32 v{tmp+2}, 7, v{tmp+2}',
         f'v_and_b32 v{tmp+3}, 3, v0',
         f'v_lshl_add_u32 v{tmp+2}, v{tmp+3}, 3, v{tmp+2}',
         f'v_and_b32 v{tmp}, 1, v{tmp}',
         f'v_lshrrev_b32 v{tmp+1}, 1, v{tmp+1}',
         f'v_lshl_or_b32 v{tmp}, v{tmp}, 1, v{tmp+1}']
    for ct in range(4):
        L += [f'v_xor_b32 v{tmp+1}, {ct}, v{tmp}', f'v_lshl_add_u32 v{dst+ct}, v{tmp+1}, 5, v{tmp+2}']
    return L

def areg(ks, rt):
    return A((ks * 4 + rt) * 4, 4)

def rtile(typ, ct, rt, base):
    if typ == 'N':
        return base + ((ct * 2 + rt // 2) * 2 + rt % 2) * 4
    return base + ((rt * 2 + ct // 2) * 2 + ct % 2) * 4
def rbase(p):
    return V_R + 64 * (p % 2)

class Passes:
    def __init__(self, types, double0=False):
        self.types = types
        self.double0 = double0
        mf = []
        if double0:
            for n in range(64):
                hb, ss = double0[n // 4]
                c8 = hb * 4 + n % 4
                wb = V_WB + 8 * (n % 3)
                for rt in range(4):
                    acc = V(rtile('T', c8 % 4, rt, rbase(c8 // 4)), 4)
                    for k in range(2):
                        mf.append(mfma(acc, V(wb + 4 * k, 4), areg(2 * ss + k, rt), '0' if (ss == 0 and k == 0) else acc))
        for p, typ in enumerate(types):
            if double0 and p < 2: continue
            for ss in range(8):
                for ct in range(4):
                    n = p * 32 + ss * 4 + ct
                    wb = V_WB + 8 * (n % 3)
                    for rt in range(4):
                        acc = V(V_ACC + (ct * 4 + rt) * 4, 4)
                        for k in range(2):
                            w = V(wb + 4 * k, 4); a = areg(2 * ss + k, rt)
                            c = '0' if (ss == 0 and k == 0) else acc
                            d = V(rtile(typ, ct, rt, rbase(p)), 4) if (ss == 7 and k == 1) else acc
                            mf.append(mfma(d, a, w, c) if typ == 'N' else mfma(d, w, a, c))
        self.sc = Sched(mf)
        self.m0_free = 0
        ng = len(types) * 32
        for n in range(2, ng):
            for i, t in enumerate(self.tr_reads(n)):
                self.sc.put(8 * (n - 2) + i, t)
        for st in range(1, len(types) * 4):
            g = 8 * (8 * (st - 1) + 5)
            self.sc.put(g + 6, f'WAITVM W{st}')
            self.sc.s[g + 6].append('s_waitcnt lgkmcnt(0)')
            self.sc.put(g + 7, 's_barrier')
    def tr_reads(self, n):
        p, ss, ct = n // 32, (n % 32) // 4, n % 4
        wb = V_WB + 8 * (n % 3)
        L = []
        for k in range(2):
            for hf in range(2):
                ks = 2 * ss + k
                if self.double0 and n < 64:
                    ad, off = V_TR + ct, ((n // 8) % 4) * 16384 + ((n % 8) // 4) * 8192 + k * 4096 + hf * 512
                elif self.types[p] == 'G':
                    ad, off = V_AR + (ct & 1), ks * 4096 + (ct // 2) * 2048 + hf * 256
                else:
                    ad, off = V_TR + ct, ks * 4096 + hf * 512
                L.append(f'ds_read_b64_tr_b16 {V(wb + 4 * k + 2 * hf, 2)}, v{ad} offset:{off}')
        return L
    def dma_group(self, items, lo, vmspace=3):
        g = max(lo, self.m0_free)
        for t in items:
            g = self.sc.place(t, g, vmspace=vmspace) + 1
        self.m0_free = g
        return g

def cvt_pairs(base):
    return [f'v_cvt_pk_bf16_f32 v{base + i}, v{base + 2 * i}, v{base + 2 * i + 1}' for i in range(4)]

def gen_k1(code_bytes):
    nm = 'k1_kernel'
    L = entry(nm, 'K1_END', code_bytes) + stamp(0, 3)
    R_X, R_CKV, R_WK, R_WV, R_XN, R_KV = 32, 36, 40, 44, 48, 52
    sH, sRB, sW, sA, sT, sM0W, sM0A, sKVO = 60, 61, 62, 63, 64, 65, 66, 68
    sXO, sXN, sQS = 76, 77, 78
    L += srd(R_X, P_X, P_X + 1, 2 * MB) + srd(R_CKV, P_CKV, P_CKV + 1, 2 * MB)
    L += srd(R_WK, P_WK, P_WK + 1, 4 * MB) + srd(R_WV, P_WV, P_WV + 1, 4 * MB)
    L += srd_off(R_XN, P_WS, P_WS + 1, WS_XN, XN_SZ) + srd_off(R_KV, P_WS, P_WS + 1, WS_KV, KV_SZ)
    L += ['s_lshl_b32 s30, s2, 2', 's_add_u32 s30, s30, s3', f's_lshl_b32 s{sXO}, s30, 11',
          f'v_lshrrev_b32 v{V_T}, 5, v0', f'v_and_b32 v{V_T+1}, 31, v0', f'v_lshlrev_b32 v{V_T+1}, 4, v{V_T+1}',
          f'v_lshl_add_u32 v{V_T+2}, v{V_T}, 10, v{V_T+1}',
          f'buffer_load_dwordx4 {V(V_R, 4)}, v{V_T+2}, {S(R_X,4)}, s{sXO} offen',
          f'buffer_load_dwordx4 {V(V_R+4, 4)}, v{V_T+2}, {S(R_X,4)}, s{sXO} offen offset:512']
    L += ['s_and_b32 s30, s2, 1', 's_lshl_b32 s30, s30, 2', 's_bfe_u32 s31, s2, 0x20003', f's_add_u32 s{sRB}, s30, s31',
          's_bfe_u32 s30, s2, 0x20001', 's_lshl_b32 s30, s30, 3', 's_lshr_b32 s31, s2, 5', f's_add_u32 s{sH}, s30, s31']
    L += [f's_lshl_b32 s30, s{sRB}, 2', 's_add_u32 s30, s30, s3', f's_lshl_b32 s{sA}, s30, 16',
          f's_lshl_b32 s31, s{sH}, 20', 's_lshl_b32 s30, s30, 15', f's_add_u32 s{sKVO}, s30, s31',
          f's_lshl_b32 s30, s3, 18', f's_lshl_b32 s31, s{sH}, 8', f's_add_u32 s{sW}, s30, s31',
          f's_lshl_b32 s{sM0W}, s3, 12', f's_mul_i32 s{sM0A}, s3, 24576', f's_add_u32 s{sM0A}, s{sM0A}, 65536']
    t = V_T + 4
    L += [f'v_lshrrev_b32 v{t}, 3, v0', f'v_lshlrev_b32 v{t}, 10, v{t}',
          f'v_lshrrev_b32 v{t+1}, 4, v0', f'v_and_b32 v{t+2}, 7, v0', f'v_xor_b32 v{t+1}, v{t+1}, v{t+2}', f'v_xor_b32 v{t+2}, 4, v{t+1}',
          f'v_lshl_add_u32 v{t+1}, v{t+1}, 4, v{t}', f'v_lshl_add_u32 v{t+2}, v{t+2}, 4, v{t}']
    for i in range(4):
        L.append(f'v_add_u32 v{V_AD+i}, {i * 8192 - i * 1024}, v{t + 1 + (i & 1)}')
    L += w_dma_voff(V_WD, 8192, t)
    def a_items(c):
        it = []
        for hf in range(2):
            it += [f's_add_u32 m0, s{sM0A}, {(c % 3) * 8192 + hf * 4096}', f's_add_u32 s{sT}, s{sA}, {hf * 32768 + c * 128}']
            it += [f'buffer_load_dwordx4 v{V_AD+i}, {S(R_CKV,4)}, s{sT} offen offset:{i*1024} lds ; @A{c}' for i in range(4)]
        return it
    def w_items(st):
        p, s4 = st // 4, st % 4
        r = R_WK if p < 2 else R_WV
        it = [f's_add_u32 m0, s{sM0W}, {s4 * 16384}', f's_add_u32 s{sT}, s{sW}, {s4 * 128 * 8192 + (p % 2) * 128}']
        it += [f'buffer_load_dwordx4 v{V_WD+i}, {S(r,4)}, s{sT} offen offset:{i*1024} lds ; @W{st}' for i in range(4)]
        return it
    L += a_items(0) + w_items(0) + a_items(1) + w_items(1) + a_items(2) + w_items(2)
    L += [f'v_lshlrev_b32 v{V_L16}, 4, v0', f's_mov_b32 s{sQS}, {QSCALE:#x}']
    for m in range(1, 8):
        L.append(f's_add_u32 s{sKVO+m}, s{sKVO}, {4096*m}')
    L += tr_addrs(V_TR, t)
    L += [f'v_and_b32 v{t}, 15, v0', f'v_lshrrev_b32 v{t+1}, 1, v{t}', f'v_lshrrev_b32 v{t+2}, 4, v0', f'v_xor_b32 v{t+1}, v{t+1}, v{t+2}',
          f'v_lshlrev_b32 v{t}, 7, v{t}', f'v_add_u32 v{t}, s{sM0A}, v{t}',
          f'v_lshl_add_u32 v{V_AR}, v{t+1}, 4, v{t}', f'v_xor_b32 v{V_AR+1}, 64, v{V_AR}']
    X = V_ACC
    for i in range(8):
        L += [f'v_lshlrev_b32 v{X+2*i}, 16, v{V_R+i}', f'v_and_b32 v{X+2*i+1}, 0xffff0000, v{V_R+i}']
    def reduce32(r, tmp):
        o = []
        for n in (8, 4, 2, 1):
            o += ['s_nop 1', f'v_add_f32_dpp v{r}, v{r}, v{r} row_ror:{n} row_mask:0xf bank_mask:0xf']
        o += [f'v_mov_b32 v{tmp}, v{r}', 's_nop 1', f'v_permlane16_swap_b32 v{r}, v{tmp}', f'v_add_f32 v{r}, v{r}, v{tmp}']
        return o
    sm, s2_, tm = t, t + 1, t + 2
    L += [f'v_add_f32 v{sm}, v{X}, v{X+1}', f'v_add_f32 v{s2_}, v{X+2}, v{X+3}']
    for i in range(4, 16, 2):
        L += [f'v_add_f32 v{sm}, v{sm}, v{X+i}', f'v_add_f32 v{s2_}, v{s2_}, v{X+i+1}']
    L += [f'v_add_f32 v{sm}, v{sm}, v{s2_}'] + reduce32(sm, tm)
    L += [f'v_mul_f32 v{sm}, 0x3b000000, v{sm}']
    for i in range(16):
        L.append(f'v_sub_f32 v{X+i}, v{X+i}, v{sm}')
    L += [f'v_mul_f32 v{sm}, v{X}, v{X}', f'v_mul_f32 v{s2_}, v{X+1}, v{X+1}']
    for i in range(2, 16, 2):
        L += [f'v_fmac_f32 v{sm}, v{X+i}, v{X+i}', f'v_fmac_f32 v{s2_}, v{X+i+1}, v{X+i+1}']
    L += [f'v_add_f32 v{sm}, v{sm}, v{s2_}'] + reduce32(sm, tm)
    L += [f'v_mov_b32 v{s2_}, 0x3b000000', f'v_fmaak_f32 v{sm}, v{sm}, v{s2_}, 0x3727c5ac', f'v_rsq_f32 v{sm}, v{sm}', 's_nop 0']
    for i in range(16):
        L.append(f'v_mul_f32 v{X+i}, v{X+i}, v{sm}')
    L += [f'v_cvt_pk_bf16_f32 v{V_R+i}, v{X+2*i}, v{X+2*i+1}' for i in range(8)]
    L += [f'v_lshlrev_b32 v{t}, 3, v{V_T+1}',
          f'v_lshl_add_u32 v{t}, v{V_T}, 4, v{t}', 's_lshl_b32 s30, s3, 5', f'v_add_u32 v{t}, s30, v{t}',
          f'ds_write_b128 v{t}, {V(V_R,4)} offset:49152', f'ds_write_b128 v{t}, {V(V_R+4,4)} offset:{49152+4096}']
    L += ['s_lshr_b32 s30, s2, 2', f's_lshl_b32 s{sXN}, s30, 15', 's_bfe_u32 s30, s2, 0x10001', 's_lshl_b32 s30, s30, 10',
          f's_add_u32 s{sXN}, s{sXN}, s30', 's_and_b32 s30, s2, 1', 's_lshl_b32 s30, s30, 7', f's_add_u32 s{sXN}, s{sXN}, s30',
          's_lshl_b32 s30, s3, 13', f's_add_u32 s{sXN}, s{sXN}, s30', f's_add_u32 s{sXO}, s{sXN}, 4096',
          f'v_bfe_u32 v{t+1}, v0, 3, 2', f'v_and_b32 v{t+2}, 7, v0', f'v_lshlrev_b32 v{t+2}, 4, v{t+2}',
          f'v_lshl_add_u32 v{t+2}, v{t+1}, 8, v{t+2}', f'v_lshl_add_u32 v{t+2}, v{V_T}, 11, v{t+2}',
          's_lshl_b32 s30, s3, 11', f'v_add_u32 v{t+1}, s30, v{V_L16}']
    P = Passes(['T', 'T', 'N', 'N'])
    sc = P.sc
    def a_reads(c):
        return [f'ds_read_b128 {areg(2*c + k, rt)}, v{V_AR + k} offset:{(c % 3) * 8192 + rt * 2048}' for k in range(2) for rt in range(4)]
    L += stamp(1, 3) + ['WAITVM W0', 's_waitcnt lgkmcnt(0)', 's_barrier'] + stamp(2, 3)
    L += a_reads(0) + P.tr_reads(0)
    L += [f'ds_read_b128 {V(V_R,4)}, v{t+1} offset:49152', f'ds_read_b128 {V(V_R+4,4)}, v{t+1} offset:{49152+1024}']
    L += [f'TOUCH {areg(1,3)}'] + P.tr_reads(1)
    ev = []
    ev.append((0, a_items(3), None))
    for c in range(1, 8):
        g0 = 32 * (c - 1)
        sc.put(g0 + 11, f'WAITVM A{c}')
        for i, r in enumerate(a_reads(c)):
            sc.put(g0 + 12 + (i % 4) + 8 * (i // 4), r)
        if c + 3 < 8:
            ev.append((g0 + 29, a_items(c + 3), areg(2 * c + 1, 3)))
    ev.append((48, w_items(3), None))
    for st in range(4, 16):
        ev.append((8 * (8 * (st - 4) + 6), w_items(st), None))
    ev.sort(key=lambda e: e[0])
    sc.put(4, f'buffer_store_dwordx4 {V(V_R,4)}, v{t+2}, {S(R_XN,4)}, s{sXN} offen{ST}')
    sc.put(6, f'buffer_store_dwordx4 {V(V_R+4,4)}, v{t+2}, {S(R_XN,4)}, s{sXO} offen{ST}')
    for g, it, touch in ev:
        if touch: it = [f'TOUCH {touch}'] + it
        P.dma_group(it, g, vmspace=(1 if g < 200 else 3))
    def epi(p):
        fr = []
        for f in range(8):
            b = rbase(p) + 8 * f
            pre = []
            if p < 2:
                rt, p2 = f // 2, f % 2
                m, imm = (rt // 2) * 4 + rt % 2, (2 * p + p2) * 1024
                pre = [f'v_mul_f32 v{b+i}, s{sQS}, v{b+i}' for i in range(8)]
            else:
                ct, q = f // 2, f % 2
                m, imm = q * 4 + 2 + (p - 2), ct * 1024
            fr.append((pre + cvt_pairs(b), f'buffer_store_dwordx4 {V(b,4)}, v{V_L16}, {S(R_KV,4)}, s{sKVO+m} offen offset:{imm}{ST}'))
        return fr
    for p in range(3):
        for f, (cv, stt) in enumerate(epi(p)):
            g = (p + 1) * 256 + 6 + f * 24
            for c in cv: g = sc.place(c, g)
            sc.place(stt, g + 1)
    for p in range(4): sc.v[256 * p + 255] += stamp(3 + p, 3)
    L += sc.emit()
    L += ['s_nop 7']
    for cv, stt in epi(3):
        L += cv + [stt]
    L += stamp(7, 3) + stamp_out(0, 3, 8)
    L += ['K1_END:', 's_endpgm']
    return autowait(L), P.sc.overflow()

V_AV, V_AK, V_LB = 2, 3, 8
V_E = 4
V_NB, V_P, V_NA = 16, 32, 48
V_OB, V_OA = 64, 128
A_QL, A_K, A_V, A_ONE, A_L = 0, 32, 64, 96, 100
RING = 32768
NINF = 0xff800000

def qfrag(X, qs, ds):
    f = ((0 if X == 'A' else 2) + qs) * 2 + ds % 2
    return A(A_QL + 4 * f, 4) if ds < 2 else V(192 + 8 * f, 4)
def stile(buf, kvt, qs):
    return 196 + 8 * (buf * 4 + qs * 2 + kvt)
def otile(X, dt, qs):
    return (V_OA if X == 'A' else V_OB) + ((qs * 4 + dt // 2) * 2 + dt % 2) * 4
def ntile(X, kvt, qs):
    return (V_NA if X == 'A' else V_NB) + (kvt * 2 + qs) * 4
def lacc(X, qs):
    return A_L + (0 if X == 'A' else 8) + 4 * qs

def qk_mfmas(X, buf, czero=False):
    mf = []
    for kvt in range(2):
        for qs in range(2):
            d = V(stile(buf, kvt, qs), 4)
            for ds in range(4):
                c = d if ds else ('0' if czero else V(ntile(X, kvt, qs), 4))
                mf.append(mfma(d, A(A_K + 4 * (kvt * 4 + ds), 4), qfrag(X, qs, ds), c))
    return mf
def pv_mfmas(X, buf, vreg=A_V):
    mf = []
    for qs in range(2):
        l = A(lacc(X, qs), 4)
        mf.append(mfma(l, A(A_ONE, 4), V(V_P + 8 * buf + 4 * qs, 4), l))
    for dt in range(8):
        for qs in range(2):
            o = V(otile(X, dt, qs), 4)
            mf.append(mfma(o, A(vreg + 4 * dt, 4), V(V_P + 8 * buf + 4 * qs, 4), o))
    return mf
def sm_ops(buf):
    ex, cv = [], []
    for i in range(16):
        qs, kvt, r = i // 8, (i // 4) % 2, i % 4
        ex.append(f'v_exp_f32 v{V_E + i % 4}, v{stile(buf, kvt, qs) + r}')
    for c in range(8):
        cv.append(f'v_cvt_pk_bf16_f32 v{V_P + 8 * buf + c}, v{V_E + (2 * c) % 4}, v{V_E + (2 * c + 1) % 4}')
    return ex, cv
def k_reads(ad):
    return [f'ds_read_b128 {A(A_K + 4 * i, 4)}, v{ad} offset:{i * 1024}' for i in range(8)]
def v_reads(dst=A_V):
    return [f'ds_read_b128 {A(dst + 4 * i, 4)}, v{V_AV} offset:{8192 + i * 1024}' for i in range(8)]

def gen_k2(code_bytes):
    nm = 'k2_kernel'
    L = entry(nm, 'K2_END', code_bytes) + stamp(0, 15)
    R_XN, R_WQ, R_WG, R_WU, R_KV, R_A3, R_H = 32, 36, 40, 44, 48, 52, 56
    sH, sJ, sQA, sQB, sXA, sXB, sT, sT1, sT2, sM0W, sWQ, sWG = 60, 61, 62, 63, 64, 65, 66, 67, 68, 69, 70, 71
    sHA, sHB, sCA, sCB, sSRC, sSLOT, sM0R, sM0B, sCNT, sNINF, sTHR = 72, 73, 74, 75, 76, 77, 78, 79, 80, 81, 82
    sMASK, sFLAG = 84, 92
    L += ['s_and_b32 s30, s2, 7', 's_lshl_b32 s30, s30, 2', 's_bfe_u32 s31, s2, 0x20003', f's_add_u32 s{sH}, s30, s31',
          f's_lshr_b32 s{sJ}, s2, 5', f's_lshl_b32 s30, s{sJ}, 2', f's_add_u32 s{sQB}, s30, s3',
          's_sub_u32 s31, 60, s30', f's_add_u32 s{sQA}, s31, s3',
          f's_lshl_b32 s{sXA}, s{sQA}, 15', f's_lshl_b32 s{sXB}, s{sQB}, 15', f'v_lshlrev_b32 v{V_L16}, 4, v0']
    L += srd_off(R_XN, P_WS, P_WS + 1, WS_XN, XN_SZ)
    def x_items(ss):
        it = [f's_add_u32 s{sT1}, s{sXA}, {ss * 4096}', f's_add_u32 s{sT2}, s{sXB}, {ss * 4096}']
        for k in range(2):
            for rt in range(4):
                it.append(f'buffer_load_dwordx4 {areg(2 * ss + k, rt)}, v{V_L16}, {S(R_XN,4)}, s{sT1 if rt < 2 else sT2} offen offset:{k * 2048 + (rt % 2) * 1024}')
        return it
    L += x_items(0)
    L += srd(R_WQ, P_WQ, P_WQ + 1, 4 * MB) + srd(R_WG, P_WG, P_WG + 1, 512 * 3584) + srd(R_WU, P_WU, P_WU + 1, 512 * 3584)
    t = V_T
    L += [f's_lshl_b32 s30, s3, 18', f's_lshl_b32 s31, s{sH}, 8', f's_add_u32 s{sWQ}, s30, s31',
          f's_min_u32 s31, s{sH}, 27', 's_lshl_b32 s31, s31, 7', f's_mul_i32 s30, s3, {32 * 3584}', f's_add_u32 s{sWG}, s30, s31',
          f's_lshl_b32 s{sM0W}, s3, 12']
    L += [f'v_lshrrev_b32 v{t}, 2, v0', f'v_mul_u32_u24 v{t}, 3584, v{t}', f'v_lshrrev_b32 v{t+1}, 4, v0', f'v_and_b32 v{t+1}, 2, v{t+1}',
          f'v_and_b32 v{t+2}, 3, v0', f'v_xor_b32 v{t+1}, v{t+1}, v{t+2}', f'v_lshl_add_u32 v{V_AD}, v{t+1}, 4, v{t}',
          f'v_add_u32 v{V_AD+1}, {16 * 3584 - 1024}, v{V_AD}']
    def w_items(st):
        p, s4 = st // 4, st % 4
        if p < 2:
            it = [f's_add_u32 m0, s{sM0W}, {s4 * 16384}', f's_add_u32 s{sT}, s{sWG}, {s4 * 128 * 3584 + p * 64}']
            it += [f'buffer_load_dwordx4 v{V_AD+i}, {S(R_WG,4)}, s{sT} offen offset:{i*1024} lds ; @W{st}' for i in range(2)]
            it += [f's_add_u32 m0, s{sM0W}, {s4 * 16384 + 2048}', 's_nop 0']
            it += [f'buffer_load_dwordx4 v{V_AD+i}, {S(R_WU,4)}, s{sT} offen offset:{i*1024} lds ; @W{st}' for i in range(2)]
        else:
            it = [f's_add_u32 m0, s{sM0W}, {s4 * 16384}', f's_add_u32 s{sT}, s{sWQ}, {s4 * 128 * 8192 + (p % 2) * 128}']
            it += [f'buffer_load_dwordx4 v{V_WD+i}, {S(R_WQ,4)}, s{sT} offen offset:{i*1024} lds ; @W{st}' for i in range(4)]
        return it
    L += w_items(0) + x_items(1) + w_items(1) + x_items(2) + x_items(3) + w_items(2) + x_items(4) + w_items(3)
    L += w_dma_voff(V_WD, 8192, t) + tr_addrs(V_TR, t)
    L += [f'v_lshrrev_b32 v{t}, 4, v0', f'v_bfe_u32 v{t+1}, v0, 2, 2', f'v_lshl_add_u32 v{t+1}, v{t}, 3, v{t+1}', f'v_lshlrev_b32 v{t+1}, 6, v{t+1}',
          f'v_and_b32 v{t+2}, 3, v0', f'v_lshl_add_u32 v{t+1}, v{t+2}, 3, v{t+1}', f'v_and_b32 v{t}, 1, v{t}',
          f'v_lshl_add_u32 v{V_AR}, v{t}, 5, v{t+1}', f'v_xor_b32 v{V_AR+1}, 32, v{V_AR}']
    L += [f's_lshl_b32 s30, s{sH}, 20', f's_add_u32 s30, s30, {WS_KV:#x}', f's_add_u32 s{R_KV}, s{P_WS}, s30', f's_addc_u32 s{R_KV+1}, s{P_WS+1}, 0',
          f's_lshl_b32 s30, s{sJ}, 16', f's_sub_u32 s{R_KV+2}, 0x100000, s30', f's_mov_b32 s{R_KV+3}, 0x20000']
    L += srd_off(R_A3, P_WS, P_WS + 1, WS_A3, A3_SZ) + srd_off(R_H, P_WS, P_WS + 1, WS_A3, A3_SZ)
    L += [f's_cmp_lt_u32 s{sH}, 28', f's_cselect_b32 s{R_H+2}, s{R_H+2}, 0']
    for q, hh, cc in ((sQA, sHA, sCA), (sQB, sHB, sCB)):
        L += [f's_lshr_b32 s30, s{q}, 1', f's_mul_i32 s30, s30, {184 * 4096}', f's_and_b32 s31, s{q}, 1', 's_lshl_b32 s31, s31, 11',
              's_add_u32 s30, s30, s31', f's_min_u32 s31, s{sH}, 27', 's_lshl_b32 s31, s31, 13', f's_add_u32 s{hh}, s30, s31',
              f's_lshl_b32 s31, s{sH}, 14', 's_add_u32 s30, s30, s31', f's_add_u32 s{cc}, s30, {56 * 4096}']
    L += ['s_cmp_lt_u32 s3, 2', 's_cselect_b32 s30, 0xc000, 0', f's_add_u32 s{sSRC}, s30, s{sM0W}', f's_add_u32 s{sM0B}, s{sM0W}, {RING}',
          f's_mov_b32 s{sNINF}, {NINF:#x}', f's_mov_b32 s{sTHR}, 0x53800000', f's_mov_b64 s[{sFLAG}:{sFLAG+1}], 0']
    L += [f'v_lshrrev_b32 v{t}, 4, v0', f'v_lshlrev_b32 v{t}, 2, v{t}', f'v_and_b32 v{t+1}, 15, v0']
    for i in range(4):
        L += [f'v_add_u32 v{t+2}, {i}, v{t}', f'v_cmp_gt_u32 s[{sMASK+2*i}:{sMASK+2*i+1}], v{t+2}, v{t+1}']
    V_C2 = 3
    L += [f'v_mov_b32 v{V_C2}, 0xbdd2d3e8']
    P = Passes(['G', 'G', 'T', 'T'])
    sc = P.sc
    L += stamp(1, 15) + ['WAITVM W0', 's_barrier'] + stamp(2, 15) + P.tr_reads(0) + P.tr_reads(1)
    def kv_items(i):
        so = i * 16384
        it = [f's_add_u32 m0, s{sM0B}, {((i + 5) % 8) * 16384}']
        if i >= 0: it += [f's_add_u32 s{sT}, s{sSRC}, {so}']
        else: it += [f's_add_u32 s{sT}, s{sM0W}, {(i + 3) * 16384}']
        it += [f'buffer_load_dwordx4 v{V_L16}, {S(R_KV,4)}, s{sT} offen offset:{k*1024} lds ; @KV{i}' for k in range(4)]
        return it
    ev = [(8 + 32 * (ss - 5), x_items(ss)) for ss in range(5, 8)]
    for st in range(4, 16):
        ev.append((8 * (8 * (st - 4) + 6), [x for x in w_items(st) if x != 's_nop 0']))
    for i in range(-3, 3):
        ev.append((768 + 8 + 24 * (i + 3), kv_items(i)))
    ev.append((8 * (8 * 14 + 6), kv_items(3)))
    ev.sort(key=lambda e: e[0])
    for g, it in ev:
        P.dma_group(it, g, vmspace=(1 if g < 120 else 3))
    sc.s[8 * (8 * 14 + 5) + 6].insert(0, 'WAITVM KV-2')
    for i, r in enumerate(k_reads(V_AV)):
        sc.put(1024 - 16 + i, r)
    if PF:
        pf = ['s_lshl_b32 s30, s2, 2', 's_add_u32 s30, s30, s3', 's_cmp_lt_u32 s30, 512', f's_cselect_b32 s96, s{P_WO}, s{P_WD}', f's_cselect_b32 s97, s{P_WO+1}, s{P_WD+1}',
              f's_cselect_b32 s98, {4*MB}, s93', 's_and_b32 s30, s30, 511', 's_lshl_b32 s30, s30, 13', f'v_lshl_add_u32 v14, v0, 7, s30']
        sc.s[300] += [f's_mov_b32 s93, {1792*1024}'] + pf[:-1]
        sc.v[300] += pf[-1:]
        sc.place('buffer_load_dword v14, v14, s[96:99], 0 offen', 302)
    gp = 256 + 6
    ne = 0
    for p in range(2):
        gp = max(gp, (p + 1) * 256 + 6)
        for rt in range(4):
            bg = rbase(p) + (rt * 2) * 8; bu = bg + 8
            last = 0
            for e in range(8):
                tm = V_T + ne % 8; ne += 1
                ops = [f'v_mul_f32 v{tm}, v{bg+e}, v{bg+e}', f'v_fmaak_f32 v{tm}, v{tm}, v{V_C2}, 0xc0135761', f'v_mul_f32 v{tm}, v{tm}, v{bg+e}',
                       f'v_exp_f32 v{tm}, v{tm}', f'v_add_f32 v{tm}, 1.0, v{tm}', f'v_rcp_f32 v{tm}, v{tm}',
                       f'v_mul_f32 v{tm}, v{tm}, v{bg+e}', f'v_mul_f32 v{bu+e}, v{tm}, v{bu+e}']
                g = gp
                for o in ops: g = sc.place(o, g) + 1
                last = max(last, g)
                gp += 9
            g = last
            for c in cvt_pairs(bu): g = sc.place(c, g)
            sreg = sHA if rt < 2 else sHB
            if p == 1 and rt % 2 == 0:
                sc.place(f's_add_u32 s{sreg}, s{sreg}, 4096', g - 8, g)
            g = sc.place(f'buffer_store_dwordx4 {V(bu,4)}, v{V_L16}, {S(R_H,4)}, s{sreg} offen offset:{(rt % 2) * 1024}{ST}', g + 1)
            assert g < (p + 2) * 256 + 220, g
    g = 768 + 34
    for f in range(8):
        b = rbase(2) + 8 * f
        for c in cvt_pairs(b): g = sc.place(c, g)
        g += 1
        for i in range(4): g = sc.place(f'v_accvgpr_write_b32 a{A_QL + 4 * f + i}, v{b + i}', g)
        g += 1
        for i in range(8): sc.place(f'v_mov_b32 v{b + i}, 0', g)
    g = 768 + 130
    g = sc.place(f'v_mov_b32 v{V_T+8}, 0x3f803f80', g) + 1
    for i in range(4): g = sc.place(f'v_accvgpr_write_b32 a{A_ONE + i}, v{V_T+8}', g)
    for i in range(16): g = sc.place(f'v_accvgpr_write_b32 a{A_L + i}, 0', g)
    sc.place(f'v_add_u32 v{V_AV}, {RING + 2 * 16384}, v{V_L16}', 768 + 130, 1000)
    for p in range(4): sc.v[256 * p + 255] += stamp(3 + p, 15)
    L += sc.emit()
    ov = sc.overflow()
    L += ['s_barrier', f'v_add_u32 v{V_LB}, {RING}, v{V_L16}', f'v_add_u32 v{V_AK}, {RING + 3 * 16384}, v{V_L16}']
    L += [f'v_mov_b32 v{V_NB + i}, 0' for i in range(16)]
    def mask_ops(X):
        o = [f'v_mov_b32 v{ntile(X,1,0) + i}, s{sNINF}' for i in range(4)]
        for kq in range(2):
            o += [f'v_cndmask_b32 v{ntile(X,kq,kq) + i}, v{ntile(X,kq,kq) + i}, v{ntile(X,1,0)}, s[{sMASK+2*i}:{sMASK+2*i+1}]' for i in range(4)]
        return o
    L += [f's_cmp_lg_u32 s{sQB}, 0', 's_cbranch_scc1 K2_NM0'] + mask_ops('B') + ['K2_NM0:']
    for f in range(4): L += cvt_pairs(192 + 8 * f)
    L += ['s_nop 0']
    ps = Sched(qk_mfmas('A', 0, True) + qk_mfmas('B', 1))
    g = 0
    for f in range(4, 8):
        for c in cvt_pairs(192 + 8 * f): g = ps.place(c, g)
    g = 0
    for x in kv_items(4): g = ps.place(x, g) + 1
    for i, r in enumerate(k_reads(V_AK)[:4]): ps.place(r, 24 + i)
    zero = [f'v_mov_b32 v{V_OB + i}, 0' for i in range(64)]
    while zero and ps.place(zero[0], 0, force=False) is not None: zero.pop(0)
    L += ps.emit() + k_reads(V_AK)[4:] + zero
    def rowmax(X, buf):
        o = []
        m = [9, 10]; tm = [11, 12]
        for qs in range(2):
            a, b = stile(buf, 0, qs), stile(buf, 1, qs)
            o += [f'v_max3_f32 v{m[qs]}, v{a}, v{a+1}, v{a+2}', f'v_max3_f32 v{tm[qs]}, v{a+3}, v{b}, v{b+1}',
                  f'v_max3_f32 v{m[qs]}, v{m[qs]}, v{b+2}, v{b+3}', f'v_max_f32 v{m[qs]}, v{m[qs]}, v{tm[qs]}']
        for sw in ('v_permlane16_swap_b32', 'v_permlane32_swap_b32'):
            o += [f'v_mov_b32 v{tm[qs]}, v{m[qs]}' for qs in range(2)] + ['s_nop 0']
            o += [f'{sw} v{m[qs]}, v{tm[qs]}' for qs in range(2)]
            o += [f'v_max_f32 v{m[qs]}, v{m[qs]}, v{tm[qs]}' for qs in range(2)]
        for qs in range(2):
            for kvt in range(2):
                o += [f'v_sub_f32 v{stile(buf,kvt,qs)+i}, v{stile(buf,kvt,qs)+i}, v{m[qs]}' for i in range(4)]
                o += [f'v_sub_f32 v{ntile(X,kvt,qs)+i}, 0, v{m[qs]}' for i in range(4)]
        return o
    L += rowmax('A', 0)
    ex, cv = sm_ops(0)
    for c in range(8):
        L += ex[2 * c:2 * c + 2]
        if c: L.append(cv[c - 1])
    L += rowmax('B', 1) + [cv[7]]
    L += [f's_mov_b32 s{sSLOT}, {5 * 16384}', f's_mov_b32 s{sM0R}, {2 * 16384}', f's_add_u32 s{sSRC}, s{sSRC}, {5 * 16384}',
          f'v_add_u32 v{V_AV}, {5 * 16384}, v{V_LB}', f'v_add_u32 v{V_AK}, {4 * 16384}, v{V_LB}',
          f's_mov_b32 s{sCNT}, s{sQB}', 'WAITVM KV0', 's_waitcnt lgkmcnt(0)']
    L = autowait(L)
    def step(qk, pv, buf, first, last, rdK, mask=None, loop=None, prevK=True):
        s_ = Sched(qk_mfmas(qk, 1 - buf) + pv_mfmas(pv, 1 - buf))
        ex, cv = sm_ops(buf)
        for i, e in enumerate(ex): s_.put(2 * i, e)
        if first:
            s_.put(0, 's_barrier')
            for i, r in enumerate(v_reads()): s_.put(1 + 2 * i, r)
            s_.put(1, f's_add_u32 m0, s{sM0B}, s{sM0R}')
            s_.put(2, f's_add_u32 s{sM0R}, s{sM0R}, 16384'); s_.put(3, f's_and_b32 s{sM0R}, s{sM0R}, 0x1ffff')
            for k in range(4):
                s_.put(5 + 8 * k, f'buffer_load_dwordx4 v{V_L16}, {S(R_KV,4)}, s{sSRC} offen offset:{k*1024} lds')
            s_.put(30, f's_add_u32 s{sSRC}, s{sSRC}, 16384')
            s_.put(17, 's_waitcnt lgkmcnt(4)')
            s_.put(25, f's_waitcnt lgkmcnt({4 if rdK else 0})')
        if prevK: s_.put(7, f's_waitcnt lgkmcnt({3 if first else 0})')
        if rdK:
            for i, r in enumerate(k_reads(rdK)): s_.put(17 + 2 * i, r)
        for c, x in enumerate(cv): s_.put(4 * c + 3, x)
        w = []
        if last:
            s_.put(27, f's_add_u32 s{sSLOT}, s{sSLOT}, 16384'); s_.put(28, f's_and_b32 s{sSLOT}, s{sSLOT}, 0x1ffff')
            s_.put(32, f'v_mov_b32 v{V_AK}, v{V_AV}'); s_.put(32, f'v_add_u32 v{V_AV}, s{sSLOT}, v{V_LB}')
            w.append('vmcnt(16)')
        if rdK: w.append('lgkmcnt(4)')
        if w: s_.put(33, 's_waitcnt ' + ' '.join(w))
        if mask:
            s_.put(19, f's_cmp_eq_u32 s{sCNT}, 1'); s_.put(20, f's_cbranch_scc1 {mask}'); s_.s[20].append(f'{mask}_RET:')
        if loop:
            s_.put(31, f's_sub_u32 s{sCNT}, s{sCNT}, 1'); s_.put(32, f's_cmp_lg_u32 s{sCNT}, 0')
            s_.s[33].append(f's_cbranch_scc1 {loop}')
        return s_.emit()
    def epilogue(X, sC):
        o = []
        r = [9, 10]
        for qs in range(2): o.append(f'v_accvgpr_read_b32 v{r[qs]}, a{lacc(X, qs)}')
        o += [f'v_max_f32 v11, v{r[0]}, v{r[1]}', f'v_add_f32 v11, v{r[0]}, v{r[1]}', f'v_cmp_ngt_f32 vcc, s{sTHR}, v11']
        o += [f'v_rcp_f32 v{r[qs]}, v{r[qs]}' for qs in range(2)]
        o += [f's_or_b64 s[{sFLAG}:{sFLAG+1}], s[{sFLAG}:{sFLAG+1}], vcc']
        for p in range(4):
            o.append(f's_add_u32 s{sT}, s{sC}, {p * 4096}')
            for qs in range(2):
                b = otile(X, 2 * p, qs)
                o += [f'v_mul_f32 v{b+i}, v{b+i}, v{r[qs]}' for i in range(8)] + cvt_pairs(b)
                o.append(f'buffer_store_dwordx4 {V(b,4)}, v{V_L16}, {S(R_A3,4)}, s{sT} offen offset:{qs * 1024}{ST}')
        return o
    L += stamp(7, 15)
    L += [f's_cmp_eq_u32 s{sCNT}, 0', 's_cbranch_scc1 K2_TB', '.p2align 3', 'K2_DUAL:']
    L += step('A', 'A', 1, True, False, None, mask='K2_MB')
    L += step('B', 'B', 0, False, True, V_AK, loop='K2_DUAL', prevK=False)
    L += ['K2_TB:'] + stamp(8, 15)
    L += step('A', 'A', 1, True, False, V_AK)
    L += step('A', 'B', 0, False, True, V_AV)
    L += [f's_lshl_b32 s30, s{sJ}, 2', f's_sub_u32 s{sCNT}, 29, s30']
    L += stamp(9, 15) + epilogue('B', sCB) + stamp(10, 15)
    L += ['.p2align 3', 'K2_SINGLE:']
    L += step('A', 'A', 1, True, True, V_AV, mask='K2_MA')
    L += step('A', 'A', 0, True, True, V_AV, loop='K2_SINGLE')
    L += stamp(11, 15) + ['s_barrier'] + v_reads()
    ex, cv = sm_ops(1)
    L += ex[0:4] + cv[0:2]
    f1 = Sched(pv_mfmas('A', 0))
    f1.put(1, 's_waitcnt lgkmcnt(4)'); f1.put(9, 's_waitcnt lgkmcnt(0)')
    g = 0
    for c in range(2, 8):
        f1.put(g, ex[2 * c]); f1.put(g + 1, ex[2 * c + 1]); f1.put(g + 2, cv[c]); g += 3
    f1.put(12, f's_add_u32 s{sSLOT}, s{sSLOT}, 16384'); f1.put(13, f's_and_b32 s{sSLOT}, s{sSLOT}, 0x1ffff')
    f1.put(14, f'v_add_u32 v{V_AV}, s{sSLOT}, v{V_LB}')
    f1.put(15, 's_waitcnt vmcnt(12)'); f1.put(16, 's_barrier')
    L += f1.emit() + v_reads(A_K)
    f2 = Sched(pv_mfmas('A', 1, A_K))
    for dt in range(8): f2.put(1 + 2 * dt, f's_waitcnt lgkmcnt({7 - dt})')
    L += f2.emit()
    L += ['s_waitcnt vmcnt(0)', f's_sub_u32 s{sCNT}, 3, s3', 'K2_XB:', f's_cmp_eq_u32 s{sCNT}, 0', 's_cbranch_scc1 K2_XBD',
          's_barrier', f's_sub_u32 s{sCNT}, s{sCNT}, 1', 's_branch K2_XB', 'K2_XBD:']
    L += stamp(12, 15) + epilogue('A', sCA) + stamp(13, 15) + stamp_out(1, 15, 14)
    L += ['K2_END:', 's_endpgm']
    L += ['K2_MB:'] + mask_ops('B') + ['s_branch K2_MB_RET']
    L += ['K2_MA:'] + mask_ops('A') + ['s_branch K2_MA_RET']
    return L, ov

def gen_k3(code_bytes):
    nm = 'k3_kernel'
    L = entry(nm, 'K3_END', code_bytes) + stamp(0, 3)
    R_A3, R_WD, R_WO, R_X, R_OUT = 32, 36, 40, 44, 48
    sRB, sCB, sAH, sAC, sWD, sWO, sM0, sT, sT1, sO = 60, 61, 62, 63, 64, 65, 66, 67, 68, 69
    V_XR, V_OA_, V_WB3, V_AC3 = 24, 12, 64, 128
    L += srd_off(R_A3, P_WS, P_WS + 1, WS_A3, A3_SZ) + srd(R_WD, P_WD, P_WD + 1, 1792 * 1024) + srd(R_WO, P_WO, P_WO + 1, 4 * MB)
    L += ['s_and_b32 s30, s2, 7', 's_lshl_b32 s30, s30, 2', 's_bfe_u32 s31, s2, 0x20003', f's_add_u32 s{sRB}, s30, s31', f's_lshr_b32 s{sCB}, s2, 5',
          f's_mul_i32 s30, s{sRB}, {184 * 4096}', f's_mul_i32 s31, s3, {14 * 4096}', f's_add_u32 s{sAH}, s30, s31',
          's_lshl_b32 s31, s3, 17', 's_add_u32 s30, s30, s31', f's_add_u32 s{sAC}, s30, {56 * 4096}',
          f's_lshl_b32 s30, s{sCB}, 7', f's_mul_i32 s31, s3, {14 * 32768}', f's_add_u32 s{sWD}, s30, s31',
          's_lshl_b32 s31, s3, 20', f's_add_u32 s{sWO}, s30, s31', f's_mul_i32 s{sM0}, s3, 40960',
          f'v_lshlrev_b32 v{V_L16}, 4, v0']
    t = 16
    L += [f'v_lshrrev_b32 v{t}, 3, v0', f'v_lshlrev_b32 v{t}, 10, v{t}', f'v_lshrrev_b32 v{t+1}, 4, v0', f'v_lshlrev_b32 v{t+1}, 1, v{t+1}',
          f'v_and_b32 v{t+2}, 7, v0', f'v_xor_b32 v{t+1}, v{t+1}, v{t+2}', f'v_lshl_add_u32 v{V_WD}, v{t+1}, 4, v{t}',
          f'v_lshl_add_u32 v{V_OA_}, v{t+2}, 4, v{t}']
    for i in range(1, 4):
        L.append(f'v_add_u32 v{V_WD+i}, {i * 7168}, v{V_WD}')
    NSS = 23
    def w_items(ss):
        it = []
        for k in range(2):
            r, base, ks = (R_WD, sWD, 2 * ss + k) if ss < 7 else (R_WO, sWO, 2 * (ss - 7) + k)
            it += [f's_add_u32 m0, s{sM0}, {(ss % 5) * 8192 + k * 4096}', f's_add_u32 s{sT}, s{base}, {ks * 32768}']
            it += [f'buffer_load_dwordx4 v{V_WD+i}, {S(r,4)}, s{sT} offen offset:{i*1024} lds ; @W{ss}' for i in range(4)]
        return it
    def af(ss, k, rt):
        return A((ss % 4) * 32 + (k * 4 + rt) * 4, 4)
    def a_items(ss):
        it = []
        for k in range(2):
            base, ks = (sAH, 2 * ss + k) if ss < 7 else (sAC, 2 * (ss - 7) + k)
            it += [f's_add_u32 s{sT1}, s{base}, {ks * 4096}']
            it += [f'buffer_load_dwordx4 {af(ss, k, rt)}, v{V_L16}, {S(R_A3,4)}, s{sT1} offen offset:{rt*1024}{LD}' for rt in range(4)]
        return it
    L += w_items(0) + a_items(0) + w_items(1) + a_items(1) + w_items(2) + a_items(2) + w_items(3)
    L += srd(R_X, P_X, P_X + 1, 2 * MB) + srd(R_OUT, P_OUT, P_OUT + 1, 2 * MB)
    L += [f's_lshl_b32 s30, s{sRB}, 2', 's_add_u32 s30, s30, s3', 's_lshl_b32 s30, s30, 14', f's_lshl_b32 s31, s{sCB}, 7', f's_add_u32 s{sO}, s30, s31',
          f's_add_u32 s{sO+1}, s{sO}, 8192']
    L += [f'v_lshrrev_b32 v{t}, 2, v0', f'v_bfe_u32 v{t+1}, v0, 3, 2', f'v_lshlrev_b32 v{t}, 7, v{t}', f'v_and_b32 v{t+2}, 3, v0',
          f'v_lshl_add_u32 v{t}, v{t+2}, 3, v{t}', f'v_add_u32 v{t}, s{sM0}, v{t}']
    for ct in range(4):
        L += [f'v_xor_b32 v{t+2}, {ct}, v{t+1}', f'v_lshl_add_u32 v{V_TR+ct}, v{t+2}, 5, v{t}']
    def wf(ss, ct, k):
        return V_WB3 + (ss % 2) * 32 + (ct * 2 + k) * 4
    def tr_reads(ss):
        return [f'ds_read_b64_tr_b16 {V(wf(ss, ct, k) + 2 * hf, 2)}, v{V_TR+ct} offset:{(ss % 5) * 8192 + k * 4096 + hf * 2048}'
                for ct in range(4) for k in range(2) for hf in range(2)]
    L += stamp(1, 3) + ['WAITVM W0'] + stamp(2, 3) + tr_reads(0)
    mf = []
    for ss in range(NSS):
        for ct in range(4):
            for rt in range(4):
                acc = V(V_AC3 + (rt * 4 + ct) * 4, 4)
                for k in range(2):
                    mf.append(mfma(acc, V(wf(ss, ct, k), 4), af(ss, k, rt), '0' if (ss == 0 and k == 0) else acc))
    sc = Sched(mf)
    for ss in range(NSS):
        g0 = 32 * ss
        if ss + 1 < NSS:
            sc.put(g0, f'WAITVM W{ss+1}')
            for i, r in enumerate(tr_reads(ss + 1)): sc.put(g0 + 2 * i + 1, r)
        it = (w_items(ss + 4) if ss + 4 < NSS else []) + (a_items(ss + 3) if ss + 3 < NSS else [])
        g = g0 + 1
        for x in it:
            g = sc.place(x, g, vmspace=0) + 1
            if kind_of(x) == 'm' and x.endswith(('1024', '1024 lds ; @W%d' % (ss + 4))): g += 1
        assert g <= g0 + 33, (ss, g)
    g0 = 32 * 20
    sc.put(g0 + 2, f'buffer_load_dwordx4 {V(V_XR,4)}, v{V_OA_}, {S(R_X,4)}, s{sO} offen')
    sc.put(g0 + 6, f'buffer_load_dwordx4 {V(V_XR+4,4)}, v{V_OA_}, {S(R_X,4)}, s{sO+1} offen')
    red = [f'v_lshrrev_b32 v{t}, 4, v0', f'v_mul_u32_u24 v{t}, 288, v{t}', f'v_and_b32 v{t+1}, 15, v0', f'v_lshl_add_u32 v{t}, v{t+1}, 4, v{t}',
           f'v_add_u32 v{t}, s{sM0}, v{t}',
           f'v_and_b32 v{t+1}, 7, v0', f'v_mul_u32_u24 v{t+1}, 576, v{t+1}', f'v_lshrrev_b32 v{t+2}, 3, v0', f'v_lshl_add_u32 v{t+1}, v{t+2}, 4, v{t+1}',
           f's_mul_i32 s30, s3, 4608', f'v_add_u32 v{t+1}, s30, v{t+1}', f'v_add_u32 v{t+2}, 81920, v{t+1}']
    g = 32 * 21
    for x in red: g = sc.place(x, g) + 1
    for i, ss in enumerate((0, 3, 6, 10, 14, 18, 22)): sc.v[32 * ss + 31] += stamp(3 + i, 3)
    L += sc.emit()
    L += ['s_nop 4']
    order = [(rt, ct) for ct in range(4) for rt in range(4)]
    L += [f'ds_write_b128 v{t}, {V(V_AC3 + (rt * 4 + ct) * 4, 4)} offset:{(rt * 4 + ct) * 1152}' for rt, ct in order]
    X = 32
    for i in range(8):
        L += [f'v_lshlrev_b32 v{X+2*i}, 16, v{V_XR+i}', f'v_and_b32 v{X+2*i+1}, 0xffff0000, v{V_XR+i}']
    L += ['s_waitcnt lgkmcnt(0)', 's_barrier']
    for s_ in range(2):
        for src in range(4):
            for gg in range(2):
                L.append(f'ds_read_b128 {V(64 + ((s_ * 4 + src) * 2 + gg) * 4, 4)}, v{t + 1 + src // 2} offset:{(src % 2) * 40960 + gg * 288 + s_ * 128}')
    for s_ in range(2):
        b = 64 + s_ * 32
        for i in range(8):
            L += [f'v_add_f32 v{b+i}, v{b+i}, v{b+8+i}']
        for i in range(8):
            L += [f'v_add_f32 v{b+16+i}, v{b+16+i}, v{b+24+i}']
        for i in range(8):
            L += [f'v_add_f32 v{b+i}, v{b+i}, v{b+16+i}']
        for i in range(8):
            L += [f'v_add_f32 v{b+i}, v{b+i}, v{X+8*s_+i}']
        L += cvt_pairs(b)
        L += [f'buffer_store_dwordx4 {V(b,4)}, v{V_OA_}, {S(R_OUT,4)}, s{sO+s_} offen']
    L += stamp(10, 3) + stamp_out(2, 3, 11)
    L += ['K3_END:', 's_endpgm']
    return autowait(L), sc.overflow()

def build(kernels):
    hdr = open('cdna_kernels/' + NAME + '.s.ref').read().split('; Override launch')[0]
    out = hdr
    for k, _ in kernels:
        out += f'; @launch kernel={k} grid=(256,1,1) block=(256,1,1) lds={LDS_SZ}\n'
    out += '.amdgcn_target "amdgcn-amd-amdhsa--gfx950"\n.text\n'
    for k, lines in kernels:
        out += fmt(lines) + '\n'
    out += '.section .rodata,"a"\n'
    for k, _ in kernels:
        out += '.p2align 6\n' + kdesc(k) + '\n'
    return out

def sizes(path):
    import subprocess
    subprocess.run(['clang', '-x', 'assembler', '-target', 'amdgcn-amd-amdhsa', '-mcpu=gfx950', '-c', path, '-o', '_gen.o'], check=True)
    o = subprocess.run(['llvm-objdump', '-t', '_gen.o'], capture_output=True, text=True).stdout
    sym = {l.split()[-1]: int(l.split()[0], 16) for l in o.splitlines() if '.text' in l and len(l.split()) >= 5}
    return sym

if __name__ == '__main__':
    path = sys.argv[1] if len(sys.argv) > 1 else 'out.s'
    for a in sys.argv[2:]:
        k, v = a.split('=')
        globals()[k] = eval(v)
    gens = [('k1_kernel', gen_k1, 'K1_END'), ('k2_kernel', gen_k2, 'K2_END'), ('k3_kernel', gen_k3, 'K3_END')]
    cb = {k: 4096 for k, _, _ in gens}
    for it in range(2):
        ks = []
        for k, f, e in gens:
            lines, ov = f(cb[k])
            ks.append((k, lines))
            if it: print(k, 'overflow', ov, 'lines', len(lines), 'bytes', cb[k], file=sys.stderr)
        open(path, 'w').write(build(ks))
        sym = sizes(path)
        cb = {k: (sym[e] - sym[k] - 64) & ~63 for k, _, e in gens}
```

```python
import sys, re
from asmlib import *
import gen as G
from gen import (NAME, MB, V_L16, V_TR, V_WD, V_AD, V_AR, V_T, V_WB, V_ACC, V_R, QSCALE, w_dma_voff, tr_addrs, areg, rbase,
                 Passes, cvt_pairs, V_AV, V_AK, V_LB, V_E, V_NB, V_P, V_NA, V_OB, V_OA, A_QL, A_K, A_V, A_ONE, A_L, RING, NINF,
                 qfrag, stile, otile, ntile, lacc, qk_mfmas, pv_mfmas, sm_ops, k_reads, v_reads)

WS_XN, WS_KV, WS_A3, WS_FLG, WS_W3, WS_X, WS_PROF = 0, 2 * MB, 34 * MB, 57 * MB, 58 * MB, 64 * MB, 80 * MB
LDS_SZ = 163840
ST = ' sc1'
LD = ' sc1'
PROF = False
ROT1 = 1
ROT2 = 1
ALEAD = 3
LNAT = 80
W4AT = 94
SIGD = 90
PKAT = (1905, 8)
XLATE = 0
TOUCHG = 0
RING8 = 1
KVSP = 20
KV0 = 1860
EXP = ()
ALN = 5
EPD = 0
S4P = 5
S4S = 2
LATE = ()
WAT = {2: 34, 3: 80, 4: 128, 5: 222, 6: 276, 7: 296, 8: 316, 9: 410, 10: 452, 11: 500, 12: 370, 13: 540, 14: 580, 15: 660, 16: 615,
       17: 700, 18: 740, 19: 775, 20: 1105, 21: 1165, 22: 1225, 23: 1285, 24: 1345, 25: 1405, 26: 1465, 27: 1525, 28: 1585, 29: 1645, 30: 1705, 31: 1765}
UORD = 'a0 b0 a1 a2 b1 a3 a4 b2 a5 a6 b3 a7 b4 b5 b6 b7'
AAT = {2: 4, 3: 52, 4: 96, 5: 150, 6: 192, 7: 246}
ARD = {1: 32, 2: 80, 3: 136, 4: 176, 5: 232, 6: 272, 7: 328}
XAT = 0
STO = ''
PKOP = 1
CNT = 0
STKV = ' sc1'
WBD = 200
MAP1 = 0
S0AT = 220
S1AT = 700
VS0 = 2
PKT = [1256, 1306, 1356, 1406, 1481, 1531, 1581, 1631]
W4T = 0
GSP = 7.0
GCAP = (1,)
HAT = (1700, 28)
WB = (1105, 60)
XSP = 4.6
KVAT = [(392, 24), (584, 24), (1125, 14), (1255, 22)]
BIGOFF = 0x7fffff00
SPIN = 1 << 16
PGAPS = [256 * p + 255 for p in range(8)]

R_X, R_CKV, R_WQ, R_WK, R_WV, R_W3, R_WG, R_WU, R_OUT, R_DBG, R_WS, R_KV, R_TMP = 4, 8, 12, 16, 20, 24, 28, 32, 36, 40, 44, 48, 52
sT, sT1, sT2, sU, sV, sK = 56, 57, 58, 59, 60, 61
sM0W, sJ, sH = 62, 63, 64
sA, sW1, sM0A, sKVO, sXO, sXN, sQS, sF2P = 65, 66, 67, 68, 69, 70, 71, 72
sDH, sDC, sKQ, sXS, sO, sXI, sF4C, sM0O = 65, 66, 67, 68, 69, 70, 71, 72
sXA, sXB, sWQ, sWG, sHA, sHB, sPS, sPD = 73, 74, 75, 76, 77, 78, 79, 80
sSLOT, sM0R, sCNT, sNINF, sTHR = 73, 74, 75, 76, 77
sCA, sCB, sSRC, sM0B, sQB, sFLAG, sMASK, sFX, sSPIN = 81, 82, 83, 84, 85, 86, 88, 96, 97
sROT, sROT2 = 0, 1
sM0P = 52
sKR, sRA, sRW = 79, 53, 54
sWP = 53
sGW, sGA = 0, 1
sSPARE = sW0 = sM0B
V_SIG, V_POLL, V_PROF = 14, 13, 15

DIAG = None
def stamp(k, vp=V_PROF, fine=False):
    if PROF == 2:
        if k not in (0, 24): return []
        k = min(k, 1)
    if len(PGAPS) > 8 and k > 2 and not fine:
        if k != 24: return []
        k = 3 + len(PGAPS)
    if DIAG == k: return ['s_memrealtime s[98:99]', 's_waitcnt lgkmcnt(0)']
    if not PROF: return []
    o = [f'v_mov_b32 v{vp}, 0'] if k == 0 else []
    return o + ['s_memrealtime s[98:99]', 's_memtime s[100:101]', 's_waitcnt lgkmcnt(0)', f'v_writelane_b32 v{vp}, s98, {2*k}', f'v_writelane_b32 v{vp}, s100, {2*k+1}']

def chain(sc, ops, g, hi=None):
    prev = None
    for o in ops:
        if isinstance(o, int):
            g += o; continue
        k = kind_of(o)
        if prev is not None and not (k == 'v' and prev == 'v'): g += 1
        g = sc.place(o, g, hi)
        prev = k
    return g + 1

def PK_(ops):
    return packify(ops) if PKOP else ops

def wsrd(r):
    return S(r, 4)

def gen_fused(code_bytes):
    nm = NAME + '_kernel'
    OOL = []
    uord = [('ab'.index(x[0]), int(x[1])) for x in UORD.split()]
    assert ROT1
    L = [f'.globl {nm}', '.p2align 8', f'.type {nm},@function', f'{nm}:', 's_cmp_ge_u32 s2, 256', 's_cbranch_scc1 K_END']
    if DIAG == -1: L += ['s_memrealtime s[98:99]']
    for r, off in ((R_CKV, 8), (R_WK, 24), (R_X, 0), (R_WQ, 16), (R_WV, 32), (R_W3, 40), (R_WG, 56), (R_WU, 64), (R_KV, 72), (R_OUT, 80), (R_DBG, 88), (R_WS, 96)):
        L.append(f's_load_dwordx2 s[{r}:{r+1}], s[0:1], {off}')
    L += [f's_getpc_b64 s[{R_TMP}:{R_TMP+1}]', f's_mov_b32 s{R_TMP+2}, {code_bytes}', f's_mov_b32 s{R_TMP+3}, 0x20000',
          f's_lshr_b32 s{sU}, s2, 3', f's_lshl_b32 s{sV}, s{sU}, 12', f'v_lshl_add_u32 v1, v0, 4, s{sV}',
          f'buffer_load_dword v2, v1, {wsrd(R_TMP)}, 0 offen',
          f'v_lshl_add_u32 v18, s2, 8, v0',
          f'v_cmp_eq_u32 vcc, 0, v0', f'v_mov_b32 v19, {BIGOFF:#x}',
          'v_lshrrev_b32 v1, 6, v0', 'v_and_b32 v0, 63, v0', 'v_readfirstlane_b32 s3, v1', 'v_cndmask_b32 v19, v19, v0, vcc']
    for r, sz in ((R_CKV, 2 * MB), (R_WK, 4 * MB), (R_X, 2 * MB), (R_WQ, 4 * MB), (R_WV, 4 * MB), (R_WG, 512 * 3584), (R_WU, 512 * 3584),
                  (R_OUT, 2 * MB), (R_DBG, 256), (R_WS, 80 * MB)):
        L += [f's_mov_b32 s{r+2}, {sz:#x}', f's_mov_b32 s{r+3}, 0x20000']
    sRB, sH1 = sT1, sT2
    L += [f's_and_b32 s{sU}, s2, 1', f's_lshl_b32 s{sU}, s{sU}, 2', f's_bfe_u32 s{sV}, s2, 0x20003', f's_add_u32 s{sRB}, s{sU}, s{sV}',
          f's_bfe_u32 s{sU}, s2, 0x20001', f's_add_u32 s{sCA}, s{sU}, s{sV}', f's_lshl_b32 s{sU}, s{sU}, 3', f's_lshr_b32 s{sV}, s2, 5', f's_add_u32 s{sH1}, s{sU}, s{sV}']
    if MAP1:
        L = L[:-9] + [f's_lshr_b32 s{sRB}, s2, 5', f's_and_b32 s{sU}, s2, 7', f's_add_u32 s{sCA}, s{sU}, s{sRB}', f's_lshl_b32 s{sU}, s{sU}, 2',
                      f's_bfe_u32 s{sV}, s2, 0x20003', f's_add_u32 s{sH1}, s{sU}, s{sV}']
        if MAP1 == 2: L += [f's_add_u32 s{sCA}, s{sV}, s{sRB}']
    L += [f's_lshl_b32 s{sU}, s{sRB}, 2', f's_add_u32 s{sU}, s{sU}, s3', f's_lshl_b32 s{sA}, s{sU}, 16',
          f's_lshl_b32 s{sV}, s{sH1}, 20', f's_lshl_b32 s{sU}, s{sU}, 15', f's_add_u32 s{sKVO}, s{sU}, s{sV}', f's_add_u32 s{sKVO}, s{sKVO}, {WS_KV:#x}',
          f's_lshl_b32 s{sU}, s3, 18', f's_lshl_b32 s{sV}, s{sH1}, 8', f's_add_u32 s{sW1}, s{sU}, s{sV}',
          f's_and_b32 s{sU}, s{sU}, 0x40000', f's_add_u32 s{sW0}, s{sU}, s{sV}', f's_lshr_b32 s{sWP}, s3, 1', f's_lshl_b32 s{sU}, s{sCA}, 20', f's_add_u32 s{sW0}, s{sW0}, s{sU}',
          f's_lshl_b32 s{sM0W}, s3, 12', f's_lshl_b32 s{sM0A}, s3, 14', f's_add_u32 s{sM0A}, s{sM0A}, 65536',
          f's_lshl_b32 s{sF2P}, s{sH1}, 7', f's_add_u32 s{sF2P}, s{sF2P}, {WS_FLG:#x}']
    t = V_T + 4
    L += [f'v_lshrrev_b32 v{t}, 3, v0', f'v_lshlrev_b32 v{t}, 10, v{t}',
          f'v_lshrrev_b32 v{t+1}, 4, v0', f'v_and_b32 v{t+2}, 7, v0', f'v_xor_b32 v{t+1}, v{t+1}, v{t+2}', f'v_xor_b32 v{t+2}, 4, v{t+1}',
          f'v_lshl_add_u32 v{t+1}, v{t+1}, 4, v{t}', f'v_lshl_add_u32 v{t+2}, v{t+2}, 4, v{t}']
    for i in range(4):
        L.append(f'v_add_u32 v{V_AD+i}, {i * 8192 - i * 1024}, v{t + 1 + (i & 1)}')
    L += w_dma_voff(V_WD, 8192, t)
    L += ['s_waitcnt lgkmcnt(0)', f's_mov_b32 s{sROT}, s{sCA}' if ROT1 else f's_mov_b32 s{sROT}, 0'] + stamp(0, 39)
    def rot_off(dst, rot, i, mul, base, add):
        o = [f's_add_u32 s{dst}, s{rot}, {i}', f's_and_b32 s{dst}, s{dst}, 3', f's_mul_i32 s{dst}, s{dst}, {mul}', f's_add_u32 s{dst}, s{dst}, s{base}']
        return o + ([f's_add_u32 s{dst}, s{dst}, {add}'] if add else [])
    def a_items(c):
        it = []
        for hf in range(2):
            it += rot_off(sT, sROT, c // 2, 256, sA, (c % 2) * 128) if hf == 0 else [f's_add_u32 s{sT}, s{sT}, 32768']
            it += [f's_add_u32 m0, s{sM0A}, {(c % 2) * 8192 + hf * 4096}', 's_nop 0']
            it += [f'buffer_load_dwordx4 v{V_AD+i}, {wsrd(R_CKV)}, s{sT} offen offset:{i*1024} lds ; @A{c}' for i in range(4)]
        return it
    V_GD = (30, 31, 16, 17)
    def half(p):
        return 65536 if (p >= 3 and p % 2 == 1) else 0
    def w_items(st):
        p, s4 = st // 4, st % 4
        lo = half(p) + s4 * 16384
        if p in (4, 5):
            it = [f's_add_u32 m0, s{sM0W}, {lo}'] + rot_off(sT, sROT2, s4, 128 * 3584, sWG, 0)
            return it + [f'buffer_load_dwordx4 v{V_GD[i]}, {wsrd(R_WG if p == 4 else R_WU)}, s{sT} offen offset:{i*1024} lds ; @W{st}' for i in range(4)]
        if p < 2:
            (h0, c0), (h1, c1) = uord[2 * st], uord[2 * st + 1]
            it = [f's_add_u32 m0, s{sM0W}, {lo}', f's_mul_i32 s{sT}, s{sWP}, {((c1 - c0) % 8) * 64 * 8192 + (h1 - h0) * 128}',
                  f's_add_u32 s{sT}, s{sT}, {c0 * 64 * 8192 + h0 * 128}', f's_add_u32 s{sT}, s{sT}, s{sW0}', f's_and_b32 s{sT}, s{sT}, {4 * MB - 1:#x}']
            return it + [f'buffer_load_dwordx4 v{V_WD+i}, {wsrd(R_WK)}, s{sT} offen offset:{i*1024} lds ; @W{st}' for i in range(4)]
        r, so = (R_WK, sW1) if p < 2 else (R_WV, sW1) if p < 4 else (R_WQ, sWQ)
        it = [f's_add_u32 m0, s{sM0W}, {lo}'] + rot_off(sT, sROT if p < 4 else sROT2, s4, 128 * 8192, so, (p % 2) * 128)
        it += [f'buffer_load_dwordx4 v{V_WD+i}, {wsrd(r)}, s{sT} offen offset:{i*1024} lds ; @W{st}' for i in range(4)]
        return it
    L += a_items(0) + w_items(0)
    if W4T: L += ['v_lshrrev_b32 v29, 1, v0', 'v_lshlrev_b32 v29, 13, v29', f'buffer_load_dword v29, v29, {wsrd(R_WK)}, s{sT} offen offset:128']
    L += [f'v_lshlrev_b32 v{V_L16}, 4, v0', f's_mov_b32 s{sQS}, {QSCALE:#x}']
    L += tr_addrs(V_TR, t)
    L += [f'v_and_b32 v{t}, 15, v0', f'v_lshrrev_b32 v{t+1}, 1, v{t}', f'v_lshrrev_b32 v{t+2}, 4, v0', f'v_xor_b32 v{t+1}, v{t+1}, v{t+2}',
          f'v_lshlrev_b32 v{t}, 7, v{t}', f'v_add_u32 v{t}, s{sM0A}, v{t}',
          f'v_lshl_add_u32 v{V_AR}, v{t+1}, 4, v{t}', f'v_xor_b32 v{V_AR+1}, 64, v{V_AR}']
    L += [f's_lshl_b32 s{sU}, s2, 2', f's_add_u32 s{sU}, s{sU}, s3', f's_lshl_b32 s{sXO}, s{sU}, 11',
          f's_lshr_b32 s{sU}, s2, 2', f's_lshl_b32 s{sXN}, s{sU}, 15', f's_bfe_u32 s{sU}, s2, 0x10001', f's_lshl_b32 s{sU}, s{sU}, 10',
          f's_add_u32 s{sXN}, s{sXN}, s{sU}', f's_and_b32 s{sU}, s2, 1', f's_lshl_b32 s{sU}, s{sU}, 7', f's_add_u32 s{sXN}, s{sXN}, s{sU}',
          f's_lshl_b32 s{sU}, s3, 13', f's_add_u32 s{sXN}, s{sXN}, s{sU}']
    sQA = sK
    L += [f's_and_b32 s{sU}, s2, 7', f's_lshl_b32 s{sU}, s{sU}, 2', f's_bfe_u32 s{sV}, s2, 0x20003', f's_add_u32 s{sH}, s{sU}, s{sV}',
          f's_lshr_b32 s{sJ}, s2, 5', f's_lshl_b32 s{sU}, s{sJ}, 2', f's_add_u32 s{sQB}, s{sU}, s3',
          f's_sub_u32 s{sV}, 60, s{sU}', f's_add_u32 s{sQA}, s{sV}, s3',
          f's_lshl_b32 s{sXA}, s{sQA}, 15', f's_lshl_b32 s{sXB}, s{sQB}, 15',
          f's_lshl_b32 s{sU}, s3, 18', f's_lshl_b32 s{sV}, s{sH}, 8', f's_add_u32 s{sWQ}, s{sU}, s{sV}',
          f's_add_u32 s{sV}, s{sH}, 1', f's_lshr_b32 s{sV}, s{sV}, 3', f's_sub_u32 s{sV}, s{sH}, s{sV}', f's_lshl_b32 s{sV}, s{sV}, 7', f's_mul_i32 s{sU}, s3, {32 * 3584}', f's_add_u32 s{sWG}, s{sU}, s{sV}']
    for q, hh, cc in ((sQA, sHA, sCA), (sQB, sHB, sCB)):
        L += [f's_lshr_b32 s{sU}, s{q}, 1', f's_mul_i32 s{sU}, s{sU}, {184 * 4096}', f's_and_b32 s{sV}, s{q}, 1', f's_lshl_b32 s{sV}, s{sV}, 11',
              f's_add_u32 s{sU}, s{sU}, s{sV}', f's_add_u32 s{sU}, s{sU}, {WS_A3:#x}', f's_add_u32 s{sV}, s{sH}, 1', f's_lshr_b32 s{sV}, s{sV}, 3', f's_sub_u32 s{sV}, s{sH}, s{sV}', f's_lshl_b32 s{sV}, s{sV}, 13', f's_add_u32 s{hh}, s{sU}, s{sV}',
              f's_lshl_b32 s{sV}, s{sH}, 14', f's_add_u32 s{sU}, s{sU}, s{sV}', f's_add_u32 s{cc}, s{sU}, {56 * 4096}']
    L += ['s_cmp_lt_u32 s2, 56', f's_cselect_b32 s{R_W3}, s{R_KV}, s{R_W3}', f's_cselect_b32 s{R_W3+1}, s{R_KV+1}, s{R_W3+1}',
          f's_cselect_b32 s{sU}, 0, 56', f's_mov_b32 s{sV}, {4*MB:#x}', f's_cselect_b32 s{R_W3+2}, {1792*1024:#x}, s{sV}', f's_mov_b32 s{R_W3+3}, 0x20000',
          f's_min_u32 s{sV}, s2, 183', f's_sub_u32 s{sU}, s{sV}, s{sU}', f's_lshl_b32 s{sU}, s{sU}, 15', f's_lshl_b32 s{sPS}, s3, 8', f's_add_u32 s{sPS}, s{sPS}, s{sU}',
          f's_lshl_b32 s{sV}, s{sV}, 12', f's_mul_i32 s{sU}, s3, {2 * 184 * 4096}', f's_add_u32 s{sPD}, s{sU}, s{sV}', f's_add_u32 s{sPD}, s{sPD}, {WS_W3:#x}']
    L += [f's_lshl_b32 s{sU}, s{sH}, 20', f's_add_u32 s{sU}, s{sU}, {WS_KV:#x}', f's_add_u32 s{R_KV}, s{R_WS}, s{sU}', f's_addc_u32 s{R_KV+1}, s{R_WS+1}, 0',
          f's_lshl_b32 s{sU}, s{sJ}, 16', f's_sub_u32 s{R_KV+2}, 0x100000, s{sU}', f's_mov_b32 s{R_KV+3}, 0x20000',
          's_cmp_lt_u32 s3, 2', f's_cselect_b32 s{sU}, 0xc000, 0', f's_add_u32 s{sSRC}, s{sU}, s{sM0W}',
          f's_mov_b64 s[{sFLAG}:{sFLAG+1}], 0']
    if TOUCHG:
        L += ['s_bitcmp1_b32 s3, 0', f's_cselect_b32 s{R_TMP}, s{R_WU}, s{R_WG}', f's_cselect_b32 s{R_TMP+1}, s{R_WU+1}, s{R_WG+1}', f's_mov_b32 s{R_TMP+2}, s{R_WG+2}',
              f's_lshl_b32 s{sU}, s{sJ}, 1', f's_lshr_b32 s{sV}, s3, 1', f's_add_u32 s{sU}, s{sU}, s{sV}', f's_mul_i32 s{sU}, s{sU}, {32 * 3584}',
              f's_add_u32 s{sV}, s{sH}, 1', f's_lshr_b32 s{sV}, s{sV}, 3', f's_sub_u32 s{sV}, s{sH}, s{sV}', f's_lshl_b32 s{sV}, s{sV}, 7', f's_add_u32 s{sFX}, s{sU}, s{sV}']
    L += [f's_mov_b32 s{sROT2}, s{sJ}' if ROT2 else f's_mov_b32 s{sROT2}, 0',
          'v_cmp_gt_u32 vcc, 64, v18', 'v_lshlrev_b32 v20, 7, v0', f'v_mov_b32 v21, {BIGOFF:#x}', 'v_cndmask_b32 v20, v21, v20, vcc',
          'v_cmp_eq_u32 vcc, 0, v18', 'v_mov_b32 v22, 0', 'v_mov_b32 v23, 1', 'v_cndmask_b32 v21, v21, v22, vcc',
          'v_lshrrev_b32 v18, 1, v0', 'v_mul_u32_u24 v18, 3584, v18', f'v_add_u32 v18, s{sFX}, v18',
          f's_mov_b32 s{sFX}, {WS_FLG:#x}', f's_mov_b32 s{sSPIN}, {WS_FLG + 8192:#x}']
    L += [f'v_lshrrev_b32 v{t}, 4, v0', f'v_lshlrev_b32 v{t}, 2, v{t}', f'v_and_b32 v{t+1}, 15, v0']
    for i in range(4):
        L += [f'v_add_u32 v{t+2}, {i}, v{t}', f'v_cmp_gt_u32 s[{sMASK+2*i}:{sMASK+2*i+1}], v{t+2}, v{t+1}']
    V_C2 = 3
    L += [f'v_mov_b32 v{V_C2}, 0xbdd2d3e8']
    XR, X = 64, 72
    L += [f'v_lshrrev_b32 v{t}, 5, v0', f'v_and_b32 v{t+1}, 31, v0', f'v_lshlrev_b32 v{t+1}, 4, v{t+1}', f'v_lshl_add_u32 v{t+2}, v{t}, 10, v{t+1}',
          ]
    xld = [f'buffer_load_dwordx4 {V(XR, 4)}, v{t+2}, {wsrd(R_X)}, s{sXO} offen', f'buffer_load_dwordx4 {V(XR+4, 4)}, v{t+2}, {wsrd(R_X)}, s{sXO} offen offset:512']
    zst = [f'buffer_store_dword v22, v20, {wsrd(R_WS)}, s{sFX} offen sc1 ; @Z', f'buffer_store_dword v22, v20, {wsrd(R_WS)}, s{sSPIN} offen sc1 ; @Z']
    L += w_items(1) + a_items(1)
    P = Passes(['T', 'T', 'N', 'N', 'T', 'T', 'T', 'T'], uord)
    sc = P.sc
    qa = qk_mfmas('A', 0, True)
    sc.extend([qa[i] for i in (0, 1, 2, 4, 5, 6, 3, 7)] + qa[8:] + qk_mfmas('B', 1))
    sc.put(2030, 'WAITVM HS'); sc.s[2030].append('s_waitcnt lgkmcnt(0)'); sc.put(2031, 's_barrier')
    def barg(st):
        return 8 * (8 * (st - 1) + 5) + 7
    def a_reads(c):
        return [f'ds_read_b128 {areg(2*c + k, rt)}, v{V_AR + k} offset:{(c % 2) * 8192 + rt * 2048}' for k in range(2) for rt in range(4)]
    L += stamp(1, 39) + ['WAITVM W0', 's_barrier'] + stamp(2, 39)
    L += a_reads(0) + P.tr_reads(0) + P.tr_reads(1)
    ev = [(XAT, xld, None), (0.1, zst, None)]
    for c in range(1, 8):
        g0 = (ARD[c] // 8) * 8 + 4
        assert g0 < 32 * uord.index((0, c)) - 8, c
        sc.put(g0 - 1, f'WAITVM A{c}')
        for i, r in enumerate(a_reads(c)):
            sc.put(g0 + (i // 2), r)
    for c in range(2, 8):
        assert c == 2 or AAT[c] >= (ARD[c - 2] // 8) * 8 + 12
        ev.append((AAT[c], a_items(c), areg(2 * (c - 2) + 1, 3)))
    abar = min(st for st in range(1, 9) if barg(st) > ARD[7] + 10)
    def w_piece(st, i):
        it = w_items(st)
        dm = [k for k, x in enumerate(it) if x.startswith('buffer_')]
        m0s = [x for x in it[:dm[i]] if ' m0,' in x]
        return [x for x in it[:dm[0]] if ' m0,' not in x] + [m0s[-1], it[dm[i]]]
    for st in range(2, 32):
        early = 0 if st < 4 else barg(st - 3 if st < 12 else abar if st < 16 else st - 7) + 1
        want = WAT[st]
        if isinstance(want, tuple):
            for i in range(4):
                assert early <= want[0] and want[0] + 3 * want[1] < barg(st) - 60, st
                ev.append((want[0] + want[1] * i, w_piece(st, i), None))
        else:
            assert want < barg(st) - 60 or st < 8, st
            ev.append((max(early, want), w_items(st), None))
    for p in range(3, 8):
        for ct in range(4): sc.place(f'v_xor_b32 v{V_TR+ct}, 0x10000, v{V_TR+ct}', 256 * p - 44 + 8 * ct, 256 * p - 17 + 8 * ct)
    def x_items(ss):
        if ss % 2 == 0:
            it = rot_off(sT2, sROT2, ss // 2, 8192, sXA, 0)[:3] + [f's_add_u32 s{sT1}, s{sT2}, s{sXA}', f's_add_u32 s{sT2}, s{sT2}, s{sXB}']
        else:
            it = [f's_add_u32 s{sT1}, s{sT1}, 4096', f's_add_u32 s{sT2}, s{sT2}, 4096']
        for k in range(2):
            for rt in range(4):
                it.append(f'buffer_load_dwordx4 {areg(2 * ss + k, rt)}, v{V_L16}, {wsrd(R_WS)}, s{sT1 if rt < 2 else sT2} offen offset:{k * 2048 + (rt % 2) * 1024}{LD}')
        return it
    def kv_items(i):
        it = [f's_add_u32 m0, s{sM0W}, {((i + 3) % 8) * 16384}']
        if i >= 0: it += [f's_add_u32 s{sT}, s{sSRC}, {i * 16384}']
        else: it += [f's_add_u32 s{sT}, s{sM0W}, {(i + 3) * 16384}']
        it += [f'buffer_load_dwordx4 v{V_L16}, {wsrd(R_KV)}, s{sT} offen offset:{k*1024}{LD} lds ; @KV{i}' for k in range(4)]
        return it
    for i in range(-3, 5):
        ev.append((max(KV0 + KVSP * (i + 3), barg(28 + max(i, 0)) + 1), kv_items(i), None))
    V_PK = 18
    pk = []
    for i in range(8):
        ev.append((PKT[i], [f's_add_u32 m0, s{sM0P}, {i * 1024}', f's_add_u32 s{sT}, s{sPS}, {i * 4096}',
                                           f'buffer_load_dwordx4 v{V_PK + (i & 1)}, {wsrd(R_W3)}, s{sT} offen lds ; @PK'], None))
    ev.sort(key=lambda e: e[0])
    glastA = 0
    for g, it, touch in ev:
        it = [x for x in it if x != 's_nop 0']
        if touch: it = [f'TOUCH {touch}'] + it
        ge = P.dma_group(it, int(g), vmspace=(VS0 if g < 400 else 3 if g < 1792 else 2))
        if '@A7' in it[-1]: glastA = ge
        if '@W5' in it[-1]: gW5 = ge
    def signal(st, tag, srdr, setup, V_POLL=V_POLL, V_SIG=V_SIG):
        sc.s[barg(st) - 1].insert(0, f'WAITVM {tag}')
        return chain(sc, setup + [f'v_mov_b32 v{V_POLL}, 1', f'buffer_atomic_add v{V_POLL}, v{V_SIG}, {wsrd(srdr)}, s{sFX} offen'], barg(st) + 1)
    def poll_ool(name, vaddr, srdr, soff, expect, V_POLL=V_POLL):
        nonlocal OOL
        cnt = []
        if CNT: cnt = ['s_waitcnt vmcnt(0)', f'v_mov_b32 v{V_POLL}, 1', f'buffer_atomic_add v{V_POLL}, v{19 if name == "S0" else V_SIG}, {wsrd(R_DBG)}, 0 offen offset:{128 + 4 * int(name[1])}', 's_nop 1']
        OOL += [f'{name}:', f's_mov_b32 s{sSPIN}, {SPIN}'] + cnt + [f'{name}_L:',
                f'buffer_load_dword v{V_POLL}, v{vaddr}, {wsrd(srdr)}, {soff} offen sc1', f's_sub_u32 s{sSPIN}, s{sSPIN}, 1', 's_waitcnt vmcnt(0)',
                f's_cbranch_scc1 {name}_RET', f'v_cmp_gt_u32 vcc, {expect}, v{V_POLL}', f's_cbranch_vccnz {name}_L', f's_branch {name}_RET']
    def poll(name, g_issue, g_check, setup, vaddr, srdr, soff, expect, vmspace=1, V_POLL=V_POLL):
        g = chain(sc, setup, g_issue)
        g = sc.place(f'buffer_load_dword v{V_POLL}, v{vaddr}, {wsrd(srdr)}, {soff} offen sc1', g, vmspace=vmspace)
        assert g <= g_check - 60, (name, g)
        g = sc.place(f'v_cmp_gt_u32 vcc, {expect}, v{V_POLL}', g_check)
        g = sc.place(f's_cbranch_vccnz {name}', g + 1)
        sc.s[g].append(f'{name}_RET:')
        poll_ool(name, vaddr, srdr, soff, expect, V_POLL)
        return g + 1
    LNX = 131072
    g = chain(sc, [f'v_mov_b32 v{V_SIG}, v19', 'v_mov_b32 v12, 0'] + ([f'v_mov_b32 v{V_PROF}, v39'] if PROF else []), glastA)
    gmove = g - 2
    gs0 = poll('S0', S0AT, S0AT + 70, [], 22, R_DBG, '0', 1, vmspace=0, V_POLL=90)
    g = sc.place('WAITVM Z', 60) + 1
    sc.place(f'buffer_store_dword v23, v21, {wsrd(R_DBG)}, 0 offen sc1', g, vmspace=0)
    sm, s2_, tm = t + 3, t + 4, t + 2
    def reduce32(r, tmp):
        o = []
        for n in (8, 4, 2, 1):
            o += [2, f'v_add_f32_dpp v{r}, v{r}, v{r} row_ror:{n} row_mask:0xf bank_mask:0xf']
        o += [f'v_mov_b32 v{tmp}, v{r}', 2, f'v_permlane16_swap_b32 v{r}, v{tmp}', f'v_add_f32 v{r}, v{r}, v{tmp}']
        return o
    ln = []
    for i in range(8):
        ln += [f'v_lshlrev_b32 v{X+2*i}, 16, v{XR+i}', f'v_and_b32 v{X+2*i+1}, 0xffff0000, v{XR+i}']
    ln += [f'v_add_f32 v{sm}, v{X}, v{X+1}', f'v_add_f32 v{s2_}, v{X+2}, v{X+3}']
    for i in range(4, 16, 2):
        ln += [f'v_add_f32 v{sm}, v{sm}, v{X+i}', f'v_add_f32 v{s2_}, v{s2_}, v{X+i+1}']
    ln += [f'v_add_f32 v{sm}, v{sm}, v{s2_}'] + reduce32(sm, tm) + [f'v_mul_f32 v{sm}, 0x3b000000, v{sm}']
    ln += [f'v_sub_f32 v{X+i}, v{X+i}, v{sm}' for i in range(16)]
    ln += [f'v_mul_f32 v{sm}, v{X}, v{X}', f'v_mul_f32 v{s2_}, v{X+1}, v{X+1}']
    for i in range(2, 16, 2):
        ln += [f'v_fmac_f32 v{sm}, v{X+i}, v{X+i}', f'v_fmac_f32 v{s2_}, v{X+i+1}, v{X+i+1}']
    ln += [f'v_add_f32 v{sm}, v{sm}, v{s2_}'] + reduce32(sm, tm)
    ln += [f'v_mov_b32 v{s2_}, 0x3b000000', f'v_fmaak_f32 v{sm}, v{sm}, v{s2_}, 0x3727c5ac', f'v_rsq_f32 v{sm}, v{sm}']
    ln += [f'v_mul_f32 v{X+i}, v{X+i}, v{sm}' for i in range(16)]
    ln += [f'v_cvt_pk_bf16_f32 v{XR+i}, v{X+2*i}, v{X+2*i+1}' for i in range(8)]
    ln += [f's_lshl_b32 s{sU}, s3, 5', f's_add_u32 s{sU}, s{sU}, {LNX}', f'v_lshlrev_b32 v{tm}, 3, v{t+1}', f'v_lshl_add_u32 v{tm}, v{t}, 4, v{tm}', f'v_add_u32 v{tm}, s{sU}, v{tm}',
           f'ds_write_b128 v{tm}, {V(XR,4)}', f'ds_write_b128 v{tm}, {V(XR+4,4)} offset:4096']
    g = chain(sc, ln, LNAT)
    lnbar = min(st for st in range(2, 9) if barg(st) - 2 >= g)
    g = chain(sc, [f's_lshl_b32 s{sU}, s3, 11', f's_add_u32 s{sU}, s{sU}, {LNX}', f'v_add_u32 v{sm}, s{sU}, v{V_L16}',
                   f'v_bfe_u32 v{tm}, v0, 3, 2', f'v_and_b32 v{s2_}, 7, v0', f'v_lshlrev_b32 v{s2_}, 4, v{s2_}',
                   f'v_lshl_add_u32 v{s2_}, v{tm}, 8, v{s2_}', f'v_lshl_add_u32 v{s2_}, v{t}, 11, v{s2_}', f's_add_u32 s{sXO}, s{sXN}, 4096'], g)
    g = chain(sc, [f'ds_read_b128 {V(XR,4)}, v{sm}', f'ds_read_b128 {V(XR+4,4)}, v{sm} offset:1024', 6,
                   f'buffer_store_dwordx4 {V(XR,4)}, v{s2_}, {wsrd(R_WS)}, s{sXN} offen{ST} ; @XN',
                   f'buffer_store_dwordx4 {V(XR+4,4)}, v{s2_}, {wsrd(R_WS)}, s{sXO} offen{ST} ; @XN'], max(g, barg(lnbar) + 1))
    assert g < 470, g
    s1bar = min(st for st in range(2, 12) if barg(st) - SIGD >= g and barg(st) > gs0)
    signal(s1bar, 'XN', R_WS, [f's_lshr_b32 s{sFX}, s2, 4', f's_lshl_b32 s{sFX}, s{sFX}, 7', f's_add_u32 s{sFX}, s{sFX}, {WS_FLG + 96 * 128:#x}'], 90, 19)
    gv = w_dma_voff(0, 3584, 34)
    oob = [f's_and_b32 s{sU}, s{sH}, 7', f's_sub_u32 s{sU}, 6, s{sU}', f's_and_b32 s{sU}, s{sU}, 0x40000000', f'v_or_b32 v28, s{sU}, v{V_L16}',
           f'v_or_b32 v35, s{sU}, v35', f'v_or_b32 v36, s{sU}, v36']
    chain(sc, gv[:-4] + oob + [x.replace(f'v_add_u32 v{i},', f'v_add_u32 v{V_GD[i]},') for i, x in enumerate(gv[-4:])], 460, 550)
    g = poll('S1', S1AT, 786, [f's_lshl_b32 s{sU}, s{sJ}, 1', f's_sub_u32 s{sU}, 15, s{sU}', 'v_and_b32 v12, 1, v0', f'v_mul_u32_u24 v12, s{sU}, v12',
                              f'v_add_u32 v12, s{sJ}, v12', 'v_lshlrev_b32 v12, 7, v12', f's_mov_b32 s{sFX}, {WS_FLG + 96 * 128:#x}'], 12, R_WS, f's{sFX}', 16)
    assert g <= 800
    nx = 0
    for ss in range(8):
        for x in x_items(ss):
            if kind_of(x) == 'm':
                g = max(g, 768 + 32 * (ss + 1), int(800 + nx * XSP)); nx += 1
            g = sc.place(x, g, vmspace=1) + 1
        assert g < 1024 + 32 * ss - 30, (ss, g)
    gst = 0
    for p in range(4):
        for f in range(8):
            b = rbase(p) + 8 * f
            ops = []
            if p < 2:
                rt, p2 = f // 2, f % 2
                m, imm = (rt // 2) * 4 + rt % 2, (2 * p + p2) * 1024
                ops = [f'v_mul_f32 v{b+i}, s{sQS}, v{b+i}' for i in range(8)]
            else:
                ct, q = f // 2, f % 2
                m, imm = q * 4 + 2 + (p - 2), ct * 1024
            g0 = KVAT[p][0] + f * KVAT[p][1]
            g = max(g0, chain(sc, ops + cvt_pairs(b), min(g0, ((p + 1) * 256 if p else 32 * uord.index((0, 7)) + 32) + 6 + 28 * f)))
            g = max(g, sc.place(f's_add_u32 s{sK}, s{sKVO}, {m * 4096}', max(gst + 1, g0)) + 1)
            gst = sc.place(f'buffer_store_dwordx4 {V(b,4)}, v{V_L16}, {wsrd(R_WS)}, s{sK} offen offset:{imm}{STKV} ; @KVS', g, vmspace=1)
        assert gst < (p + 2) * 256 + 222, (p, gst)
    s2bar = min(st for st in range(18, 28) if barg(st) - SIGD >= gst)
    if STKV:
        signal(s2bar, 'KVS', R_WS, [f's_mov_b32 s{sFX}, s{sF2P}'])
    else:
        sc.s[barg(s2bar) - 1].insert(0, 'WAITVM KVS')
        g = barg(s2bar) + 1
        sc.s[g] += ['s_cmp_eq_u32 s3, 0', 's_cbranch_scc1 K_WB', 'K_WB_RET:']
        OOL += ['K_WB:', 'buffer_wbl2 sc1', 's_branch K_WB_RET']
        g = sc.place(f'buffer_load_dword v{V_POLL}, v{V_SIG}, {wsrd(R_DBG)}, 0 offen ; @WB', g + 1, vmspace=0)
        chain(sc, [f's_mov_b32 s{sFX}, s{sF2P}', WBD, f'v_mov_b32 v{V_POLL}, 1', f'buffer_atomic_add v{V_POLL}, v{V_SIG}, {wsrd(R_WS)}, s{sFX} offen'], g + 1)
    V_PBASE = 32
    t = 36
    chain(sc, [f'v_lshrrev_b32 v{t}, 4, v0', f'v_and_b32 v{t+1}, 15, v0', f'v_lshlrev_b32 v{t+2}, 1, v{t}', f'v_xor_b32 v{t+1}, v{t+1}, v{t+2}',
               f'v_lshlrev_b32 v{t+1}, 4, v{t+1}', f'v_lshl_add_u32 v{V_PK}, v{t}, 10, v{t+1}',
               f's_sub_u32 s{sV}, 183, s2', f's_and_b32 s{sV}, s{sV}, 0x40000000', f'v_or_b32 v{V_PK}, s{sV}, v{V_PK}', f'v_xor_b32 v{V_PK+1}, 128, v{V_PK}',
               f'v_lshrrev_b32 v{t}, 2, v0', f'v_and_b32 v{t+1}, 7, v{t}', f'v_lshlrev_b32 v{t}, 8, v{t}', f'v_lshl_add_u32 v{t}, v{t+1}, 5, v{t}',
               f'v_and_b32 v{t+1}, 3, v0', f'v_lshlrev_b32 v{t+1}, 4, v{t+1}', f'v_xor_b32 v{t}, v{t+1}, v{t}', f's_lshl_b32 s{sM0P}, s3, 13', f's_add_u32 s{sM0P}, s{sM0P}, {LNX}', f'v_add_u32 v{V_PBASE}, s{sM0P}, v{t}'], min(1030, PKT[0] - 60), PKT[0] - 2)
    t = V_T + 4
    chain(sc, [f's_lshr_b32 s{sKQ}, s{sH}, 3', f's_bfe_u32 s{sU}, s{sH}, 0x10002', f's_lshl_b32 s{sU}, s{sU}, 3', f's_add_u32 s{sU}, s{sU}, s{sJ}',
               f's_lshl_b32 s{sU}, s{sU}, 2', f's_and_b32 s{sV}, s{sH}, 3', f's_add_u32 s{sU}, s{sU}, s{sV}', f's_lshl_b32 s{sU}, s{sU}, 2', f's_add_u32 s{sU}, s{sU}, s3',
               f's_mul_i32 s{sXS}, s{sU}, {4 * 6144}', f's_add_u32 s{sXS}, s{sXS}, {WS_X:#x}', f's_mul_i32 s{sU}, s{sKQ}, 6144', f's_add_u32 s{sXI}, s{sU}, s{sXS}',
               f's_lshl_b32 s{sM0O}, s3, 13'], barg(s2bar) + 20, 1780)
    g = poll('S2', KV0 - 80, KV0 - 8, [f's_lshl_b32 s{sFX}, s{sH}, 7', f's_add_u32 s{sFX}, s{sFX}, {WS_FLG:#x}', 'v_mov_b32 v12, 0'], 12, R_WS, f's{sFX}', 8)
    assert g <= KV0
    sc.s[barg(31) - 1].insert(0, 'WAITVM KV-2')
    g = 1990
    for r in k_reads(V_L16): g = sc.place(r, g) + 1
    k1 = [f'ds_read_b128 {A(A_K + 4 * i, 4)}, v{V_L16} offset:{16384 + i * 1024}' for i in range(8)]
    for i in range(4): sc.put(2048 + 24 + i, k1[i])
    for i in range(4): sc.put(2048 + 28 + i, k1[4 + i])
    for f in (0, 2, 4, 6, 1, 3, 5, 7):
        g = 2016 + 8 * (1 + 2 * (f % 2)) + 2 * (f // 2) + 1 + 5
        for c in cvt_pairs(192 + 8 * f): g = sc.place(c, g)
    for g in range(5 * 256, 7 * 256):
        if g % 8 in GCAP: sc.cap[g] = 3
    gp = 5 * 256 + 6
    ne = 0
    gdone = {}
    for ct in range(4):
        for rt in range(4):
            bg = G.rtile('T', ct, rt, rbase(4)); bu = G.rtile('T', ct, rt, rbase(5))
            for e in range(4):
                tm_ = V_T + ne % 8; ne += 1
                ops = [f'v_mul_f32 v{tm_}, v{bg+e}, v{bg+e}', f'v_fmaak_f32 v{tm_}, v{tm_}, v{V_C2}, 0xc0135761', f'v_mul_f32 v{tm_}, v{tm_}, v{bg+e}',
                       f'v_exp_f32 v{tm_}, v{tm_}', f'v_add_f32 v{tm_}, 1.0, v{tm_}', f'v_rcp_f32 v{tm_}, v{tm_}', f'v_mul_f32 v{bg+e}, v{tm_}, v{bg+e}']
                g = int(gp)
                for o in ops: g = sc.place(o, g) + 1
                assert g - gp < 8 * GSP, (g, gp)
                gdone[(ct, rt, e)] = g
                gp += GSP
    for ct in range(4):
        for rt in range(4):
            bg = G.rtile('T', ct, rt, rbase(4)); bu = G.rtile('T', ct, rt, rbase(5))
            for e in range(4):
                g = sc.place(f'v_mul_f32 v{bu+e}, v{bg+e}, v{bu+e}', max(gdone[(ct, rt, e)], 6 * 256 + 6), 6 * 256 + 224 + 8 * ct + 2 * rt)
                gdone[(rt, ct // 2)] = max(gdone.get((rt, ct // 2), 0), g + 1)
    gh = 0
    for n, (p2, rt) in enumerate([(p2, rt) for p2 in range(2) for rt in range(4)]):
        bu = rbase(5) + (rt * 2 + p2) * 8
        g = max(gdone[(rt, p2)], HAT[0] + HAT[1] * n)
        for c in cvt_pairs(bu): g = sc.place(c, g)
        g = max(g, sc.place(f's_add_u32 s{sK}, s{sHA if rt < 2 else sHB}, {p2 * 4096}', max(gh + 1, g - 6)))
        gh = sc.place(f'buffer_store_dwordx4 {V(bu,4)}, v28, {wsrd(R_WS)}, s{sK} offen offset:{(rt % 2) * 1024}{ST} ; @HS', g + 1, vmspace=1)
    assert gh < 7 * 256 + 200, gh
    g = 7 * 256 + 34
    for f in range(8):
        b = rbase(6) + 8 * f
        for c in cvt_pairs(b): g = sc.place(c, g)
        g += 1
        for i in range(4): g = sc.place(f'v_accvgpr_write_b32 a{A_QL + 4 * f + i}, v{b + i}', g)
        g += 1
        for i in range(8): sc.place(f'v_mov_b32 v{b + i}, 0', g)
    g = 7 * 256 + 130
    g = sc.place(f'v_mov_b32 v29, 0x3f803f80', g) + 1
    for i in range(4): g = sc.place(f'v_accvgpr_write_b32 a{A_ONE + i}, v29', g)
    for i in range(16): g = sc.place(f'v_accvgpr_write_b32 a{A_L + i}, 0', g)
    for i in range(4): g = sc.place(f'v_accvgpr_write_b32 a{116 + i}, -1', g)
    def mask_ops(X):
        o = [f'v_mov_b32 v{ntile(X,1,0) + i}, s{sNINF}' for i in range(4)]
        for kq in range(2):
            o += [f'v_cndmask_b32 v{ntile(X,kq,kq) + i}, v{ntile(X,kq,kq) + i}, v{ntile(X,1,0)}, s[{sMASK+2*i}:{sMASK+2*i+1}]' for i in range(4)]
        return o
    g = max(g, gh, max(PKT) + 30) + 1
    for i in range(16): g = sc.place(f'v_mov_b32 v{V_NB + i}, 0', g)
    assert g < 2040, g
    sc.s[2044] += [f's_cmp_eq_u32 s{sQB}, 0', 's_cbranch_scc1 K_NM0', 'K_NM0_RET:']
    OOL += ['K_NM0:'] + mask_ops('B') + ['s_branch K_NM0_RET']
    g = chain(sc, [f'v_xor_b32 v{V_PBASE + c}, {c * 64}, v{V_PBASE}' for c in range(1, 4)], 1800)
    g = sc.place('WAITVM PK', 1954) + 1
    for c in range(8):
        for hf in range(2):
            g = sc.place(f'ds_read_b64_tr_b16 {A(128 + 4 * c + 2 * hf, 2)}, v{V_PBASE + c // 2} offset:{hf * 4096 + (c % 2) * 8}', g) + 1
    assert g < 2028, g
    def rowmax(X, buf, m=(9, 10), tm=(11, 12), nop='s_nop 0'):
        o = []
        for qs in range(2):
            a, b = stile(buf, 0, qs), stile(buf, 1, qs)
            o += [f'v_max3_f32 v{m[qs]}, v{a}, v{a+1}, v{a+2}', f'v_max3_f32 v{tm[qs]}, v{a+3}, v{b}, v{b+1}',
                  f'v_max3_f32 v{m[qs]}, v{m[qs]}, v{b+2}, v{b+3}', f'v_max_f32 v{m[qs]}, v{m[qs]}, v{tm[qs]}']
        for sw in ('v_permlane16_swap_b32', 'v_permlane32_swap_b32'):
            o += [f'v_mov_b32 v{tm[qs]}, v{m[qs]}' for qs in range(2)] + [nop]
            o += [f'{sw} v{m[qs]}, v{tm[qs]}' for qs in range(2)]
            o += [f'v_max_f32 v{m[qs]}, v{m[qs]}, v{tm[qs]}' for qs in range(2)]
        for qs in range(2):
            for kvt in range(2):
                o += [f'v_sub_f32 v{stile(buf,kvt,qs)+i}, v{stile(buf,kvt,qs)+i}, v{m[qs]}' for i in range(4)]
        for qs in range(2):
            for kvt in range(2):
                o += [f'v_sub_f32 v{ntile(X,kvt,qs)+i}, 0, v{m[qs]}' for i in range(4)]
        return o
    chain(sc, [f's_lshl_b32 s{sFX}, s{sJ}, 7', f's_add_u32 s{sFX}, s{sFX}, {WS_FLG + 32 * 128:#x}', f'v_mov_b32 v{V_POLL}, 4'], 1960, 2030)
    sc.place(f'buffer_atomic_add v{V_POLL}, v{V_SIG}, {wsrd(R_WS)}, s{sFX} offen', 2050, vmspace=1)
    chain(sc, [f'v_add_u32 v{V_AV}, {3 * 16384}, v{V_L16}', f'v_add_u32 v{V_AK}, {2 * 16384}, v{V_L16}',
               f's_sub_u32 s{sU}, 183, s2', f's_and_b32 s{sU}, s{sU}, 0x40000000', f'v_or_b32 v12, s{sU}, v{V_L16}',
               f's_add_u32 s{sV}, s{sXI}, 4096', f's_add_u32 s{sU}, s{sPD}, {184 * 4096}', f's_mov_b32 s{sTHR}, 0x5f800000',
               f's_mov_b32 s{sSLOT}, {3 * 16384}', f's_mov_b32 s{sM0R}, s{sM0W}', f's_mov_b32 s{sCNT}, s{sQB}'], max(gh + 1, 1965), 2040)
    sc.place(f's_add_u32 s{sSRC}, s{sSRC}, {5 * 16384}', 2050)
    ra = rowmax('A', 0, tm=(11, 8), nop=1)
    g = 2048 + 19
    for gg in range(g, 2080): sc.cap[gg] = 3
    while True:
        if isinstance(ra[0], int):
            g += 1; ra.pop(0); continue
        gg = sc.place(ra[0], g, force=False) if g < 2080 else None
        if gg is None: break
        g = gg; ra.pop(0)
    ra = ['s_nop 0' if isinstance(x, int) else x for x in ra]
    zleft = []
    for ct in range(4):
        for rt in range(4):
            b = V_ACC + (ct * 4 + rt) * 4
            lo = 2016 + 8 * ct + 2 * rt + 8
            if sum(max(0, 2 - sc.used[x]) for x in range(lo, 2067)) >= 4:
                for i in range(4): sc.place(f'v_mov_b32 v{b+i}, 0', lo, 2066)
            else: zleft.append(mfma(V(b, 4), A(A_L, 4), A(A_L, 4), '0'))
    sMT, sNT = sT1, sT2
    chain(sc, [f's_bfe_u32 s{sMT}, s{sH}, 0x10002', f's_lshl_b32 s{sMT}, s{sMT}, 3', f's_add_u32 s{sMT}, s{sMT}, s{sJ}',
               f's_and_b32 s{sNT}, s{sH}, 3',
               f's_lshr_b32 s{sV}, s3, 1', f's_sub_u32 s{sU}, s{sNT}, s{sMT}', f's_mul_i32 s{sU}, s{sU}, s{sV}', f's_add_u32 s{sU}, s{sU}, s{sMT}',
               f's_lshl_b32 s{sU}, s{sU}, 1', f's_and_b32 s{sSPARE}, s3, 1', f's_add_u32 s{sU}, s{sU}, s{sSPARE}', f's_mul_i32 s{sU}, s{sU}, {184 * 4096}',
               f's_mul_i32 s{sDH}, s{sV}, {WS_W3 - WS_A3:#x}', f's_add_u32 s{sU}, s{sU}, s{sDH}', f's_add_u32 s{sU}, s{sU}, {WS_A3 - 4096:#x}',
               f's_mul_i32 s{sDH}, s{sKQ}, {14 * 4096}', f's_add_u32 s{sDH}, s{sDH}, s{sU}',
               f's_lshl_b32 s{sDC}, s{sKQ}, 17', f's_add_u32 s{sDC}, s{sDC}, s{sU}', f's_add_u32 s{sDC}, s{sDC}, {56 * 4096}',
               f's_lshl_b32 s{sGW}, s{sNT}, 1', f's_add_u32 s{sGW}, s{sGW}, s{sSPARE}', f's_mul_i32 s{sGW}, s{sGW}, {184 * 4096}', f's_mul_i32 s{sU}, s{sKQ}, {14 * 4096}',
               f's_add_u32 s{sGW}, s{sGW}, s{sU}', f's_add_u32 s{sGW}, s{sGW}, {WS_W3:#x}',
               f's_lshl_b32 s{sGA}, s{sMT}, 1', f's_add_u32 s{sGA}, s{sGA}, s{sV}', f's_mul_i32 s{sGA}, s{sGA}, {184 * 4096}',
               f's_add_u32 s{sGA}, s{sGA}, s{sU}', f's_add_u32 s{sGA}, s{sGA}, {WS_A3:#x}',
               f's_sub_u32 s{sKR}, 1, s{sV}', f's_mul_i32 s{sKR}, s{sKR}, s{sKQ}', f's_add_u32 s{sRA}, s{sV}, 4', f's_lshl_b32 s{sRA}, s{sRA}, 13',
               f's_add_u32 s{sRW}, s{sSPARE}, 6', f's_lshl_b32 s{sRW}, s{sRW}, 13',
               f's_lshl_b32 s{sO}, s{sMT}, 1', f's_add_u32 s{sO}, s{sO}, s{sV}', f's_lshl_b32 s{sO}, s{sO}, 2', f's_add_u32 s{sO}, s{sO}, s{sKQ}', f's_lshl_b32 s{sO}, s{sO}, 14',
               f's_lshl_b32 s{sU}, s{sNT}, 1', f's_add_u32 s{sU}, s{sU}, s{sSPARE}', f's_lshl_b32 s{sU}, s{sU}, 7', f's_add_u32 s{sO}, s{sO}, s{sU}',
               f's_sub_u32 s{sV}, 15, s{sMT}', f's_min_u32 s{sU}, s{sMT}, s{sV}', f's_lshl_b32 s{sU}, s{sU}, 2', f's_add_u32 s{sU}, s{sU}, s{sKQ}',
               f's_lshl_b32 s{sU}, s{sU}, 7', f's_add_u32 s{sF4C}, s{sU}, {WS_FLG + 64 * 128:#x}',
               f's_mov_b32 s{sNINF}, {NINF:#x}'], 7 * 256 + 10)
    for p in range(len(PGAPS)): sc.v[PGAPS[p]] += stamp(3 + p, V_PROF if PGAPS[p] > gmove else 39, True)
    o_ = sc.emit()
    if 'p_b128' in EXP:
        o2 = []
        for x in o_:
            if x.startswith('ds_read_b64_tr'):
                m_ = re.match(r'ds_read_b64_tr_b16 v\[(\d+):\d+\], v\d+ offset:(\d+)', x)
                r_, of = int(m_.group(1)), int(m_.group(2))
                if r_ % 4 == 0: o2.append(f'ds_read_b128 v[{r_}:{r_+3}], v1 offset:{(of // 4096) * 4096 + ((r_ // 8) % 3) * 1024}')
            else: o2.append(x)
        o_ = o2
    if 'p_nods' in EXP: o_ = [x for x in o_ if not x.startswith('ds_read_b64_tr')]
    if 'p_nodma' in EXP: o_ = [x for x in o_ if '@W' not in x]
    if 'p_nogelu' in EXP: o_ = [x for x in o_ if not re.match(r'v_\w+ v2[0-7], (v|1)', x) or 'dpp' in x or 'lsh' in x or 'and' in x or 'xor' in x or 'bfe' in x]
    L += o_
    ov = sc.overflow()
    ex, cv = sm_ops(0)
    rb_ = [x for x in rowmax('B', 1, m=(40, 41), tm=(42, 43)) if x != 's_nop 0']
    L += zleft[:2] + PK_(ra)
    zleft = zleft[2:]
    for i in range(16):
        L += [ex[i], rb_.pop(0)]
        if i % 2 == 1: L.append(cv[i // 2])
        elif zleft: L.append(zleft.pop(0))
    L += ['s_nop 0'] + PK_(rb_) + zleft
    sent = [f'buffer_store_dwordx4 a[116:119], v{V_L16}, {wsrd(R_WS)}, s{sXI if i < 4 else sV} offen offset:{(i % 4) * 1024}{ST}' for i in range(6)]
    pkst = [f'buffer_store_dwordx4 {A(128 + 4 * c, 4)}, v12, {wsrd(R_WS)}, s{sPD if c < 4 else sU} offen offset:{(c % 4) * 1024}{ST}' for c in range(8)]
    L += ['WAITVM KV0', 's_waitcnt lgkmcnt(0)']
    L = autowait(L)
    def step(qk, pv, buf, first, last, rdK, mask=None, loop=None, prevK=True, extra=(), vmw=16, chains=()):
        s_ = Sched(qk_mfmas(qk, 1 - buf) + pv_mfmas(pv, 1 - buf))
        ex, cv = sm_ops(buf)
        for i, e in enumerate(ex): s_.put(2 * i, e)
        if first:
            s_.put(0, 's_barrier')
            for i, r in enumerate(v_reads()): s_.put(1 + 2 * i, r)
            s_.put(1, f's_mov_b32 m0, s{sM0R}')
            s_.put(2, f's_add_u32 s{sM0R}, s{sM0R}, 16384'); s_.put(3, f's_and_b32 s{sM0R}, s{sM0R}, 0x1ffff')
            for k in range(4):
                s_.put(5 + 8 * k, f'buffer_load_dwordx4 v{V_L16}, {wsrd(R_KV)}, s{sSRC} offen offset:{k*1024}{LD} lds')
            s_.put(30, f's_add_u32 s{sSRC}, s{sSRC}, 16384')
            s_.put(17, 's_waitcnt lgkmcnt(4)')
            s_.put(25, f's_waitcnt lgkmcnt({4 if rdK else 0})')
        if prevK: s_.put(7, f's_waitcnt lgkmcnt({3 if first else 0})')
        if rdK:
            for i, r in enumerate(k_reads(rdK)): s_.put(17 + 2 * i, r)
        for c, x in enumerate(cv): s_.put(4 * c + 3, x)
        w = []
        if last:
            s_.put(27, f's_add_u32 s{sSLOT}, s{sSLOT}, 16384'); s_.put(28, f's_and_b32 s{sSLOT}, s{sSLOT}, 0x1ffff')
            s_.put(32, f'v_mov_b32 v{V_AK}, v{V_AV}'); s_.put(32, f'v_add_u32 v{V_AV}, s{sSLOT}, v{V_L16}')
            w.append(f'vmcnt({vmw})')
        if rdK: w.append('lgkmcnt(4)')
        if w: s_.put(33, 's_waitcnt ' + ' '.join(w))
        for g, x in extra: s_.put(g, x)
        if mask:
            s_.put(19, f's_cmp_eq_u32 s{sCNT}, 1'); s_.put(20, f's_cbranch_scc1 {mask}'); s_.s[20].append(f'{mask}_RET:')
        if loop:
            s_.put(31, f's_sub_u32 s{sCNT}, s{sCNT}, 1'); s_.put(32, f's_cmp_lg_u32 s{sCNT}, 0')
            s_.s[33].append(f's_cbranch_scc1 {loop}')
        if chains:
            for g in range(1, 34, 2): s_.cap[g] = 3
            for c in chains: chain(s_, c, 2)
        o = s_.emit()
        if 'nobar' in EXP: o = [x for x in o if x != 's_barrier']
        if 'nodma' in EXP: o = [x for x in o if not x.startswith('buffer_load')]
        if 'nods' in EXP: o = [x for x in o if not x.startswith('ds_read')]
        if 'nowait' in EXP: o = [x for x in o if not x.startswith('s_waitcnt')]
        if 'noexp' in EXP: o = [x for x in o if not x.startswith('v_exp')]
        if 'nocvt' in EXP: o = [x for x in o if not x.startswith('v_cvt')]
        if 'nosalu' in EXP: o = [x for x in o if not (x.startswith('s_a') and 'm0' not in x)]
        return o
    def epi_check(X):
        o = [f'v_accvgpr_read_b32 v{9 + qs}, a{lacc(X, qs)}' for qs in range(2)]
        return o + ['v_add_f32 v11, v9, v10', f'v_cmp_ngt_f32 vcc, s{sTHR}, v11', f's_or_b64 s[{sFLAG}:{sFLAG+1}], s[{sFLAG}:{sFLAG+1}], vcc']
    def epi_store(X, sC):
        o = ['v_rcp_f32 v9, v9', 'v_rcp_f32 v10, v10']
        for p in range(4):
            o.append(f's_add_u32 s{sT}, s{sC}, {p * 4096}')
            for qs in range(2):
                b = otile(X, 2 * p, qs)
                o += PK_([f'v_mul_f32 v{b+i}, v{b+i}, v{9 + qs}' for i in range(8)]) + cvt_pairs(b)
                o.append(f'buffer_store_dwordx4 {V(b,4)}, v{V_L16}, {wsrd(R_WS)}, s{sT} offen offset:{qs * 1024}{ST} ; @CS')
        return o
    def epilogue(X, sC):
        if X == 'B': return epi_check(X) + ['s_nop 0'] + epi_store(X, sC)
        return epi_check(X) + (['s_cmp_eq_u32 s3, 99'] if EXP else []) + ['s_cbranch_scc1 K_SLOW', 'K_SLOW_RET:'] + epi_store(X, sC)
    def slow_path():
        sP, sLAST, sTT = sSLOT, sM0R, sCNT
        VM, VF, VL = 2, 6, 24
        o = ['K_SLOW:', 's_waitcnt vmcnt(0) lgkmcnt(0)', f's_mov_b32 s{sP}, 0', f's_mov_b32 s{sLAST}, s{sQB}', 'K_SLOW_T:']
        for i in range(16):
            o += [f'v_accvgpr_read_b32 v4, a{A_QL+i}', f'v_accvgpr_read_b32 v5, a{A_QL+16+i}', f'v_accvgpr_write_b32 a{A_QL+i}, v5', f'v_accvgpr_write_b32 a{A_QL+16+i}, v4']
            a, b = 192 + 8 * (i // 4) + i % 4, 224 + 8 * (i // 4) + i % 4
            o += [f'v_mov_b32 v4, v{a}', f'v_mov_b32 v{a}, v{b}', f'v_mov_b32 v{b}, v4']
        o += [f'v_mov_b32 v{V_OA+i}, 0' for i in range(64)] + [f'v_mov_b32 v{VL+i}, 0' for i in range(8)]
        o += [f'v_mov_b32 v{VM}, 0xff000000', f'v_mov_b32 v{VM+1}, 0xff000000', f's_mov_b32 s{sTT}, 0', 'K_SLOW_L:']
        for q in range(4):
            o += [f's_lshl_b32 s{sT}, s{sTT}, 14', f's_add_u32 s{sT}, s{sT}, {q * 4096}']
            o += [f'buffer_load_dwordx4 {A(A_K + 16 * q + 4 * i, 4)}, v{V_L16}, {wsrd(R_KV)}, s{sT} offen offset:{i * 1024}{LD}' for i in range(4)]
        o += [f'v_mov_b32 v{V_NA+i}, 0' for i in range(16)]
        o += [f's_cmp_lg_u32 s{sTT}, s{sLAST}', 's_cbranch_scc1 K_SLOW_M'] + mask_ops('A') + ['K_SLOW_M:', 's_waitcnt vmcnt(0)', 's_nop 1']
        o += qk_mfmas('A', 0) + ['s_nop 7']
        o += rowmax('A', 0, tm=(11, 8))[:-32]
        for qs in range(2):
            o += [f'v_max_f32 v{9+qs}, v{9+qs}, v{VM+qs}', f'v_sub_f32 v{VF+qs}, v{VM+qs}, v{9+qs}', f'v_exp_f32 v{VF+qs}, v{VF+qs}', f'v_mov_b32 v{VM+qs}, v{9+qs}']
            for kvt in range(2):
                o += [f'v_sub_f32 v{stile(0,kvt,qs)+i}, v{stile(0,kvt,qs)+i}, v{9+qs}' for i in range(4)]
            o += [f'v_mul_f32 v{V_OA+32*qs+i}, v{V_OA+32*qs+i}, v{VF+qs}' for i in range(32)]
            o += [f'v_mul_f32 v{VL+4*qs+i}, v{VL+4*qs+i}, v{VF+qs}' for i in range(4)]
        ex, cv = sm_ops(0)
        for c in range(8): o += ex[2 * c:2 * c + 2] + ['s_nop 0', cv[c]]
        o += ['s_nop 1'] + [mfma(V(VL+4*qs, 4), A(A_ONE, 4), V(V_P+4*qs, 4), V(VL+4*qs, 4)) for qs in range(2)] + pv_mfmas('A', 0)[2:]
        o += ['s_nop 7', f's_add_u32 s{sTT}, s{sTT}, 1', f's_cmp_le_u32 s{sTT}, s{sLAST}', 's_cbranch_scc1 K_SLOW_L']
        o += [f'v_mov_b32 v9, v{VL}', f'v_mov_b32 v10, v{VL+4}', f's_cmp_eq_u32 s{sP}, 1', 's_cbranch_scc1 K_SLOW_RET']
        o += epi_store('A', sCB)
        o += [f's_mov_b32 s{sP}, 1', f's_lshl_b32 s{sT}, s{sJ}, 3', f's_sub_u32 s{sT}, 60, s{sT}', f's_add_u32 s{sLAST}, s{sQB}, s{sT}', 's_branch K_SLOW_T']
        return o
    L += stamp(11)
    L += [f's_cmp_eq_u32 s{sCNT}, 0', 's_cbranch_scc1 K_TB', f'.p2align {ALN}', 'K_DUAL:']
    L += step('A', 'A', 1, True, False, None, mask='K_MB')
    L += step('B', 'B', 0, False, True, V_AK, loop='K_DUAL', prevK=False)
    L += ['K_TB:']
    V_DV, V_RA, V_DA, V_S6, V_P3 = 16, 20, 25, 29, 30
    c1 = []
    for i in range(4):
        c1 += [f's_add_u32 s{sT}, s{sKQ}, {i}', f's_and_b32 s{sT}, s{sT}, 3', f'v_lshl_add_u32 v{V_DA+i}, s{sT}, 10, v{V_L16}']
    c1 += [f's_add_u32 s{sT1}, s{sGA}, 4096', f's_add_u32 s{sK}, s{sGW}, 4096', f's_lshl_b32 s{sT}, s{sJ}, 2', f's_sub_u32 s{sCNT}, 29, s{sT}',
           f'v_min_u32 v{V_S6}, 1, v0', f'v_mov_b32 v{V_POLL}, 1']
    c2 = []
    for i in range(4):
        c2 += [f's_add_u32 s{sT}, s{sKR}, {i}', f's_and_b32 s{sT}, s{sT}, 3', f's_add_u32 s{sT}, s{sT}, {4 - i}', f'v_lshl_add_u32 v{V_DV+i}, s{sT}, 10, v{V_L16}']
    c3 = [f'v_add_u32 v{V_RA}, s{sRA}, v{V_L16}', f'v_add_u32 v{V_RA+1}, s{sRW}, v{V_L16}', f'v_add_u32 v{V_RA+2}, 0x10000, v{V_RA}', f'v_add_u32 v{V_RA+3}, 0x10000, v{V_RA+1}',
          f'v_min_u32 v{V_P3}, 13, v0', f'v_lshlrev_b32 v{V_P3}, 7, v{V_P3}', f'v_lshlrev_b32 v{V_S6}, 30, v{V_S6}']
    L += step('A', 'A', 1, True, False, V_AK, extra=list(zip((1, 9, 17, 25, 32, 33), pkst[:6])), chains=[c1])
    L += step('A', 'B', 0, False, True, V_AV, extra=list(zip((1, 5, 9, 13, 17, 21, 25, 29), pkst[6:] + sent)), vmw=30, chains=[c2, c3])
    L += stamp(12)
    L += epilogue('B', sCB)
    L += ['s_waitcnt vmcnt(14)', f'buffer_atomic_add v{V_POLL}, v{V_S6}, {wsrd(R_WS)}, s{sFX} offen offset:1024', f's_mov_b32 s{sFX}, {WS_FLG + 32 * 128:#x}']
    L += [f'.p2align {ALN}', 'K_SINGLE:']
    L += step('A', 'A', 1, True, True, V_AV, mask='K_MA')
    L += step('A', 'A', 0, True, True, V_AV, loop='K_SINGLE')
    OOL += ['K_MB:'] + mask_ops('B') + ['s_branch K_MB_RET', 'K_MA:'] + mask_ops('A')
    OOL += [f'buffer_load_dword v{V_POLL}, v{V_P3}, {wsrd(R_WS)}, s{sFX} offen sc1', 's_branch K_MA_RET']
    NSS = 23
    V_AC3, V_XR, V_OA_ = 64, 24, 9
    def fr(ss, op, k, i): return A(128 + 64 * (ss % 2) + (op * 8 + k * 4 + i) * 4, 4)
    def d_items(ss):
        it = []
        for k in range(2):
            base, ks = (sDH, 2 * ss + k) if ss < 7 else (sDC, 2 * (ss - 7) + k)
            it += [f's_add_u32 m0, s{sM0O}, {32768 + ((ss + 2) % 4) * 32768 + k * 4096}', f's_add_u32 s{sT2}, s{base}, {ks * 4096}']
            it += [f'buffer_load_dwordx4 v{V_DV+i}, {wsrd(R_WS)}, s{sT2} offen offset:{i*1024}{LD} lds ; @D{ss}' for i in range(4)]
        return it
    def f_reads(ss):
        o = []
        for op, k, i in [(1, 0, 0), (1, 1, 0)] + [(0, k, i) for i in range(4) for k in range(2)] + [(1, k, i) for i in range(1, 4) for k in range(2)]:
            o.append(f'ds_read_b128 {fr(ss, op, k, i)}, v{V_RA + op + 2 * (((ss + 2) % 4) // 2)} offset:{(ss % 2) * 32768 + k * 4096 + i * 1024}')
        return o
    L += stamp(13)
    L += ['s_barrier'] + v_reads()
    ex, cv = sm_ops(1)
    L += ex[0:4] + cv[0:2]
    L += ['s_waitcnt vmcnt(6)', f'v_cmp_gt_u32 vcc, 128, v{V_POLL}', 's_cbranch_vccnz S3', 'S3_RET:']
    poll_ool('S3', V_P3, R_WS, f's{sFX}', 128)
    T = []
    f1 = Sched(pv_mfmas('A', 0))
    f1.put(1, 's_waitcnt lgkmcnt(4)'); f1.put(9, 's_waitcnt lgkmcnt(0)')
    g = 0
    for c in range(2, 8):
        f1.put(g, ex[2 * c]); f1.put(g + 1, ex[2 * c + 1]); f1.put(g + 2, cv[c]); g += 3
    f1.put(12, f's_add_u32 s{sSLOT}, s{sSLOT}, 16384'); f1.put(13, f's_and_b32 s{sSLOT}, s{sSLOT}, 0x1ffff')
    f1.put(14, f'v_add_u32 v{V_AV}, s{sSLOT}, v{V_L16}')
    f1.put(16, 's_barrier')
    d1 = d_items(1)
    T += d1[:2]
    for i in range(4): f1.put(2 * i, d1[2 + i])
    f1.put(7, d1[6]); f1.put(8, d1[7])
    for i in range(4): f1.put(9 + 2 * i, d1[8 + i])
    T += f1.emit() + v_reads(A_K)
    f2 = Sched(pv_mfmas('A', 1, A_K))
    n = 0
    for op, i in [(1, 0), (0, 0), (0, 1), (0, 2), (0, 3), (1, 1), (1, 2), (1, 3)]:
        for k in range(2):
            f2.put(n, f'buffer_load_dwordx4 {fr(0, op, k, i)}, v{V_L16 if op else V_DA + i}, {wsrd(R_WS)}, s{((sGA, sT1), (sGW, sK))[op][k]} offen offset:{i * 1024 if op else 0}{LD}'); n += 1
    T += f2.emit()
    T += [f's_sub_u32 s{sCNT}, 3, s3', 'K_XB:', f's_cmp_eq_u32 s{sCNT}, 0', 's_cbranch_scc1 K_XBD',
          's_nop 0' if 'nobar' in EXP else 's_barrier', f's_sub_u32 s{sCNT}, s{sCNT}, 1', 's_branch K_XB', 'K_XBD:']
    T += ['WAITVM D1', 's_waitcnt lgkmcnt(0)', 's_barrier'] + stamp(14) + d_items(2) + f_reads(1) + epilogue('A', sCA)
    T += stamp(15)
    mf = []
    for ss in range(NSS):
        order = [(ct, rt) for ct in range(4) for rt in range(4)] if ss < NSS - 1 else [(ct, rt) for rt in (1, 2, 3, 0) for ct in range(4)]
        for ct, rt in order:
            if True:
                acc = V(V_AC3 + (rt * 4 + ct) * 4, 4)
                for k in range(2):
                    mf.append(mfma(acc, fr(ss, 1, k, ct), fr(ss, 0, k, rt), '0' if (ss == 0 and k == 0) else acc))
    sc = Sched(mf)
    issue = {ss: [ss + 3] for ss in range(NSS - 3)}
    for ss in range(4, S4P): issue[ss] = []
    nxt = 7
    for ss in range(S4P, NSS):
        issue[ss] = [x for x in (nxt, nxt + 1) if x <= ss + 3 and x < NSS]
        nxt += len(issue[ss])
    for ss in range(NSS):
        g0 = 32 * ss
        late = ss + 1 < NSS and ss + 1 in issue.get(ss, [])
        gb = g0 + (22 if late else 0)
        if ss in LATE: late = True; gb = g0 + 22
        if 0 < ss and ss + 1 < NSS:
            sc.put(gb, f'WAITVM D{ss+1}'); sc.s[gb].append('s_waitcnt lgkmcnt(0)'); sc.put(gb + 1, 's_barrier')
            for i, r in enumerate(f_reads(ss + 1)):
                sc.put(gb + 1 + (i // 2 if late else (3 * i) // 2), r)
        g = g0 + 2
        if ss == S4P:
            sc.put(g0 + 2, f'v_cmp_gt_u32 vcc, 8, v{V_POLL}'); sc.put(g0 + 3, 's_cbranch_vccnz S4'); sc.s[g0 + 3].append('S4_RET:')
            poll_ool('S4', 12, R_WS, f's{sF4C}', 8)
            g = g0 + 4
        it = sum((d_items(x) for x in issue.get(ss, [])), [])
        nm_ = sum(1 for x in it if kind_of(x) == 'm')
        k = 0
        for x in it:
            gg = g + (k * (g0 + 31 - g)) // max(nm_, 8)
            if kind_of(x) == 'm':
                sc.m[gg].append(x); k += 1
            else: sc.m[gg].append(x)
    gs4 = 32 * S4S + (22 if S4S in LATE else 0)
    sc.s[gs4].insert(0, 'WAITVM CS')
    chain(sc, [f's_lshl_b32 s{sV}, s{sJ}, 2', f's_add_u32 s{sU}, s{sKQ}, s{sV}', f's_lshl_b32 s{sU}, s{sU}, 7',
               f's_add_u32 s{sFX}, s{sU}, {WS_FLG + 64 * 128:#x}', f'v_mov_b32 v{V_POLL}, 1', 'v_mov_b32 v12, 0'], 4)
    sc.m[gs4 + 1].insert(0, f'buffer_atomic_add v{V_POLL}, v{V_SIG}, {wsrd(R_WS)}, s{sFX} offen')
    sc.m[32 * S4P - 24].append(f'buffer_load_dword v{V_POLL}, v12, {wsrd(R_WS)}, s{sF4C} offen sc1')
    chain(sc, ['v_and_b32 v10, 15, v0', 'v_lshrrev_b32 v11, 4, v0', 'v_lshlrev_b32 v11, 4, v11', f'v_lshl_add_u32 v{V_OA_}, v10, 10, v11',
               f'buffer_load_dwordx4 {V(V_XR,4)}, v{V_OA_}, {wsrd(R_X)}, s{sO} offen', f'buffer_load_dwordx4 {V(V_XR+4,4)}, v{V_OA_}, {wsrd(R_X)}, s{sO} offen offset:64',
               ], 32 * 19 + 2)
    chain(sc, ['v_and_b32 v12, 3, v0', 'v_lshlrev_b32 v12, 7, v12', f's_lshl_b32 s{sFX}, s{sJ}, 9', f's_add_u32 s{sFX}, s{sFX}, {WS_FLG + 64 * 128:#x}'], 32 * 16)
    sc.m[32 * 17].append(f'buffer_load_dword v{V_POLL}, v12, {wsrd(R_WS)}, s{sFX} offen sc1')
    g = sc.place(f'v_cmp_gt_u32 vcc, 8, v{V_POLL}', 32 * 20 + 4)
    g = sc.place('s_cbranch_vccnz S7', g + 1); sc.s[g].append('S7_RET:')
    poll_ool('S7', 12, R_WS, f's{sFX}', 8)
    for r in range(1, 4):
        chain(sc, [f's_add_u32 s{sT+r-1}, s{sKQ}, {r}', f's_and_b32 s{sT+r-1}, s{sT+r-1}, 3', f's_mul_i32 s{sT+r-1}, s{sT+r-1}, 6144',
                   f's_add_u32 s{sT+r-1}, s{sT+r-1}, s{sXS}', f's_add_u32 s{sT+r-1}, s{sT+r-1}, {(r - 1) * 2048}'], 32 * 21 + 2)
    chain(sc, [f's_add_u32 s{sV}, s{sXI}, 4096', f's_mov_b32 s{sSPIN}, {SPIN}'], 32 * 22)
    X = 32
    chain(sc, sum(([f'v_lshlrev_b32 v{X+2*i}, 16, v{V_XR+i}', f'v_and_b32 v{X+2*i+1}, 0xffff0000, v{V_XR+i}'] for i in range(8)), []), 32 * 21)
    rest = []
    for n, (r, cp) in enumerate([(r, cp) for r in (1, 2, 3) for cp in range(2)]):
        b = V_AC3 + (r * 4 + cp * 2) * 4
        ops = cvt_pairs(b) + [f'buffer_store_dwordx4 {V(b, 4)}, v{V_L16}, {wsrd(R_WS)}, s{sT+r-1} offen offset:{cp * 1024}{ST}']
        g = 32 * 22 + 4 * n + 3 + (8 if n == 0 else 5)
        for i, o in enumerate(ops):
            gg = g + i // 2
            if gg < 32 * 23: (sc.m if i == 4 else sc.v)[gg].append(o)
            else: rest.append(o)
    for i, ss in enumerate((0, 3, 5, 7, 12, 17, 22)): sc.v[32 * ss + 31] += stamp(16 + i)
    T += sc.emit() + rest
    Y = 128
    xl = [f'buffer_load_dwordx4 {V(Y + 4 * i, 4)}, v{V_L16}, {wsrd(R_WS)}, s{sXI if i < 4 else sV} offen offset:{(i % 4) * 1024}{LD}' for i in range(6)]
    T += ['S5_RET:'] + xl + ['s_nop 0'] + PK_([f'v_add_f32 v{X+i}, v{X+i}, v{V_AC3+i}' for i in range(16)])
    chk = [f'v_max3_u32 v10, v{Y}, v{Y+1}, v{Y+2}', f'v_max3_u32 v11, v{Y+3}, v{Y+4}, v{Y+5}']
    for i in range(6, 22, 4):
        chk += [f'v_max3_u32 v10, v10, v{Y+i}, v{Y+i+1}', f'v_max3_u32 v11, v11, v{Y+i+2}, v{Y+i+3}']
    chk += [f'v_max3_u32 v10, v10, v{Y+22}, v{Y+23}', 'v_max_u32 v10, v10, v11', 'v_cmp_eq_u32 vcc, -1, v10']
    T += ['K_XC:', 's_waitcnt vmcnt(0)'] + chk + ['s_cbranch_vccnz K_XR', 'K_XD:']
    OOL += ['K_XR:', f's_sub_u32 s{sSPIN}, s{sSPIN}, 1', 's_cbranch_scc1 K_XD'] + xl + ['s_branch K_XC']
    for r in range(3):
        for i in range(8):
            T += [f'v_lshlrev_b32 v{160+2*i}, 16, v{Y+8*r+i}', f'v_and_b32 v{161+2*i}, 0xffff0000, v{Y+8*r+i}']
        T += PK_([f'v_add_f32 v{X+i}, v{X+i}, v{160+i}' for i in range(16)])
    for s_ in range(2):
        T += cvt_pairs(X + 8 * s_)
        T += [f'buffer_store_dwordx4 {V(X + 8 * s_, 4)}, v{V_OA_}, {wsrd(R_OUT)}, s{sO} offen offset:{64 * s_}{STO}']
    if PROF:
        T += stamp(23) + ['s_waitcnt vmcnt(0)'] + stamp(24) + [f's_add_u32 s{R_TMP}, s{R_WS}, {WS_PROF:#x}', f's_addc_u32 s{R_TMP+1}, s{R_WS+1}, 0', f's_mov_b32 s{R_TMP+2}, 0x40000',
             f's_lshl_b32 s{sU}, s2, 2', f's_add_u32 s{sU}, s{sU}, s3', f's_lshl_b32 s{sU}, s{sU}, 8', 'v_lshlrev_b32 v0, 2, v0',
             f'buffer_store_dword v{V_PROF}, v0, {wsrd(R_TMP)}, s{sU} offen']
    if DIAG is not None:
        T += stamp(23) + ['K_DG:', 's_memrealtime s[100:101]', 's_waitcnt lgkmcnt(0)', 's_sub_u32 s100, s100, s98', 's_cmp_lt_u32 s100, 12000', 's_cbranch_scc1 K_DG']
    L += autowait(T)
    L += ['K_END:', 's_endpgm'] + OOL + ['K_LAST:', 's_endpgm'] + slow_path()
    return L, ov

def build(lines):
    hdr = open('cdna_kernels/' + NAME + '.s.ref').read().split('; Override launch')[0]
    out = hdr + f'; @launch grid=(256,1,1) block=(256,1,1) lds={LDS_SZ}\n'
    out += '.amdgcn_target "amdgcn-amd-amdhsa--gfx950"\n.text\n' + fmt(lines) + '\n'
    out += '.section .rodata,"a"\n.p2align 6\n' + kdesc(NAME + '_kernel') + '\n'
    return out

if __name__ == '__main__':
    path = sys.argv[1]
    for a in sys.argv[2:]:
        k, v = a.split('=')
        globals()[k] = eval(v)
    cb = 4096
    for it in range(2):
        lines, ov = gen_fused(cb)
        open(path, 'w').write(build(lines))
        sym = G.sizes(path)
        cb = (sym['K_LAST'] - sym[NAME + '_kernel'] - 128) & ~63
    print('overflow', ov, 'lines', len(lines), 'bytes', cb, file=sys.stderr)
```

```python
import sys, re
from asmlib import *
import gen as G
from gen import (NAME, MB, V_L16, V_TR, V_WD, V_AD, V_AR, V_T, V_WB, V_ACC, V_R, QSCALE, w_dma_voff, tr_addrs, areg, rbase,
                 Passes, cvt_pairs, V_AV, V_AK, V_LB, V_E, V_NB, V_P, V_NA, V_OB, V_OA, A_QL, A_K, A_V, A_ONE, A_L, RING, NINF,
                 qfrag, stile, otile, ntile, lacc, qk_mfmas, pv_mfmas, sm_ops, k_reads, v_reads)

WS_XN, WS_KV, WS_A3, WS_FLG, WS_W3, WS_X, WS_PROF = 0, 2 * MB, 34 * MB, 57 * MB, 58 * MB, 64 * MB, 80 * MB
LDS_SZ = 163840
ST = ' sc1'
LD = ' sc1'
PROF = False
ROT1 = 1
ROT2 = 1
ALEAD = 3
LNAT = 80
W4AT = 94
SIGD = 90
PKAT = (1905, 8)
XLATE = 0
TOUCHG = 0
RING8 = 1
KVSP = 20
KV0 = 1860
EXP = ()
ALN = 5
EPD = 0
S4P = 5
S4S = 2
LATE = ()
WAT = {2: 34, 3: 80, 4: 128, 5: 222, 6: 276, 7: 296, 8: 316, 9: 410, 10: 452, 11: 500, 12: 370, 13: 540, 14: 580, 15: 660, 16: 615,
       17: 700, 18: 740, 19: 775, 20: 1105, 21: 1165, 22: 1225, 23: 1285, 24: 1345, 25: 1405, 26: 1465, 27: 1525, 28: 1585, 29: 1645, 30: 1705, 31: 1765}
UORD = 'a0 b0 a1 a2 b1 a3 a4 b2 a5 a6 b3 a7 b4 b5 b6 b7'
AAT = {2: 4, 3: 52, 4: 96, 5: 150, 6: 192, 7: 246}
ARD = {1: 32, 2: 80, 3: 136, 4: 176, 5: 232, 6: 272, 7: 328}
XAT = 0
ROTM = 2
LAY = 1
RELAX = 0
_E = list(range(0, 32, 2)); _C = [4 * c + 3 for c in range(8)]
LAYS = [(_E, list(range(1, 17, 2)), list(range(17, 33, 2)), [5, 13, 21, 29], _C),
        (_E, [1, 1, 3, 7, 9, 9, 11, 15], [17, 17, 19, 23, 25, 25, 27, 31], [5, 13, 21, 29], _C),
        ([0, 2, 4, 6, 8, 11, 13, 15, 17, 19, 22, 24, 26, 28, 30, 33][:16], [1, 3, 5, 7, 9, 12, 14, 16], [18, 20, 23, 23, 25, 27, 29, 31], [9, 10, 21, 29], [3, 7, 12, 16, 20, 25, 31, 33]),
        ]
STO = ''
PKOP = 1
CNT = 0
STKV = ' sc1'
WBD = 200
MAP1 = 0
S0AT = 220
S1AT = 700
VS0 = 2
PKT = [1256, 1306, 1356, 1406, 1481, 1531, 1581, 1631]
W4T = 0
GSP = 7.0
GCAP = (1,)
HAT = (1700, 28)
WB = (1105, 60)
XSP = 4.6
KVAT = [(392, 24), (584, 24), (1125, 14), (1255, 22)]
BIGOFF = 0x7fffff00
SPIN = 1 << 16
PGAPS = [256 * p + 255 for p in range(8)]

R_X, R_CKV, R_WQ, R_WK, R_WV, R_W3, R_WG, R_WU, R_OUT, R_DBG, R_WS, R_KV, R_TMP = 4, 8, 12, 16, 20, 24, 28, 32, 36, 40, 44, 48, 52
sT, sT1, sT2, sU, sV, sK = 56, 57, 58, 59, 60, 61
sM0W, sJ, sH = 62, 63, 64
sA, sW1, sM0A, sKVO, sXO, sXN, sQS, sF2P = 65, 66, 67, 68, 69, 70, 71, 72
sDH, sDC, sKQ, sXS, sO, sXI, sF4C, sM0O = 65, 66, 67, 68, 69, 70, 71, 72
sXA, sXB, sWQ, sWG, sHA, sHB, sPS, sPD = 73, 74, 75, 76, 77, 78, 79, 80
sSLOT, sM0R, sCNT, sNINF, sTHR = 73, 74, 75, 76, 77
sCA, sCB, sSRC, sM0B, sQB, sFLAG, sMASK, sFX, sSPIN = 81, 82, 83, 84, 85, 86, 88, 96, 97
sROT, sROT2 = 0, 1
sM0P = 52
sKR, sRA, sRW = 79, 53, 54
sWP = 53
sRLX = 78
sSEN = 55
sGW, sGA = 0, 1
sSPARE = sW0 = sM0B
V_SIG, V_POLL, V_PROF = 14, 13, 15

DIAG = None
def stamp(k, vp=V_PROF, fine=False):
    if PROF == 2:
        if k not in (0, 24): return []
        k = min(k, 1)
    if len(PGAPS) > 8 and k > 2 and not fine:
        if k != 24: return []
        k = 3 + len(PGAPS)
    if DIAG == k: return ['s_memrealtime s[98:99]', 's_waitcnt lgkmcnt(0)']
    if not PROF: return []
    o = [f'v_mov_b32 v{vp}, 0'] if k == 0 else []
    return o + ['s_memrealtime s[98:99]', 's_memtime s[100:101]', 's_waitcnt lgkmcnt(0)', f'v_writelane_b32 v{vp}, s98, {2*k}', f'v_writelane_b32 v{vp}, s100, {2*k+1}']

def chain(sc, ops, g, hi=None):
    prev = None
    for o in ops:
        if isinstance(o, int):
            g += o; continue
        k = kind_of(o)
        if prev is not None and not (k == 'v' and prev == 'v'): g += 1
        g = sc.place(o, g, hi)
        prev = k
    return g + 1

def PK_(ops):
    return packify(ops) if PKOP else ops

def wsrd(r):
    return S(r, 4)

def gen_fused(code_bytes):
    nm = NAME + '_kernel'
    OOL = []
    uord = [('ab'.index(x[0]), int(x[1])) for x in UORD.split()]
    assert ROT1
    L = [f'.globl {nm}', '.p2align 8', f'.type {nm},@function', f'{nm}:', 's_cmp_ge_u32 s2, 256', 's_cbranch_scc1 K_END']
    if DIAG == -1: L += ['s_memrealtime s[98:99]']
    for r, off in ((R_CKV, 8), (R_WK, 24), (R_X, 0), (R_WQ, 16), (R_WV, 32), (R_W3, 40), (R_WG, 56), (R_WU, 64), (R_KV, 72), (R_OUT, 80), (R_DBG, 88), (R_WS, 96)):
        L.append(f's_load_dwordx2 s[{r}:{r+1}], s[0:1], {off}')
    L += [f's_getpc_b64 s[{R_TMP}:{R_TMP+1}]', f's_mov_b32 s{R_TMP+2}, {code_bytes}', f's_mov_b32 s{R_TMP+3}, 0x20000',
          f's_lshr_b32 s{sU}, s2, 3', f's_lshl_b32 s{sV}, s{sU}, 12', f'v_lshl_add_u32 v1, v0, 4, s{sV}',
          f'buffer_load_dword v2, v1, {wsrd(R_TMP)}, 0 offen',
          f'v_lshl_add_u32 v18, s2, 8, v0',
          f'v_cmp_eq_u32 vcc, 0, v0', f'v_mov_b32 v19, {BIGOFF:#x}',
          'v_lshrrev_b32 v1, 6, v0', 'v_and_b32 v0, 63, v0', 'v_readfirstlane_b32 s3, v1', 'v_cndmask_b32 v19, v19, v0, vcc']
    for r, sz in ((R_CKV, 2 * MB), (R_WK, 4 * MB), (R_X, 2 * MB), (R_WQ, 4 * MB), (R_WV, 4 * MB), (R_WG, 512 * 3584), (R_WU, 512 * 3584),
                  (R_OUT, 2 * MB), (R_DBG, 256), (R_WS, 80 * MB)):
        L += [f's_mov_b32 s{r+2}, {sz:#x}', f's_mov_b32 s{r+3}, 0x20000']
    sRB, sH1 = sT1, sT2
    rotfix = [f's_and_b32 s{sCA}, s{sCA}, {ROTM}']
    L += [f's_and_b32 s{sU}, s2, 1', f's_lshl_b32 s{sU}, s{sU}, 2', f's_bfe_u32 s{sV}, s2, 0x20003', f's_add_u32 s{sRB}, s{sU}, s{sV}',
          f's_bfe_u32 s{sU}, s2, 0x20001', f's_add_u32 s{sCA}, s{sU}, s{sV}', f's_lshl_b32 s{sU}, s{sU}, 3', f's_lshr_b32 s{sV}, s2, 5', f's_add_u32 s{sH1}, s{sU}, s{sV}']
    if MAP1:
        L = L[:-9] + [f's_lshr_b32 s{sRB}, s2, 5', f's_and_b32 s{sU}, s2, 7', f's_add_u32 s{sCA}, s{sU}, s{sRB}', f's_lshl_b32 s{sU}, s{sU}, 2',
                      f's_bfe_u32 s{sV}, s2, 0x20003', f's_add_u32 s{sH1}, s{sU}, s{sV}']
        if MAP1 == 2: L += [f's_add_u32 s{sCA}, s{sV}, s{sRB}']
    L += rotfix + [f's_lshl_b32 s{sU}, s{sRB}, 2', f's_add_u32 s{sU}, s{sU}, s3', f's_lshl_b32 s{sA}, s{sU}, 16',
          f's_lshl_b32 s{sV}, s{sH1}, 20', f's_lshl_b32 s{sU}, s{sU}, 15', f's_add_u32 s{sKVO}, s{sU}, s{sV}', f's_add_u32 s{sKVO}, s{sKVO}, {WS_KV:#x}',
          f's_lshl_b32 s{sU}, s3, 18', f's_lshl_b32 s{sV}, s{sH1}, 8', f's_add_u32 s{sW1}, s{sU}, s{sV}',
          f's_and_b32 s{sU}, s{sU}, 0x40000', f's_add_u32 s{sW0}, s{sU}, s{sV}', f's_lshr_b32 s{sWP}, s3, 1', f's_lshl_b32 s{sU}, s{sCA}, 20', f's_add_u32 s{sW0}, s{sW0}, s{sU}',
          f's_lshl_b32 s{sM0W}, s3, 12', f's_lshl_b32 s{sM0A}, s3, 14', f's_add_u32 s{sM0A}, s{sM0A}, 65536',
          f's_lshl_b32 s{sF2P}, s{sH1}, 7', f's_add_u32 s{sF2P}, s{sF2P}, {WS_FLG:#x}']
    t = V_T + 4
    L += [f'v_lshrrev_b32 v{t}, 3, v0', f'v_lshlrev_b32 v{t}, 10, v{t}',
          f'v_lshrrev_b32 v{t+1}, 4, v0', f'v_and_b32 v{t+2}, 7, v0', f'v_xor_b32 v{t+1}, v{t+1}, v{t+2}', f'v_xor_b32 v{t+2}, 4, v{t+1}',
          f'v_lshl_add_u32 v{t+1}, v{t+1}, 4, v{t}', f'v_lshl_add_u32 v{t+2}, v{t+2}, 4, v{t}']
    for i in range(4):
        L.append(f'v_add_u32 v{V_AD+i}, {i * 8192 - i * 1024}, v{t + 1 + (i & 1)}')
    L += w_dma_voff(V_WD, 8192, t)
    L += ['s_waitcnt lgkmcnt(0)', f's_mov_b32 s{sROT}, s{sCA}' if ROT1 else f's_mov_b32 s{sROT}, 0'] + stamp(0, 39)
    def rot_off(dst, rot, i, mul, base, add):
        o = [f's_add_u32 s{dst}, s{rot}, {i}', f's_and_b32 s{dst}, s{dst}, 3', f's_mul_i32 s{dst}, s{dst}, {mul}', f's_add_u32 s{dst}, s{dst}, s{base}']
        return o + ([f's_add_u32 s{dst}, s{dst}, {add}'] if add else [])
    def a_items(c):
        it = []
        for hf in range(2):
            it += rot_off(sT, sROT, c // 2, 256, sA, (c % 2) * 128) if hf == 0 else [f's_add_u32 s{sT}, s{sT}, 32768']
            it += [f's_add_u32 m0, s{sM0A}, {(c % 2) * 8192 + hf * 4096}', 's_nop 0']
            it += [f'buffer_load_dwordx4 v{V_AD+i}, {wsrd(R_CKV)}, s{sT} offen offset:{i*1024} lds ; @A{c}' for i in range(4)]
        return it
    V_GD = (30, 31, 16, 17)
    def half(p):
        return 65536 if (p >= 3 and p % 2 == 1) else 0
    def w_items(st):
        p, s4 = st // 4, st % 4
        lo = half(p) + s4 * 16384
        if p in (4, 5):
            it = [f's_add_u32 m0, s{sM0W}, {lo}'] + rot_off(sT, sROT2, s4, 128 * 3584, sWG, 0)
            return it + [f'buffer_load_dwordx4 v{V_GD[i]}, {wsrd(R_WG if p == 4 else R_WU)}, s{sT} offen offset:{i*1024} lds ; @W{st}' for i in range(4)]
        if p < 2:
            (h0, c0), (h1, c1) = uord[2 * st], uord[2 * st + 1]
            it = [f's_add_u32 m0, s{sM0W}, {lo}', f's_mul_i32 s{sT}, s{sWP}, {((c1 - c0) % 8) * 64 * 8192 + (h1 - h0) * 128}',
                  f's_add_u32 s{sT}, s{sT}, {c0 * 64 * 8192 + h0 * 128}', f's_add_u32 s{sT}, s{sT}, s{sW0}', f's_and_b32 s{sT}, s{sT}, {4 * MB - 1:#x}']
            return it + [f'buffer_load_dwordx4 v{V_WD+i}, {wsrd(R_WK)}, s{sT} offen offset:{i*1024} lds ; @W{st}' for i in range(4)]
        r, so = (R_WK, sW1) if p < 2 else (R_WV, sW1) if p < 4 else (R_WQ, sWQ)
        it = [f's_add_u32 m0, s{sM0W}, {lo}'] + rot_off(sT, sROT if p < 4 else sROT2, s4, 128 * 8192, so, (p % 2) * 128)
        it += [f'buffer_load_dwordx4 v{V_WD+i}, {wsrd(r)}, s{sT} offen offset:{i*1024} lds ; @W{st}' for i in range(4)]
        return it
    L += a_items(0) + w_items(0)
    if W4T: L += ['v_lshrrev_b32 v29, 1, v0', 'v_lshlrev_b32 v29, 13, v29', f'buffer_load_dword v29, v29, {wsrd(R_WK)}, s{sT} offen offset:128']
    L += [f'v_lshlrev_b32 v{V_L16}, 4, v0', f's_mov_b32 s{sQS}, {QSCALE:#x}']
    L += tr_addrs(V_TR, t)
    L += [f'v_and_b32 v{t}, 15, v0', f'v_lshrrev_b32 v{t+1}, 1, v{t}', f'v_lshrrev_b32 v{t+2}, 4, v0', f'v_xor_b32 v{t+1}, v{t+1}, v{t+2}',
          f'v_lshlrev_b32 v{t}, 7, v{t}', f'v_add_u32 v{t}, s{sM0A}, v{t}',
          f'v_lshl_add_u32 v{V_AR}, v{t+1}, 4, v{t}', f'v_xor_b32 v{V_AR+1}, 64, v{V_AR}']
    L += [f's_lshl_b32 s{sU}, s2, 2', f's_add_u32 s{sU}, s{sU}, s3', f's_lshl_b32 s{sXO}, s{sU}, 11',
          f's_lshr_b32 s{sU}, s2, 2', f's_lshl_b32 s{sXN}, s{sU}, 15', f's_bfe_u32 s{sU}, s2, 0x10001', f's_lshl_b32 s{sU}, s{sU}, 10',
          f's_add_u32 s{sXN}, s{sXN}, s{sU}', f's_and_b32 s{sU}, s2, 1', f's_lshl_b32 s{sU}, s{sU}, 7', f's_add_u32 s{sXN}, s{sXN}, s{sU}',
          f's_lshl_b32 s{sU}, s3, 13', f's_add_u32 s{sXN}, s{sXN}, s{sU}']
    sQA = sK
    L += [f's_and_b32 s{sU}, s2, 7', f's_lshl_b32 s{sU}, s{sU}, 2', f's_bfe_u32 s{sV}, s2, 0x20003', f's_add_u32 s{sH}, s{sU}, s{sV}',
          f's_lshr_b32 s{sJ}, s2, 5', f's_lshl_b32 s{sU}, s{sJ}, 2', f's_add_u32 s{sQB}, s{sU}, s3',
          f's_sub_u32 s{sV}, 60, s{sU}', f's_add_u32 s{sQA}, s{sV}, s3',
          f's_lshl_b32 s{sXA}, s{sQA}, 15', f's_lshl_b32 s{sXB}, s{sQB}, 15',
          f's_lshl_b32 s{sU}, s3, 18', f's_lshl_b32 s{sV}, s{sH}, 8', f's_add_u32 s{sWQ}, s{sU}, s{sV}',
          f's_add_u32 s{sV}, s{sH}, 1', f's_lshr_b32 s{sV}, s{sV}, 3', f's_sub_u32 s{sV}, s{sH}, s{sV}', f's_lshl_b32 s{sV}, s{sV}, 7', f's_mul_i32 s{sU}, s3, {32 * 3584}', f's_add_u32 s{sWG}, s{sU}, s{sV}']
    for q, hh, cc in ((sQA, sHA, sCA), (sQB, sHB, sCB)):
        L += [f's_lshr_b32 s{sU}, s{q}, 1', f's_mul_i32 s{sU}, s{sU}, {184 * 4096}', f's_and_b32 s{sV}, s{q}, 1', f's_lshl_b32 s{sV}, s{sV}, 11',
              f's_add_u32 s{sU}, s{sU}, s{sV}', f's_add_u32 s{sU}, s{sU}, {WS_A3:#x}', f's_add_u32 s{sV}, s{sH}, 1', f's_lshr_b32 s{sV}, s{sV}, 3', f's_sub_u32 s{sV}, s{sH}, s{sV}', f's_lshl_b32 s{sV}, s{sV}, 13', f's_add_u32 s{hh}, s{sU}, s{sV}',
              f's_lshl_b32 s{sV}, s{sH}, 14', f's_add_u32 s{sU}, s{sU}, s{sV}', f's_add_u32 s{cc}, s{sU}, {56 * 4096}']
    L += ['s_cmp_lt_u32 s2, 56', f's_cselect_b32 s{R_W3}, s{R_KV}, s{R_W3}', f's_cselect_b32 s{R_W3+1}, s{R_KV+1}, s{R_W3+1}',
          f's_cselect_b32 s{sU}, 0, 56', f's_mov_b32 s{sV}, {4*MB:#x}', f's_cselect_b32 s{R_W3+2}, {1792*1024:#x}, s{sV}', f's_mov_b32 s{R_W3+3}, 0x20000',
          f's_min_u32 s{sV}, s2, 183', f's_sub_u32 s{sU}, s{sV}, s{sU}', f's_lshl_b32 s{sU}, s{sU}, 15', f's_lshl_b32 s{sPS}, s3, 8', f's_add_u32 s{sPS}, s{sPS}, s{sU}',
          f's_lshl_b32 s{sV}, s{sV}, 12', f's_mul_i32 s{sU}, s3, {2 * 184 * 4096}', f's_add_u32 s{sPD}, s{sU}, s{sV}', f's_add_u32 s{sPD}, s{sPD}, {WS_W3:#x}']
    L += [f's_lshl_b32 s{sU}, s{sH}, 20', f's_add_u32 s{sU}, s{sU}, {WS_KV:#x}', f's_add_u32 s{R_KV}, s{R_WS}, s{sU}', f's_addc_u32 s{R_KV+1}, s{R_WS+1}, 0',
          f's_lshl_b32 s{sU}, s{sJ}, 16', f's_sub_u32 s{R_KV+2}, 0x100000, s{sU}', f's_mov_b32 s{R_KV+3}, 0x20000',
          's_cmp_lt_u32 s3, 2', f's_cselect_b32 s{sU}, 0xc000, 0', f's_add_u32 s{sSRC}, s{sU}, s{sM0W}',
          f's_mov_b64 s[{sFLAG}:{sFLAG+1}], 0']
    if TOUCHG:
        L += ['s_bitcmp1_b32 s3, 0', f's_cselect_b32 s{R_TMP}, s{R_WU}, s{R_WG}', f's_cselect_b32 s{R_TMP+1}, s{R_WU+1}, s{R_WG+1}', f's_mov_b32 s{R_TMP+2}, s{R_WG+2}',
              f's_lshl_b32 s{sU}, s{sJ}, 1', f's_lshr_b32 s{sV}, s3, 1', f's_add_u32 s{sU}, s{sU}, s{sV}', f's_mul_i32 s{sU}, s{sU}, {32 * 3584}',
              f's_add_u32 s{sV}, s{sH}, 1', f's_lshr_b32 s{sV}, s{sV}, 3', f's_sub_u32 s{sV}, s{sH}, s{sV}', f's_lshl_b32 s{sV}, s{sV}, 7', f's_add_u32 s{sFX}, s{sU}, s{sV}']
    L += [f's_mov_b32 s{sROT2}, s{sJ}' if ROT2 else f's_mov_b32 s{sROT2}, 0',
          'v_cmp_gt_u32 vcc, 64, v18', 'v_lshlrev_b32 v20, 7, v0', f'v_mov_b32 v21, {BIGOFF:#x}', 'v_cndmask_b32 v20, v21, v20, vcc',
          'v_cmp_eq_u32 vcc, 0, v18', 'v_mov_b32 v22, 0', 'v_mov_b32 v23, 1', 'v_cndmask_b32 v21, v21, v22, vcc',
          'v_lshrrev_b32 v18, 1, v0', 'v_mul_u32_u24 v18, 3584, v18', f'v_add_u32 v18, s{sFX}, v18',
          f's_mov_b32 s{sFX}, {WS_FLG:#x}', f's_mov_b32 s{sSPIN}, {WS_FLG + 8192:#x}']
    L += [f'v_lshrrev_b32 v{t}, 4, v0', f'v_lshlrev_b32 v{t}, 2, v{t}', f'v_and_b32 v{t+1}, 15, v0']
    for i in range(4):
        L += [f'v_add_u32 v{t+2}, {i}, v{t}', f'v_cmp_gt_u32 s[{sMASK+2*i}:{sMASK+2*i+1}], v{t+2}, v{t+1}']
    V_C2 = 3
    L += [f'v_mov_b32 v{V_C2}, 0xbdd2d3e8']
    XR, X = 64, 72
    L += [f'v_lshrrev_b32 v{t}, 5, v0', f'v_and_b32 v{t+1}, 31, v0', f'v_lshlrev_b32 v{t+1}, 4, v{t+1}', f'v_lshl_add_u32 v{t+2}, v{t}, 10, v{t+1}',
          ]
    xld = [f'buffer_load_dwordx4 {V(XR, 4)}, v{t+2}, {wsrd(R_X)}, s{sXO} offen', f'buffer_load_dwordx4 {V(XR+4, 4)}, v{t+2}, {wsrd(R_X)}, s{sXO} offen offset:512']
    zst = [f'buffer_store_dword v22, v20, {wsrd(R_WS)}, s{sFX} offen sc1 ; @Z', f'buffer_store_dword v22, v20, {wsrd(R_WS)}, s{sSPIN} offen sc1 ; @Z']
    L += w_items(1) + a_items(1)
    P = Passes(['T', 'T', 'N', 'N', 'T', 'T', 'T', 'T'], uord)
    sc = P.sc
    qa = qk_mfmas('A', 0, True)
    sc.extend([qa[i] for i in (0, 1, 2, 4, 5, 6, 3, 7)] + qa[8:] + qk_mfmas('B', 1))
    sc.put(2030, 'WAITVM HS'); sc.s[2030].append('s_waitcnt lgkmcnt(0)'); sc.put(2031, 's_barrier')
    def barg(st):
        return 8 * (8 * (st - 1) + 5) + 7
    def a_reads(c):
        return [f'ds_read_b128 {areg(2*c + k, rt)}, v{V_AR + k} offset:{(c % 2) * 8192 + rt * 2048}' for k in range(2) for rt in range(4)]
    L += stamp(1, 39) + ['WAITVM W0', 's_barrier'] + stamp(2, 39)
    L += a_reads(0) + P.tr_reads(0) + P.tr_reads(1)
    ev = [(XAT, xld, None), (0.1, zst, None)]
    for c in range(1, 8):
        g0 = (ARD[c] // 8) * 8 + 4
        assert g0 < 32 * uord.index((0, c)) - 8, c
        sc.put(g0 - 1, f'WAITVM A{c}')
        for i, r in enumerate(a_reads(c)):
            sc.put(g0 + (i // 2), r)
    for c in range(2, 8):
        assert c == 2 or AAT[c] >= (ARD[c - 2] // 8) * 8 + 12
        ev.append((AAT[c], a_items(c), areg(2 * (c - 2) + 1, 3)))
    abar = min(st for st in range(1, 9) if barg(st) > ARD[7] + 10)
    def w_piece(st, i):
        it = w_items(st)
        dm = [k for k, x in enumerate(it) if x.startswith('buffer_')]
        m0s = [x for x in it[:dm[i]] if ' m0,' in x]
        return [x for x in it[:dm[0]] if ' m0,' not in x] + [m0s[-1], it[dm[i]]]
    for st in range(2, 32):
        early = 0 if st < 4 else barg(st - 3 if st < 12 else abar if st < 16 else st - 7) + 1
        want = WAT[st]
        if isinstance(want, tuple):
            for i in range(4):
                assert early <= want[0] and want[0] + 3 * want[1] < barg(st) - 60, st
                ev.append((want[0] + want[1] * i, w_piece(st, i), None))
        else:
            assert want < barg(st) - 60 or st < 8, st
            ev.append((max(early, want), w_items(st), None))
    for p in range(3, 8):
        for ct in range(4): sc.place(f'v_xor_b32 v{V_TR+ct}, 0x10000, v{V_TR+ct}', 256 * p - 44 + 8 * ct, 256 * p - 17 + 8 * ct)
    def x_items(ss):
        if ss % 2 == 0:
            it = rot_off(sT2, sROT2, ss // 2, 8192, sXA, 0)[:3] + [f's_add_u32 s{sT1}, s{sT2}, s{sXA}', f's_add_u32 s{sT2}, s{sT2}, s{sXB}']
        else:
            it = [f's_add_u32 s{sT1}, s{sT1}, 4096', f's_add_u32 s{sT2}, s{sT2}, 4096']
        for k in range(2):
            for rt in range(4):
                it.append(f'buffer_load_dwordx4 {areg(2 * ss + k, rt)}, v{V_L16}, {wsrd(R_WS)}, s{sT1 if rt < 2 else sT2} offen offset:{k * 2048 + (rt % 2) * 1024}{LD}')
        return it
    def kv_items(i):
        it = [f's_add_u32 m0, s{sM0W}, {((i + 3) % 8) * 16384}']
        if i >= 0: it += [f's_add_u32 s{sT}, s{sSRC}, {i * 16384}']
        else: it += [f's_add_u32 s{sT}, s{sM0W}, {(i + 3) * 16384}']
        it += [f'buffer_load_dwordx4 v{V_L16}, {wsrd(R_KV)}, s{sT} offen offset:{k*1024}{LD} lds ; @KV{i}' for k in range(4)]
        return it
    for i in range(-3, 5):
        ev.append((max(KV0 + KVSP * (i + 3), barg(28 + max(i, 0)) + 1), kv_items(i), None))
    V_PK = 18
    pk = []
    for i in range(8):
        ev.append((PKT[i], [f's_add_u32 m0, s{sM0P}, {i * 1024}', f's_add_u32 s{sT}, s{sPS}, {i * 4096}',
                                           f'buffer_load_dwordx4 v{V_PK + (i & 1)}, {wsrd(R_W3)}, s{sT} offen lds ; @PK'], None))
    ev.sort(key=lambda e: e[0])
    glastA = 0
    for g, it, touch in ev:
        it = [x for x in it if x != 's_nop 0']
        if touch: it = [f'TOUCH {touch}'] + it
        ge = P.dma_group(it, int(g), vmspace=(VS0 if g < 400 else 3 if g < 1792 else 2))
        if '@A7' in it[-1]: glastA = ge
        if '@W5' in it[-1]: gW5 = ge
    def signal(st, tag, srdr, setup, V_POLL=V_POLL, V_SIG=V_SIG):
        sc.s[barg(st) - 1].insert(0, f'WAITVM {tag}')
        return chain(sc, setup + [f'v_mov_b32 v{V_POLL}, 1', f'buffer_atomic_add v{V_POLL}, v{V_SIG}, {wsrd(srdr)}, s{sFX} offen'], barg(st) + 1)
    def poll_ool(name, vaddr, srdr, soff, expect, V_POLL=V_POLL):
        nonlocal OOL
        cnt = []
        if CNT: cnt = ['s_waitcnt vmcnt(0)', f'v_mov_b32 v{V_POLL}, 1', f'buffer_atomic_add v{V_POLL}, v{19 if name == "S0" else V_SIG}, {wsrd(R_DBG)}, 0 offen offset:{128 + 4 * int(name[1])}', 's_nop 1']
        OOL += [f'{name}:', f's_mov_b32 s{sSPIN}, {SPIN}'] + cnt + [f'{name}_L:',
                f'buffer_load_dword v{V_POLL}, v{vaddr}, {wsrd(srdr)}, {soff} offen sc1', f's_sub_u32 s{sSPIN}, s{sSPIN}, 1', 's_waitcnt vmcnt(0)',
                f's_cbranch_scc1 {name}_RET', f'v_cmp_gt_u32 vcc, {expect}, v{V_POLL}', f's_cbranch_vccnz {name}_L', f's_branch {name}_RET']
    def poll(name, g_issue, g_check, setup, vaddr, srdr, soff, expect, vmspace=1, V_POLL=V_POLL):
        g = chain(sc, setup, g_issue)
        g = sc.place(f'buffer_load_dword v{V_POLL}, v{vaddr}, {wsrd(srdr)}, {soff} offen sc1', g, vmspace=vmspace)
        assert g <= g_check - 60, (name, g)
        g = sc.place(f'v_cmp_gt_u32 vcc, {expect}, v{V_POLL}', g_check)
        g = sc.place(f's_cbranch_vccnz {name}', g + 1)
        sc.s[g].append(f'{name}_RET:')
        poll_ool(name, vaddr, srdr, soff, expect, V_POLL)
        return g + 1
    LNX = 131072
    g = chain(sc, [f'v_mov_b32 v{V_SIG}, v19', 'v_mov_b32 v12, 0'] + ([f'v_mov_b32 v{V_PROF}, v39'] if PROF else []), glastA)
    gmove = g - 2
    gs0 = poll('S0', S0AT, S0AT + 70, [], 22, R_DBG, '0', 1, vmspace=0, V_POLL=90)
    g = sc.place('WAITVM Z', 60) + 1
    sc.place(f'buffer_store_dword v23, v21, {wsrd(R_DBG)}, 0 offen sc1', g, vmspace=0)
    sm, s2_, tm = t + 3, t + 4, t + 2
    def reduce32(r, tmp):
        o = []
        for n in (8, 4, 2, 1):
            o += [2, f'v_add_f32_dpp v{r}, v{r}, v{r} row_ror:{n} row_mask:0xf bank_mask:0xf']
        o += [f'v_mov_b32 v{tmp}, v{r}', 2, f'v_permlane16_swap_b32 v{r}, v{tmp}', f'v_add_f32 v{r}, v{r}, v{tmp}']
        return o
    ln = []
    for i in range(8):
        ln += [f'v_lshlrev_b32 v{X+2*i}, 16, v{XR+i}', f'v_and_b32 v{X+2*i+1}, 0xffff0000, v{XR+i}']
    ln += [f'v_add_f32 v{sm}, v{X}, v{X+1}', f'v_add_f32 v{s2_}, v{X+2}, v{X+3}']
    for i in range(4, 16, 2):
        ln += [f'v_add_f32 v{sm}, v{sm}, v{X+i}', f'v_add_f32 v{s2_}, v{s2_}, v{X+i+1}']
    ln += [f'v_add_f32 v{sm}, v{sm}, v{s2_}'] + reduce32(sm, tm) + [f'v_mul_f32 v{sm}, 0x3b000000, v{sm}']
    ln += [f'v_sub_f32 v{X+i}, v{X+i}, v{sm}' for i in range(16)]
    ln += [f'v_mul_f32 v{sm}, v{X}, v{X}', f'v_mul_f32 v{s2_}, v{X+1}, v{X+1}']
    for i in range(2, 16, 2):
        ln += [f'v_fmac_f32 v{sm}, v{X+i}, v{X+i}', f'v_fmac_f32 v{s2_}, v{X+i+1}, v{X+i+1}']
    ln += [f'v_add_f32 v{sm}, v{sm}, v{s2_}'] + reduce32(sm, tm)
    ln += [f'v_mov_b32 v{s2_}, 0x3b000000', f'v_fmaak_f32 v{sm}, v{sm}, v{s2_}, 0x3727c5ac', f'v_rsq_f32 v{sm}, v{sm}']
    ln += [f'v_mul_f32 v{X+i}, v{X+i}, v{sm}' for i in range(16)]
    ln += [f'v_cvt_pk_bf16_f32 v{XR+i}, v{X+2*i}, v{X+2*i+1}' for i in range(8)]
    ln += [f's_lshl_b32 s{sU}, s3, 5', f's_add_u32 s{sU}, s{sU}, {LNX}', f'v_lshlrev_b32 v{tm}, 3, v{t+1}', f'v_lshl_add_u32 v{tm}, v{t}, 4, v{tm}', f'v_add_u32 v{tm}, s{sU}, v{tm}',
           f'ds_write_b128 v{tm}, {V(XR,4)}', f'ds_write_b128 v{tm}, {V(XR+4,4)} offset:4096']
    g = chain(sc, ln, LNAT)
    lnbar = min(st for st in range(2, 9) if barg(st) - 2 >= g)
    g = chain(sc, [f's_lshl_b32 s{sU}, s3, 11', f's_add_u32 s{sU}, s{sU}, {LNX}', f'v_add_u32 v{sm}, s{sU}, v{V_L16}',
                   f'v_bfe_u32 v{tm}, v0, 3, 2', f'v_and_b32 v{s2_}, 7, v0', f'v_lshlrev_b32 v{s2_}, 4, v{s2_}',
                   f'v_lshl_add_u32 v{s2_}, v{tm}, 8, v{s2_}', f'v_lshl_add_u32 v{s2_}, v{t}, 11, v{s2_}', f's_add_u32 s{sXO}, s{sXN}, 4096'], g)
    g = chain(sc, [f'ds_read_b128 {V(XR,4)}, v{sm}', f'ds_read_b128 {V(XR+4,4)}, v{sm} offset:1024', 6,
                   f'buffer_store_dwordx4 {V(XR,4)}, v{s2_}, {wsrd(R_WS)}, s{sXN} offen{ST} ; @XN',
                   f'buffer_store_dwordx4 {V(XR+4,4)}, v{s2_}, {wsrd(R_WS)}, s{sXO} offen{ST} ; @XN'], max(g, barg(lnbar) + 1))
    assert g < 470, g
    s1bar = min(st for st in range(2, 12) if barg(st) - SIGD >= g and barg(st) > gs0)
    signal(s1bar, 'XN', R_WS, [f's_lshr_b32 s{sFX}, s2, 4', f's_lshl_b32 s{sFX}, s{sFX}, 7', f's_add_u32 s{sFX}, s{sFX}, {WS_FLG + 96 * 128:#x}'], 90, 19)
    gv = w_dma_voff(0, 3584, 34)
    oob = [f's_and_b32 s{sU}, s{sH}, 7', f's_sub_u32 s{sU}, 6, s{sU}', f's_and_b32 s{sU}, s{sU}, 0x40000000', f'v_or_b32 v28, s{sU}, v{V_L16}',
           f'v_or_b32 v35, s{sU}, v35', f'v_or_b32 v36, s{sU}, v36']
    chain(sc, gv[:-4] + oob + [x.replace(f'v_add_u32 v{i},', f'v_add_u32 v{V_GD[i]},') for i, x in enumerate(gv[-4:])], 460, 550)
    g = poll('S1', S1AT, 786, [f's_lshl_b32 s{sU}, s{sJ}, 1', f's_sub_u32 s{sU}, 15, s{sU}', 'v_and_b32 v12, 1, v0', f'v_mul_u32_u24 v12, s{sU}, v12',
                              f'v_add_u32 v12, s{sJ}, v12', 'v_lshlrev_b32 v12, 7, v12', f's_mov_b32 s{sFX}, {WS_FLG + 96 * 128:#x}'], 12, R_WS, f's{sFX}', 16)
    assert g <= 800
    nx = 0
    for ss in range(8):
        for x in x_items(ss):
            if kind_of(x) == 'm':
                g = max(g, 768 + 32 * (ss + 1), int(800 + nx * XSP)); nx += 1
            g = sc.place(x, g, vmspace=1) + 1
        assert g < 1024 + 32 * ss - 30, (ss, g)
    gst = 0
    for p in range(4):
        for f in range(8):
            b = rbase(p) + 8 * f
            ops = []
            if p < 2:
                rt, p2 = f // 2, f % 2
                m, imm = (rt // 2) * 4 + rt % 2, (2 * p + p2) * 1024
                ops = [f'v_mul_f32 v{b+i}, s{sQS}, v{b+i}' for i in range(8)]
            else:
                ct, q = f // 2, f % 2
                m, imm = q * 4 + 2 + (p - 2), ct * 1024
            g0 = KVAT[p][0] + f * KVAT[p][1]
            g = max(g0, chain(sc, ops + cvt_pairs(b), min(g0, ((p + 1) * 256 if p else 32 * uord.index((0, 7)) + 32) + 6 + 28 * f)))
            g = max(g, sc.place(f's_add_u32 s{sK}, s{sKVO}, {m * 4096}', max(gst + 1, g0)) + 1)
            gst = sc.place(f'buffer_store_dwordx4 {V(b,4)}, v{V_L16}, {wsrd(R_WS)}, s{sK} offen offset:{imm}{STKV} ; @KVS', g, vmspace=1)
        assert gst < (p + 2) * 256 + 222, (p, gst)
    s2bar = min(st for st in range(18, 28) if barg(st) - SIGD >= gst)
    if STKV:
        signal(s2bar, 'KVS', R_WS, [f's_mov_b32 s{sFX}, s{sF2P}'])
    else:
        sc.s[barg(s2bar) - 1].insert(0, 'WAITVM KVS')
        g = barg(s2bar) + 1
        sc.s[g] += ['s_cmp_eq_u32 s3, 0', 's_cbranch_scc1 K_WB', 'K_WB_RET:']
        OOL += ['K_WB:', 'buffer_wbl2 sc1', 's_branch K_WB_RET']
        g = sc.place(f'buffer_load_dword v{V_POLL}, v{V_SIG}, {wsrd(R_DBG)}, 0 offen ; @WB', g + 1, vmspace=0)
        chain(sc, [f's_mov_b32 s{sFX}, s{sF2P}', WBD, f'v_mov_b32 v{V_POLL}, 1', f'buffer_atomic_add v{V_POLL}, v{V_SIG}, {wsrd(R_WS)}, s{sFX} offen'], g + 1)
    V_PBASE = 32
    t = 36
    chain(sc, [f'v_lshrrev_b32 v{t}, 4, v0', f'v_and_b32 v{t+1}, 15, v0', f'v_lshlrev_b32 v{t+2}, 1, v{t}', f'v_xor_b32 v{t+1}, v{t+1}, v{t+2}',
               f'v_lshlrev_b32 v{t+1}, 4, v{t+1}', f'v_lshl_add_u32 v{V_PK}, v{t}, 10, v{t+1}',
               f's_sub_u32 s{sV}, 183, s2', f's_and_b32 s{sV}, s{sV}, 0x40000000', f'v_or_b32 v{V_PK}, s{sV}, v{V_PK}', f'v_xor_b32 v{V_PK+1}, 128, v{V_PK}',
               f'v_lshrrev_b32 v{t}, 2, v0', f'v_and_b32 v{t+1}, 7, v{t}', f'v_lshlrev_b32 v{t}, 8, v{t}', f'v_lshl_add_u32 v{t}, v{t+1}, 5, v{t}',
               f'v_and_b32 v{t+1}, 3, v0', f'v_lshlrev_b32 v{t+1}, 4, v{t+1}', f'v_xor_b32 v{t}, v{t+1}, v{t}', f's_lshl_b32 s{sM0P}, s3, 13', f's_add_u32 s{sM0P}, s{sM0P}, {LNX}', f'v_add_u32 v{V_PBASE}, s{sM0P}, v{t}'], min(1030, PKT[0] - 60), PKT[0] - 2)
    t = V_T + 4
    chain(sc, [f's_lshr_b32 s{sKQ}, s{sH}, 3', f's_bfe_u32 s{sU}, s{sH}, 0x10002', f's_lshl_b32 s{sU}, s{sU}, 3', f's_add_u32 s{sU}, s{sU}, s{sJ}',
               f's_lshl_b32 s{sU}, s{sU}, 2', f's_and_b32 s{sV}, s{sH}, 3', f's_add_u32 s{sU}, s{sU}, s{sV}', f's_lshl_b32 s{sU}, s{sU}, 4', f's_add_u32 s{sU}, s{sU}, s3',
               f's_mul_i32 s{sXS}, s{sU}, 6144', f's_add_u32 s{sXS}, s{sXS}, {WS_X:#x}', f's_mul_i32 s{sU}, s{sKQ}, {4 * 6144}', f's_add_u32 s{sXI}, s{sU}, s{sXS}',
               f's_lshl_b32 s{sM0O}, s3, 13'], barg(s2bar) + 20, 1780)
    g = poll('S2', KV0 - 80, KV0 - 8, [f's_lshl_b32 s{sFX}, s{sH}, 7', f's_add_u32 s{sFX}, s{sFX}, {WS_FLG:#x}', 'v_mov_b32 v12, 0'], 12, R_WS, f's{sFX}', 8)
    assert g <= KV0
    sc.s[barg(31) - 1].insert(0, 'WAITVM KV-2')
    g = 1990
    for r in k_reads(V_L16): g = sc.place(r, g) + 1
    k1 = [f'ds_read_b128 {A(A_K + 4 * i, 4)}, v{V_L16} offset:{16384 + i * 1024}' for i in range(8)]
    for i in range(4): sc.put(2048 + 24 + i, k1[i])
    for i in range(4): sc.put(2048 + 28 + i, k1[4 + i])
    for f in (0, 2, 4, 6, 1, 3, 5, 7):
        g = 2016 + 8 * (1 + 2 * (f % 2)) + 2 * (f // 2) + 1 + 5
        for c in cvt_pairs(192 + 8 * f): g = sc.place(c, g)
    for g in range(5 * 256, 7 * 256):
        if g % 8 in GCAP: sc.cap[g] = 3
    gp = 5 * 256 + 6
    ne = 0
    gdone = {}
    for ct in range(4):
        for rt in range(4):
            bg = G.rtile('T', ct, rt, rbase(4)); bu = G.rtile('T', ct, rt, rbase(5))
            for e in range(4):
                tm_ = V_T + ne % 8; ne += 1
                ops = [f'v_mul_f32 v{tm_}, v{bg+e}, v{bg+e}', f'v_fmaak_f32 v{tm_}, v{tm_}, v{V_C2}, 0xc0135761', f'v_mul_f32 v{tm_}, v{tm_}, v{bg+e}',
                       f'v_exp_f32 v{tm_}, v{tm_}', f'v_add_f32 v{tm_}, 1.0, v{tm_}', f'v_rcp_f32 v{tm_}, v{tm_}', f'v_mul_f32 v{bg+e}, v{tm_}, v{bg+e}']
                g = int(gp)
                for o in ops: g = sc.place(o, g) + 1
                assert g - gp < 8 * GSP, (g, gp)
                gdone[(ct, rt, e)] = g
                gp += GSP
    for ct in range(4):
        for rt in range(4):
            bg = G.rtile('T', ct, rt, rbase(4)); bu = G.rtile('T', ct, rt, rbase(5))
            for e in range(4):
                g = sc.place(f'v_mul_f32 v{bu+e}, v{bg+e}, v{bu+e}', max(gdone[(ct, rt, e)], 6 * 256 + 6), 6 * 256 + 224 + 8 * ct + 2 * rt)
                gdone[(rt, ct // 2)] = max(gdone.get((rt, ct // 2), 0), g + 1)
    gh = 0
    for n, (p2, rt) in enumerate([(p2, rt) for p2 in range(2) for rt in range(4)]):
        bu = rbase(5) + (rt * 2 + p2) * 8
        g = max(gdone[(rt, p2)], HAT[0] + HAT[1] * n)
        for c in cvt_pairs(bu): g = sc.place(c, g)
        g = max(g, sc.place(f's_add_u32 s{sK}, s{sHA if rt < 2 else sHB}, {p2 * 4096}', max(gh + 1, g - 6)))
        gh = sc.place(f'buffer_store_dwordx4 {V(bu,4)}, v28, {wsrd(R_WS)}, s{sK} offen offset:{(rt % 2) * 1024}{ST} ; @HS', g + 1, vmspace=1)
    assert gh < 7 * 256 + 200, gh
    g = 7 * 256 + 34
    for f in range(8):
        b = rbase(6) + 8 * f
        for c in cvt_pairs(b): g = sc.place(c, g)
        g += 1
        for i in range(4): g = sc.place(f'v_accvgpr_write_b32 a{A_QL + 4 * f + i}, v{b + i}', g)
        g += 1
        for i in range(8): sc.place(f'v_mov_b32 v{b + i}, 0', g)
    g = 7 * 256 + 130
    g = sc.place(f'v_mov_b32 v29, 0x3f803f80', g) + 1
    for i in range(4): g = sc.place(f'v_accvgpr_write_b32 a{A_ONE + i}, v29', g)
    for i in range(16): g = sc.place(f'v_accvgpr_write_b32 a{A_L + i}, 0', g)
    for i in range(4): g = sc.place(f'v_accvgpr_write_b32 a{116 + i}, -1', g)
    def mask_ops(X):
        o = [f'v_mov_b32 v{ntile(X,1,0) + i}, s{sNINF}' for i in range(4)]
        for kq in range(2):
            o += [f'v_cndmask_b32 v{ntile(X,kq,kq) + i}, v{ntile(X,kq,kq) + i}, v{ntile(X,1,0)}, s[{sMASK+2*i}:{sMASK+2*i+1}]' for i in range(4)]
        return o
    g = max(g, gh, max(PKT) + 30) + 1
    for i in range(16): g = sc.place(f'v_mov_b32 v{V_NB + i}, 0', g)
    assert g < 2040, g
    sc.s[2044] += [f's_cmp_eq_u32 s{sQB}, 0', 's_cbranch_scc1 K_NM0', 'K_NM0_RET:']
    OOL += ['K_NM0:'] + mask_ops('B') + ['s_branch K_NM0_RET']
    g = chain(sc, [f'v_xor_b32 v{V_PBASE + c}, {c * 64}, v{V_PBASE}' for c in range(1, 4)], 1800)
    g = sc.place('WAITVM PK', 1954) + 1
    for c in range(8):
        for hf in range(2):
            g = sc.place(f'ds_read_b64_tr_b16 {A(128 + 4 * c + 2 * hf, 2)}, v{V_PBASE + c // 2} offset:{hf * 4096 + (c % 2) * 8}', g) + 1
    assert g < 2028, g
    def rowmax(X, buf, m=(9, 10), tm=(11, 12), nop='s_nop 0'):
        o = []
        for qs in range(2):
            a, b = stile(buf, 0, qs), stile(buf, 1, qs)
            o += [f'v_max3_f32 v{m[qs]}, v{a}, v{a+1}, v{a+2}', f'v_max3_f32 v{tm[qs]}, v{a+3}, v{b}, v{b+1}',
                  f'v_max3_f32 v{m[qs]}, v{m[qs]}, v{b+2}, v{b+3}', f'v_max_f32 v{m[qs]}, v{m[qs]}, v{tm[qs]}']
        for sw in ('v_permlane16_swap_b32', 'v_permlane32_swap_b32'):
            o += [f'v_mov_b32 v{tm[qs]}, v{m[qs]}' for qs in range(2)] + [nop]
            o += [f'{sw} v{m[qs]}, v{tm[qs]}' for qs in range(2)]
            o += [f'v_max_f32 v{m[qs]}, v{m[qs]}, v{tm[qs]}' for qs in range(2)]
        for qs in range(2):
            for kvt in range(2):
                o += [f'v_sub_f32 v{stile(buf,kvt,qs)+i}, v{stile(buf,kvt,qs)+i}, v{m[qs]}' for i in range(4)]
        for qs in range(2):
            for kvt in range(2):
                o += [f'v_sub_f32 v{ntile(X,kvt,qs)+i}, 0, v{m[qs]}' for i in range(4)]
        return o
    chain(sc, [f's_lshl_b32 s{sFX}, s{sJ}, 7', f's_add_u32 s{sFX}, s{sFX}, {WS_FLG + 32 * 128:#x}', f'v_mov_b32 v{V_POLL}, 4'], 1960, 2030)
    sc.place(f'buffer_atomic_add v{V_POLL}, v{V_SIG}, {wsrd(R_WS)}, s{sFX} offen', 2050, vmspace=1)
    chain(sc, [f'v_add_u32 v{V_AV}, {3 * 16384}, v{V_L16}', f'v_add_u32 v{V_AK}, {2 * 16384}, v{V_L16}',
               f's_sub_u32 s{sU}, 183, s2', f's_and_b32 s{sU}, s{sU}, 0x40000000', f'v_or_b32 v12, s{sU}, v{V_L16}',
               f's_add_u32 s{sV}, s{sXI}, 4096', f's_add_u32 s{sU}, s{sPD}, {184 * 4096}', f's_mov_b32 s{sTHR}, 0x5f800000',
               f's_mov_b32 s{sSLOT}, {3 * 16384}', f's_mov_b32 s{sM0R}, s{sM0W}', f's_mov_b32 s{sCNT}, s{sQB}'], max(gh + 1, 1965), 2040)
    sc.place(f's_add_u32 s{sSRC}, s{sSRC}, {5 * 16384}', 2050)
    ra = rowmax('A', 0, tm=(11, 8), nop=1)
    g = 2048 + 19
    for gg in range(g, 2080): sc.cap[gg] = 3
    while True:
        if isinstance(ra[0], int):
            g += 1; ra.pop(0); continue
        gg = sc.place(ra[0], g, force=False) if g < 2080 else None
        if gg is None: break
        g = gg; ra.pop(0)
    ra = ['s_nop 0' if isinstance(x, int) else x for x in ra]
    zleft = []
    for ct in range(4):
        for rt in range(4):
            b = V_ACC + (ct * 4 + rt) * 4
            lo = 2016 + 8 * ct + 2 * rt + 8
            if sum(max(0, 2 - sc.used[x]) for x in range(lo, 2067)) >= 4:
                for i in range(4): sc.place(f'v_mov_b32 v{b+i}, 0', lo, 2066)
            else: zleft.append(mfma(V(b, 4), A(A_L, 4), A(A_L, 4), '0'))
    sMT, sNT = sT1, sT2
    chain(sc, [f's_bfe_u32 s{sMT}, s{sH}, 0x10002', f's_lshl_b32 s{sMT}, s{sMT}, 3', f's_add_u32 s{sMT}, s{sMT}, s{sJ}',
               f's_and_b32 s{sNT}, s{sH}, 3',
               f's_lshr_b32 s{sV}, s3, 1', f's_sub_u32 s{sU}, s{sNT}, s{sMT}', f's_mul_i32 s{sU}, s{sU}, s{sV}', f's_add_u32 s{sU}, s{sU}, s{sMT}',
               f's_lshl_b32 s{sU}, s{sU}, 1', f's_and_b32 s{sSPARE}, s3, 1', f's_add_u32 s{sU}, s{sU}, s{sSPARE}', f's_mul_i32 s{sU}, s{sU}, {184 * 4096}',
               f's_mul_i32 s{sDH}, s{sV}, {WS_W3 - WS_A3:#x}', f's_add_u32 s{sU}, s{sU}, s{sDH}', f's_add_u32 s{sU}, s{sU}, {WS_A3 - 4096:#x}',
               f's_mul_i32 s{sDH}, s{sKQ}, {14 * 4096}', f's_add_u32 s{sDH}, s{sDH}, s{sU}',
               f's_lshl_b32 s{sDC}, s{sKQ}, 17', f's_add_u32 s{sDC}, s{sDC}, s{sU}', f's_add_u32 s{sDC}, s{sDC}, {56 * 4096}',
               f's_lshl_b32 s{sGW}, s{sNT}, 1', f's_add_u32 s{sGW}, s{sGW}, s{sSPARE}', f's_mul_i32 s{sGW}, s{sGW}, {184 * 4096}', f's_mul_i32 s{sU}, s{sKQ}, {14 * 4096}',
               f's_add_u32 s{sGW}, s{sGW}, s{sU}', f's_add_u32 s{sGW}, s{sGW}, {WS_W3:#x}',
               f's_lshl_b32 s{sGA}, s{sMT}, 1', f's_add_u32 s{sGA}, s{sGA}, s{sV}', f's_mul_i32 s{sGA}, s{sGA}, {184 * 4096}',
               f's_add_u32 s{sGA}, s{sGA}, s{sU}', f's_add_u32 s{sGA}, s{sGA}, {WS_A3:#x}',
               f's_sub_u32 s{sKR}, 1, s{sV}', f's_mul_i32 s{sKR}, s{sKR}, s{sKQ}', f's_add_u32 s{sRA}, s{sV}, 4', f's_lshl_b32 s{sRA}, s{sRA}, 13',
               f's_add_u32 s{sRW}, s{sSPARE}, 6', f's_lshl_b32 s{sRW}, s{sRW}, 13',
               f's_lshl_b32 s{sO}, s{sMT}, 1', f's_add_u32 s{sO}, s{sO}, s{sV}', f's_lshl_b32 s{sO}, s{sO}, 2', f's_add_u32 s{sO}, s{sO}, s{sKQ}', f's_lshl_b32 s{sO}, s{sO}, 14',
               f's_lshl_b32 s{sU}, s{sNT}, 1', f's_add_u32 s{sU}, s{sU}, s{sSPARE}', f's_lshl_b32 s{sU}, s{sU}, 7', f's_add_u32 s{sO}, s{sO}, s{sU}',
               f's_sub_u32 s{sV}, 15, s{sMT}', f's_min_u32 s{sU}, s{sMT}, s{sV}', f's_lshl_b32 s{sU}, s{sU}, 2', f's_add_u32 s{sU}, s{sU}, s{sKQ}',
               f's_lshl_b32 s{sU}, s{sU}, 7', f's_add_u32 s{sF4C}, s{sU}, {WS_FLG + 64 * 128:#x}',
               f's_mov_b32 s{sNINF}, {NINF:#x}'], 7 * 256 + 10)
    for p in range(len(PGAPS)): sc.v[PGAPS[p]] += stamp(3 + p, V_PROF if PGAPS[p] > gmove else 39, True)
    o_ = sc.emit()
    if 'p_b128' in EXP:
        o2 = []
        for x in o_:
            if x.startswith('ds_read_b64_tr'):
                m_ = re.match(r'ds_read_b64_tr_b16 v\[(\d+):\d+\], v\d+ offset:(\d+)', x)
                r_, of = int(m_.group(1)), int(m_.group(2))
                if r_ % 4 == 0: o2.append(f'ds_read_b128 v[{r_}:{r_+3}], v1 offset:{(of // 4096) * 4096 + ((r_ // 8) % 3) * 1024}')
            else: o2.append(x)
        o_ = o2
    if 'p_nods' in EXP: o_ = [x for x in o_ if not x.startswith('ds_read_b64_tr')]
    if 'p_nodma' in EXP: o_ = [x for x in o_ if '@W' not in x]
    if 'p_nogelu' in EXP: o_ = [x for x in o_ if not re.match(r'v_\w+ v2[0-7], (v|1)', x) or 'dpp' in x or 'lsh' in x or 'and' in x or 'xor' in x or 'bfe' in x]
    L += o_
    ov = sc.overflow()
    ex, cv = sm_ops(0)
    rb_ = [x for x in rowmax('B', 1, m=(40, 41), tm=(42, 43)) if x != 's_nop 0']
    L += zleft[:2] + PK_(ra)
    zleft = zleft[2:]
    for i in range(16):
        L += [ex[i], rb_.pop(0)]
        if i % 2 == 1: L.append(cv[i // 2])
        elif zleft: L.append(zleft.pop(0))
    L += ['s_nop 0'] + PK_(rb_) + zleft
    sent = [f'buffer_store_dwordx4 a[116:119], v{V_L16}, {wsrd(R_WS)}, s{sXI if i < 4 else sV} offen offset:{(i % 4) * 1024}{ST}' for i in range(6)]
    pkst = [f'buffer_store_dwordx4 {A(128 + 4 * c, 4)}, v12, {wsrd(R_WS)}, s{sPD if c < 4 else sU} offen offset:{(c % 4) * 1024}{ST}' for c in range(8)]
    L += ['WAITVM KV0', 's_waitcnt lgkmcnt(0)']
    L = autowait(L)
    def step(qk, pv, buf, first, last, rdK, mask=None, loop=None, prevK=True, extra=(), vmw=16, chains=(), lay=0, relax=None):
        s_ = Sched(qk_mfmas(qk, 1 - buf) + pv_mfmas(pv, 1 - buf))
        ex, cv = sm_ops(buf)
        EG, VG, KG, DG, CG = LAYS[lay]
        for g, e in zip(EG, ex): s_.put(g, e)
        before = lambda gs, g: sum(1 for x in gs if x < g)
        if first:
            s_.put(0, 's_barrier')
            for g, r in zip(VG, v_reads()): s_.put(g, r)
            s_.put(1, f's_mov_b32 m0, s{sM0R}')
            s_.put(2, f's_add_u32 s{sM0R}, s{sM0R}, 16384'); s_.put(3, f's_and_b32 s{sM0R}, s{sM0R}, 0x1ffff')
            for k in range(4):
                s_.put(DG[k], f'buffer_load_dwordx4 v{V_L16}, {wsrd(R_KV)}, s{sSRC} offen offset:{k*1024}{LD} lds')
            assert DG[3] < 30 and max(VG) < 17 and min(KG) >= 17 and max(KG) < 32
            s_.put(30, f's_add_u32 s{sSRC}, s{sSRC}, 16384')
            s_.put(17, 's_waitcnt lgkmcnt(4)')
            s_.put(25, f's_waitcnt lgkmcnt({before(KG, 25) if rdK else 0})')
        if prevK: s_.put(7, f's_waitcnt lgkmcnt({before(VG, 7) if first else 0})')
        if rdK:
            for g, r in zip(KG, k_reads(rdK)): s_.put(g, r)
        for g, x in zip(CG, cv): s_.put(g, x)
        w = []
        if last:
            s_.put(27, f's_add_u32 s{sSLOT}, s{sSLOT}, 16384'); s_.put(28, f's_and_b32 s{sSLOT}, s{sSLOT}, 0x1ffff')
            if rdK == V_AK: s_.put(32, f'v_mov_b32 v{V_AK}, v{V_AV}')
            s_.put(32, f'v_add_u32 v{V_AV}, s{sSLOT}, v{V_L16}')
            w.append(f'vmcnt({vmw})')
        if rdK: w.append('lgkmcnt(4)')
        if w: s_.put(33, 's_waitcnt ' + ' '.join(w))
        for g, x in extra: s_.put(g, x)
        if relax:
            s_.put(22, f's_cmp_gt_u32 s{sCNT}, s{sRLX}'); s_.put(23, f's_cbranch_scc1 {relax}')
            s_.s[23] += [f's_waitcnt vmcnt({12 + before(DG, 23)})', f'{relax}:']
        if mask:
            s_.put(19, f's_cmp_eq_u32 s{sCNT}, 1'); s_.put(20, f's_cbranch_scc1 {mask}'); s_.s[20].append(f'{mask}_RET:')
        if loop:
            s_.put(31, f's_sub_u32 s{sCNT}, s{sCNT}, 1'); s_.put(32, f's_cmp_lg_u32 s{sCNT}, 0')
            s_.s[33].append(f's_cbranch_scc1 {loop}')
        if chains:
            for g in range(1, 34, 2): s_.cap[g] = 3
            for c in chains: chain(s_, c, 2)
        o = s_.emit()
        if 'nobar' in EXP: o = [x for x in o if x != 's_barrier']
        if 'nodma' in EXP: o = [x for x in o if not x.startswith('buffer_load')]
        if 'nods' in EXP: o = [x for x in o if not x.startswith('ds_read')]
        if 'nowait' in EXP: o = [x for x in o if not x.startswith('s_waitcnt')]
        if 'noexp' in EXP: o = [x for x in o if not x.startswith('v_exp')]
        if 'nocvt' in EXP: o = [x for x in o if not x.startswith('v_cvt')]
        if 'nosalu' in EXP: o = [x for x in o if not (x.startswith('s_a') and 'm0' not in x)]
        return o
    def epi_check(X):
        o = [f'v_accvgpr_read_b32 v{9 + qs}, a{lacc(X, qs)}' for qs in range(2)]
        return o + ['v_add_f32 v11, v9, v10', f'v_cmp_ngt_f32 vcc, s{sTHR}, v11', f's_or_b64 s[{sFLAG}:{sFLAG+1}], s[{sFLAG}:{sFLAG+1}], vcc']
    def epi_store(X, sC):
        o = ['v_rcp_f32 v9, v9', 'v_rcp_f32 v10, v10']
        for p in range(4):
            o.append(f's_add_u32 s{sT}, s{sC}, {p * 4096}')
            for qs in range(2):
                b = otile(X, 2 * p, qs)
                o += PK_([f'v_mul_f32 v{b+i}, v{b+i}, v{9 + qs}' for i in range(8)]) + cvt_pairs(b)
                o.append(f'buffer_store_dwordx4 {V(b,4)}, v{V_L16}, {wsrd(R_WS)}, s{sT} offen offset:{qs * 1024}{ST} ; @CS')
        return o
    def epilogue(X, sC):
        if X == 'B': return epi_check(X) + ['s_nop 0'] + epi_store(X, sC)
        return epi_check(X) + (['s_cmp_eq_u32 s3, 99'] if EXP else []) + ['s_cbranch_scc1 K_SLOW', 'K_SLOW_RET:'] + epi_store(X, sC)
    def slow_path():
        sP, sLAST, sTT = sSLOT, sM0R, sCNT
        VM, VF, VL = 2, 6, 24
        o = ['K_SLOW:', 's_waitcnt vmcnt(0) lgkmcnt(0)', f's_mov_b32 s{sP}, 0', f's_mov_b32 s{sLAST}, s{sQB}', 'K_SLOW_T:']
        for i in range(16):
            o += [f'v_accvgpr_read_b32 v4, a{A_QL+i}', f'v_accvgpr_read_b32 v5, a{A_QL+16+i}', f'v_accvgpr_write_b32 a{A_QL+i}, v5', f'v_accvgpr_write_b32 a{A_QL+16+i}, v4']
            a, b = 192 + 8 * (i // 4) + i % 4, 224 + 8 * (i // 4) + i % 4
            o += [f'v_mov_b32 v4, v{a}', f'v_mov_b32 v{a}, v{b}', f'v_mov_b32 v{b}, v4']
        o += [f'v_mov_b32 v{V_OA+i}, 0' for i in range(64)] + [f'v_mov_b32 v{VL+i}, 0' for i in range(8)]
        o += [f'v_mov_b32 v{VM}, 0xff000000', f'v_mov_b32 v{VM+1}, 0xff000000', f's_mov_b32 s{sTT}, 0', 'K_SLOW_L:']
        for q in range(4):
            o += [f's_lshl_b32 s{sT}, s{sTT}, 14', f's_add_u32 s{sT}, s{sT}, {q * 4096}']
            o += [f'buffer_load_dwordx4 {A(A_K + 16 * q + 4 * i, 4)}, v{V_L16}, {wsrd(R_KV)}, s{sT} offen offset:{i * 1024}{LD}' for i in range(4)]
        o += [f'v_mov_b32 v{V_NA+i}, 0' for i in range(16)]
        o += [f's_cmp_lg_u32 s{sTT}, s{sLAST}', 's_cbranch_scc1 K_SLOW_M'] + mask_ops('A') + ['K_SLOW_M:', 's_waitcnt vmcnt(0)', 's_nop 1']
        o += qk_mfmas('A', 0) + ['s_nop 7']
        o += rowmax('A', 0, tm=(11, 8))[:-32]
        for qs in range(2):
            o += [f'v_max_f32 v{9+qs}, v{9+qs}, v{VM+qs}', f'v_sub_f32 v{VF+qs}, v{VM+qs}, v{9+qs}', f'v_exp_f32 v{VF+qs}, v{VF+qs}', f'v_mov_b32 v{VM+qs}, v{9+qs}']
            for kvt in range(2):
                o += [f'v_sub_f32 v{stile(0,kvt,qs)+i}, v{stile(0,kvt,qs)+i}, v{9+qs}' for i in range(4)]
            o += [f'v_mul_f32 v{V_OA+32*qs+i}, v{V_OA+32*qs+i}, v{VF+qs}' for i in range(32)]
            o += [f'v_mul_f32 v{VL+4*qs+i}, v{VL+4*qs+i}, v{VF+qs}' for i in range(4)]
        ex, cv = sm_ops(0)
        for c in range(8): o += ex[2 * c:2 * c + 2] + ['s_nop 0', cv[c]]
        o += ['s_nop 1'] + [mfma(V(VL+4*qs, 4), A(A_ONE, 4), V(V_P+4*qs, 4), V(VL+4*qs, 4)) for qs in range(2)] + pv_mfmas('A', 0)[2:]
        o += ['s_nop 7', f's_add_u32 s{sTT}, s{sTT}, 1', f's_cmp_le_u32 s{sTT}, s{sLAST}', 's_cbranch_scc1 K_SLOW_L']
        o += [f'v_mov_b32 v9, v{VL}', f'v_mov_b32 v10, v{VL+4}', f's_cmp_eq_u32 s{sP}, 1', 's_cbranch_scc1 K_SLOW_RET']
        o += epi_store('A', sCB)
        o += [f's_mov_b32 s{sP}, 1', f's_lshl_b32 s{sT}, s{sJ}, 3', f's_sub_u32 s{sT}, 60, s{sT}', f's_add_u32 s{sLAST}, s{sQB}, s{sT}', 's_branch K_SLOW_T']
        return o
    L += stamp(11)
    L += [f's_cmp_eq_u32 s{sCNT}, 0', 's_cbranch_scc1 K_TB', f'.p2align {ALN}', 'K_DUAL:']
    L += step('A', 'A', 1, True, False, None, mask='K_MB')
    L += step('B', 'B', 0, False, True, V_AK, loop='K_DUAL', prevK=False)
    L += ['K_TB:']
    V_DV, V_RA, V_DA, V_S6, V_P3 = 16, 20, 25, 29, 30
    c1 = []
    for i in range(4):
        c1 += [f's_add_u32 s{sT}, s{sKQ}, {i}', f's_and_b32 s{sT}, s{sT}, 3', f'v_lshl_add_u32 v{V_DA+i}, s{sT}, 10, v{V_L16}']
    c1 += [f's_add_u32 s{sT1}, s{sGA}, 4096', f's_add_u32 s{sK}, s{sGW}, 4096', f's_lshl_b32 s{sT}, s{sJ}, 2', f's_sub_u32 s{sCNT}, 29, s{sT}', f's_max_u32 s{sRLX}, s{sCNT}, 2', f's_sub_u32 s{sRLX}, s{sRLX}, 2',
           f'v_min_u32 v{V_S6}, 1, v0', f'v_mov_b32 v{V_POLL}, 1']
    c2 = []
    for i in range(4):
        c2 += [f's_add_u32 s{sT}, s{sKR}, {i}', f's_and_b32 s{sT}, s{sT}, 3', f's_add_u32 s{sT}, s{sT}, {4 - i}', f'v_lshl_add_u32 v{V_DV+i}, s{sT}, 10, v{V_L16}']
    c3 = [f'v_add_u32 v{V_RA}, s{sRA}, v{V_L16}', f'v_add_u32 v{V_RA+1}, s{sRW}, v{V_L16}', f'v_add_u32 v{V_RA+2}, 0x10000, v{V_RA}', f'v_add_u32 v{V_RA+3}, 0x10000, v{V_RA+1}',
          f'v_min_u32 v{V_P3}, 13, v0', f'v_lshlrev_b32 v{V_P3}, 7, v{V_P3}', f'v_lshlrev_b32 v{V_S6}, 30, v{V_S6}']
    L += step('A', 'A', 1, True, False, V_AK, extra=list(zip((1, 9, 17, 25, 32, 33), pkst[:6])), chains=[c1])
    L += step('A', 'B', 0, False, True, V_AV, extra=list(zip((1, 5, 9, 13, 17, 21, 25, 29), pkst[6:] + sent)), vmw=30, chains=[c2, c3])
    L += stamp(12)
    L += ['s_barrier'] + epilogue('B', sCB)
    L += ['s_waitcnt vmcnt(14)', f'buffer_atomic_add v{V_POLL}, v{V_S6}, {wsrd(R_WS)}, s{sFX} offen offset:1024', f's_mov_b32 s{sFX}, {WS_FLG + 32 * 128:#x}']
    s1 = step('A', 'A', 1, True, True, V_AV, mask='K_MA', lay=LAY, **(dict(relax='K_RX0', vmw=35) if RELAX else {}))
    assert s1[1] == 's_barrier'
    L += [s1[0], 's_branch K_SINGLE_NB', f'.p2align {ALN}', 'K_SINGLE:'] + s1[:2] + ['K_SINGLE_NB:'] + s1[2:]
    L += step('A', 'A', 0, True, True, V_AV, loop='K_SINGLE', lay=LAY, **(dict(relax='K_RX1', vmw=35) if RELAX else {}))
    OOL += ['K_MB:'] + mask_ops('B') + ['s_branch K_MB_RET', 'K_MA:'] + mask_ops('A')
    OOL += [f'buffer_load_dword v{V_POLL}, v{V_P3}, {wsrd(R_WS)}, s{sFX} offen sc1', 's_branch K_MA_RET']
    NSS = 23
    V_AC3, V_XR, V_OA_ = 64, 24, 9
    def fr(ss, op, k, i): return A(128 + 64 * (ss % 2) + (op * 8 + k * 4 + i) * 4, 4)
    def d_items(ss):
        it = []
        for k in range(2):
            base, ks = (sDH, 2 * ss + k) if ss < 7 else (sDC, 2 * (ss - 7) + k)
            it += [f's_add_u32 m0, s{sM0O}, {32768 + ((ss + 2) % 4) * 32768 + k * 4096}', f's_add_u32 s{sT2}, s{base}, {ks * 4096}']
            it += [f'buffer_load_dwordx4 v{V_DV+i}, {wsrd(R_WS)}, s{sT2} offen offset:{i*1024}{LD} lds ; @D{ss}' for i in range(4)]
        return it
    def f_reads(ss):
        o = []
        for op, k, i in [(1, 0, 0), (1, 1, 0)] + [(0, k, i) for i in range(4) for k in range(2)] + [(1, k, i) for i in range(1, 4) for k in range(2)]:
            o.append(f'ds_read_b128 {fr(ss, op, k, i)}, v{V_RA + op + 2 * (((ss + 2) % 4) // 2)} offset:{(ss % 2) * 32768 + k * 4096 + i * 1024}')
        return o
    L += stamp(13)
    L += ['s_barrier'] + v_reads()
    ex, cv = sm_ops(1)
    L += ex[0:4] + cv[0:2]
    L += [f's_waitcnt vmcnt({4 + sum(1 for g in LAYS[LAY][3] if g >= 20)})', f'v_cmp_gt_u32 vcc, 128, v{V_POLL}', 's_cbranch_vccnz S3', 'S3_RET:']
    poll_ool('S3', V_P3, R_WS, f's{sFX}', 128)
    T = []
    f1 = Sched(pv_mfmas('A', 0))
    f1.put(1, 's_waitcnt lgkmcnt(4)'); f1.put(9, 's_waitcnt lgkmcnt(0)')
    g = 0
    for c in range(2, 8):
        f1.put(g, ex[2 * c]); f1.put(g + 1, ex[2 * c + 1]); f1.put(g + 2, cv[c]); g += 3
    f1.put(12, f's_add_u32 s{sSLOT}, s{sSLOT}, 16384'); f1.put(13, f's_and_b32 s{sSLOT}, s{sSLOT}, 0x1ffff')
    f1.put(14, f'v_add_u32 v{V_AV}, s{sSLOT}, v{V_L16}')
    f1.put(16, 's_barrier')
    d1 = d_items(1)
    T += d1[:2]
    for i in range(4): f1.put(2 * i, d1[2 + i])
    f1.put(7, d1[6]); f1.put(8, d1[7])
    for i in range(4): f1.put(9 + 2 * i, d1[8 + i])
    T += f1.emit() + v_reads(A_K)
    f2 = Sched(pv_mfmas('A', 1, A_K))
    n = 0
    for op, i in [(1, 0), (0, 0), (0, 1), (0, 2), (0, 3), (1, 1), (1, 2), (1, 3)]:
        for k in range(2):
            f2.put(n, f'buffer_load_dwordx4 {fr(0, op, k, i)}, v{V_L16 if op else V_DA + i}, {wsrd(R_WS)}, s{((sGA, sT1), (sGW, sK))[op][k]} offen offset:{i * 1024 if op else 0}{LD}'); n += 1
    T += f2.emit()
    T += [f's_sub_u32 s{sCNT}, 3, s3', 'K_XB:', f's_cmp_eq_u32 s{sCNT}, 0', 's_cbranch_scc0 K_XBL', 'K_XBD:']
    OOL += ['K_XBL:', 's_barrier', f's_sub_u32 s{sCNT}, s{sCNT}, 1', 's_branch K_XB']
    T += ['WAITVM D1', 's_waitcnt lgkmcnt(0)', 's_barrier'] + stamp(14) + d_items(2) + f_reads(1) + epilogue('A', sCA)
    T += stamp(15)
    mf = []
    for ss in range(NSS):
        order = [(ct, rt) for ct in range(4) for rt in range(4)] if ss < NSS - 1 else [(ct, rt) for rt in (1, 2, 3, 0) for ct in range(4)]
        for ct, rt in order:
            if True:
                acc = V(V_AC3 + (rt * 4 + ct) * 4, 4)
                for k in range(2):
                    mf.append(mfma(acc, fr(ss, 1, k, ct), fr(ss, 0, k, rt), '0' if (ss == 0 and k == 0) else acc))
    sc = Sched(mf)
    issue = {ss: [ss + 3] for ss in range(NSS - 3)}
    for ss in range(4, S4P): issue[ss] = []
    nxt = 7
    for ss in range(S4P, NSS):
        issue[ss] = [x for x in (nxt, nxt + 1) if x <= ss + 3 and x < NSS]
        nxt += len(issue[ss])
    for ss in range(NSS):
        g0 = 32 * ss
        late = ss + 1 < NSS and ss + 1 in issue.get(ss, [])
        gb = g0 + (22 if late else 0)
        if ss in LATE: late = True; gb = g0 + 22
        if 0 < ss and ss + 1 < NSS:
            sc.put(gb, f'WAITVM D{ss+1}'); sc.s[gb].append('s_waitcnt lgkmcnt(0)'); sc.put(gb + 1, 's_barrier')
            for i, r in enumerate(f_reads(ss + 1)):
                sc.put(gb + 1 + (i // 2 if late else (3 * i) // 2), r)
        g = g0 + 2
        if ss == S4P:
            sc.put(g0 + 2, f'v_cmp_gt_u32 vcc, 8, v{V_POLL}'); sc.put(g0 + 3, 's_cbranch_vccnz S4'); sc.s[g0 + 3].append('S4_RET:')
            poll_ool('S4', 12, R_WS, f's{sF4C}', 8)
            g = g0 + 4
        it = sum((d_items(x) for x in issue.get(ss, [])), [])
        nm_ = sum(1 for x in it if kind_of(x) == 'm')
        k = 0
        for x in it:
            gg = g + (k * (g0 + 31 - g)) // max(nm_, 8)
            if kind_of(x) == 'm':
                sc.m[gg].append(x); k += 1
            else: sc.m[gg].append(x)
    gs4 = 32 * S4S + (22 if S4S in LATE else 0)
    sc.s[gs4].insert(0, 'WAITVM CS')
    chain(sc, [f's_lshl_b32 s{sV}, s{sJ}, 2', f's_add_u32 s{sU}, s{sKQ}, s{sV}', f's_lshl_b32 s{sU}, s{sU}, 7',
               f's_add_u32 s{sFX}, s{sU}, {WS_FLG + 64 * 128:#x}', f'v_mov_b32 v{V_POLL}, 1', 'v_mov_b32 v12, 0'], 4)
    sc.m[gs4 + 1].insert(0, f'buffer_atomic_add v{V_POLL}, v{V_SIG}, {wsrd(R_WS)}, s{sFX} offen')
    sc.m[32 * S4P - 24].append(f'buffer_load_dword v{V_POLL}, v12, {wsrd(R_WS)}, s{sF4C} offen sc1')
    chain(sc, ['v_and_b32 v10, 15, v0', 'v_lshrrev_b32 v11, 4, v0', 'v_lshlrev_b32 v11, 4, v11', f'v_lshl_add_u32 v{V_OA_}, v10, 10, v11',
               f'buffer_load_dwordx4 {V(V_XR,4)}, v{V_OA_}, {wsrd(R_X)}, s{sO} offen', f'buffer_load_dwordx4 {V(V_XR+4,4)}, v{V_OA_}, {wsrd(R_X)}, s{sO} offen offset:64',
               ], 32 * 19 + 2)
    chain(sc, ['v_and_b32 v12, 3, v0', 'v_lshlrev_b32 v12, 7, v12', f's_lshl_b32 s{sFX}, s{sJ}, 9', f's_add_u32 s{sFX}, s{sFX}, {WS_FLG + 64 * 128:#x}'], 32 * 16)
    sc.m[32 * 17].append(f'buffer_load_dword v{V_POLL}, v12, {wsrd(R_WS)}, s{sFX} offen sc1')
    g = sc.place(f'v_cmp_gt_u32 vcc, 8, v{V_POLL}', 32 * 20 + 4)
    g = sc.place('s_cbranch_vccnz S7', g + 1); sc.s[g].append('S7_RET:')
    poll_ool('S7', 12, R_WS, f's{sFX}', 8)
    for r in range(1, 4):
        chain(sc, [f's_add_u32 s{sT+r-1}, s{sKQ}, {r}', f's_and_b32 s{sT+r-1}, s{sT+r-1}, 3', f's_mul_i32 s{sT+r-1}, s{sT+r-1}, {4 * 6144}',
                   f's_add_u32 s{sT+r-1}, s{sT+r-1}, s{sXS}', f's_add_u32 s{sT+r-1}, s{sT+r-1}, {(r - 1) * 2048}'], 32 * 21 + 2)
    chain(sc, [f's_add_u32 s{sV}, s{sXI}, 4096', f's_mov_b32 s{sSPIN}, {SPIN}'], 32 * 22)
    X = 32
    chain(sc, sum(([f'v_lshlrev_b32 v{X+2*i}, 16, v{V_XR+i}', f'v_and_b32 v{X+2*i+1}, 0xffff0000, v{V_XR+i}'] for i in range(8)), []), 32 * 21)
    rest = []
    for n, (r, cp) in enumerate([(r, cp) for r in (1, 2, 3) for cp in range(2)]):
        b = V_AC3 + (r * 4 + cp * 2) * 4
        ops = cvt_pairs(b) + [f'buffer_store_dwordx4 {V(b, 4)}, v{V_L16}, {wsrd(R_WS)}, s{sT+r-1} offen offset:{cp * 1024}{ST}']
        g = 32 * 22 + 4 * n + 3 + (8 if n == 0 else 5)
        for i, o in enumerate(ops):
            gg = g + i // 2
            if gg < 32 * 23: (sc.m if i == 4 else sc.v)[gg].append(o)
            else: rest.append(o)
    for i, ss in enumerate((0, 3, 5, 7, 12, 17, 22)): sc.v[32 * ss + 31] += stamp(16 + i)
    T += sc.emit() + rest
    Y = 128
    xl = [f'buffer_load_dwordx4 {V(Y + 4 * i, 4)}, v{V_L16}, {wsrd(R_WS)}, s{sXI if i < 4 else sV} offen offset:{(i % 4) * 1024}{LD}' for i in range(6)]
    T += ['S5_RET:'] + xl + ['s_nop 0'] + PK_([f'v_add_f32 v{X+i}, v{X+i}, v{V_AC3+i}' for i in range(16)])
    chk = [f'v_max3_u32 v10, v{Y}, v{Y+1}, v{Y+2}', f'v_max3_u32 v11, v{Y+3}, v{Y+4}, v{Y+5}']
    for i in range(6, 22, 4):
        chk += [f'v_max3_u32 v10, v10, v{Y+i}, v{Y+i+1}', f'v_max3_u32 v11, v11, v{Y+i+2}, v{Y+i+3}']
    chk += [f'v_max3_u32 v10, v10, v{Y+22}, v{Y+23}', 'v_max_u32 v10, v10, v11', 'v_cmp_eq_u32 vcc, -1, v10']
    T += ['K_XC:', 's_waitcnt vmcnt(0)'] + chk + ['s_cbranch_vccnz K_XR', 'K_XD:']
    OOL += ['K_XR:', f's_sub_u32 s{sSPIN}, s{sSPIN}, 1', 's_cbranch_scc1 K_XD'] + xl + ['s_branch K_XC']
    for r in range(3):
        for i in range(8):
            T += [f'v_lshlrev_b32 v{160+2*i}, 16, v{Y+8*r+i}', f'v_and_b32 v{161+2*i}, 0xffff0000, v{Y+8*r+i}']
        T += PK_([f'v_add_f32 v{X+i}, v{X+i}, v{160+i}' for i in range(16)])
    for s_ in range(2):
        T += cvt_pairs(X + 8 * s_)
        T += [f'buffer_store_dwordx4 {V(X + 8 * s_, 4)}, v{V_OA_}, {wsrd(R_OUT)}, s{sO} offen offset:{64 * s_}{STO}']
    if PROF:
        T += stamp(23) + ['s_waitcnt vmcnt(0)'] + stamp(24) + [f's_add_u32 s{R_TMP}, s{R_WS}, {WS_PROF:#x}', f's_addc_u32 s{R_TMP+1}, s{R_WS+1}, 0', f's_mov_b32 s{R_TMP+2}, 0x40000', f's_mov_b32 s{R_TMP+3}, 0x20000',
             f's_lshl_b32 s{sU}, s2, 2', f's_add_u32 s{sU}, s{sU}, s3', f's_lshl_b32 s{sU}, s{sU}, 8', 'v_lshlrev_b32 v0, 2, v0',
             f'buffer_store_dword v{V_PROF}, v0, {wsrd(R_TMP)}, s{sU} offen']
    if DIAG is not None:
        T += stamp(23) + ['K_DG:', 's_memrealtime s[100:101]', 's_waitcnt lgkmcnt(0)', 's_sub_u32 s100, s100, s98', 's_cmp_lt_u32 s100, 12000', 's_cbranch_scc1 K_DG']
    L += autowait(T)
    L += ['K_END:', 's_endpgm'] + OOL + ['K_LAST:', 's_endpgm'] + slow_path()
    return L, ov

def build(lines):
    hdr = open('cdna_kernels/' + NAME + '.s.ref').read().split('; Override launch')[0]
    out = hdr + f'; @launch grid=(256,1,1) block=(256,1,1) lds={LDS_SZ}\n'
    out += '.amdgcn_target "amdgcn-amd-amdhsa--gfx950"\n.text\n' + fmt(lines) + '\n'
    out += '.section .rodata,"a"\n.p2align 6\n' + kdesc(NAME + '_kernel') + '\n'
    return out

if __name__ == '__main__':
    path = sys.argv[1]
    for a in sys.argv[2:]:
        k, v = a.split('=')
        globals()[k] = eval(v)
    cb = 4096
    for it in range(2):
        lines, ov = gen_fused(cb)
        open(path, 'w').write(build(lines))
        sym = G.sizes(path)
        cb = (sym['K_LAST'] - sym[NAME + '_kernel'] - 128) & ~63
    print('overflow', ov, 'lines', len(lines), 'bytes', cb, file=sys.stderr)
```
